```python
import torch

def _softmax(x, axis=-1):
    return torch.softmax(x, dim=axis)
def _gelu(x):
    return torch.nn.functional.gelu(x, approximate="tanh")
def _silu(x):
    return torch.nn.functional.silu(x)
def _sigmoid(x):
    return torch.sigmoid(x)
def _layernorm(x, axis=-1, eps=1e-5):
    m = x.mean(dim=axis, keepdim=True)
    v = x.var(dim=axis, keepdim=True, unbiased=False)
    return (x - m) / torch.sqrt(v + eps)
def _scatter_add(tgt, idx, src, axis=0):
    return tgt.clone().index_add_(axis, idx, src)
def _segment_sum(src, seg, n):
    out = torch.zeros((n,) + src.shape[1:], dtype=src.dtype)
    return out.index_add_(0, seg, src)
def _pad(x, pw):
    flat = tuple(v for pair in reversed(pw) for v in pair)
    return torch.nn.functional.pad(x, flat)

kernel_name = 'standalone__gqa_softmax__near_ridge'

def setup_inputs():

    _w = (lambda a: (lambda t: t.to(torch.bfloat16) if t.is_floating_point() else t)(torch.as_tensor(a)))
    B, Hq, Hkv, Sq, Sk, D = 32, 32, 8, 64, 512, 128
    return {
        "q": _w((lambda *s: torch.randn(*s, dtype=torch.bfloat16) * 0.8)(B, Hq, Sq, D)),
        "k": _w((lambda *s: torch.randn(*s, dtype=torch.bfloat16) * 0.8)(B, Hkv, Sk, D)),
        "v": _w((lambda *s: torch.randn(*s, dtype=torch.bfloat16) * 0.05)(B, Hkv, Sk, D)),
    }

def reference(q, k, v):
    B, Hq, Sq, D = q.shape
    Hkv = k.shape[1]
    rep = Hq // Hkv
    k = (lambda x, n, axis: torch.repeat_interleave(x, n, dim=axis))(k, rep, axis=1)
    v = (lambda x, n, axis: torch.repeat_interleave(x, n, dim=axis))(v, rep, axis=1)
    scale = D ** -0.5
    scores = torch.einsum("bhqd,bhkd->bhqk", q, k) * scale
    p = _softmax(scores, axis=-1)
    return torch.einsum("bhqk,bhkd->bhqd", p, v)
```

```python
import argparse, math, re, struct, sys

KNAME = "standalone__gqa_softmax__near_ridge_kernel"
TILE = 4352
GRAN = 1088
NSLOT = 37
LDS_BYTES = 163840
FLAG_OFF = NSLOT * TILE


def f32bits(x):
    return struct.unpack("<I", struct.pack("<f", x))[0]


def regs(p, lo, n):
    return [f"{p}{lo + i}" for i in range(n)]


def rr(p, lo, n):
    return f"{p}[{lo}:{lo + n - 1}]" if n > 1 else f"{p}{lo}"


class Op:
    __slots__ = ("text", "cls", "rd", "wr", "deps", "early", "dead", "prio", "needs", "idx", "gap",
                 "ldsn", "pre", "vmn", "tag", "srcc")

    def __init__(self, text, cls, rd=(), wr=(), deps=(), early=-1, dead=10 ** 9, needs=(), pre=None, tag=None,
                 srcc=()):
        self.text, self.cls = text, cls
        self.rd, self.wr = list(rd), list(wr)
        self.deps = list(deps)
        self.early, self.dead = early, dead
        self.needs = list(needs)
        self.idx = None
        self.gap = None
        self.ldsn = None
        self.vmn = None
        self.pre = pre
        self.tag = tag
        self.prio = 0
        self.srcc = list(srcc)


COST = dict(trans=8, valu=4, ldsr=4, ldsw=4, vmem=4, salu=4)


class Emitter:
    def __init__(self):
        self.out = []
        self.nlds = 0
        self.lds_done = 0
        self.lds_gap = []
        self.nvm = 0
        self.vm_done = 0
        self.gap = -1

    def emit(self, op):
        op.idx = len(self.out)
        op.gap = self.gap
        if op.cls in ("ldsr", "ldsw"):
            op.ldsn = self.nlds
            self.nlds += 1
            self.lds_gap.append(self.gap)
        if op.cls == "vmem":
            op.vmn = self.nvm
            self.nvm += 1
        self.out.append(op)
        return op

    def raw(self, text, cls="salu", **kw):
        return self.emit(Op(text, cls, **kw))

    def label(self, name):
        self.out.append(Op(name + ":", "label"))

    def lds_wait(self, needs, lat=None):
        need = max((n.ldsn for n in needs), default=-1) + 1
        if need <= self.lds_done:
            return False
        if lat is not None:
            k = need
            while k < self.nlds and self.lds_gap[k] <= self.gap - lat:
                k += 1
            need = k
        n = min(self.nlds - need, 15)
        self.raw(f"s_waitcnt lgkmcnt({n})", "wait")
        self.lds_done = self.nlds - n
        return True

    def lds_drain(self):
        self.raw("s_waitcnt lgkmcnt(0)", "wait")
        self.lds_done = self.nlds

    def vm_wait(self, ops):
        need = max((o.vmn for o in ops), default=-1) + 1
        if need <= self.vm_done:
            return False
        n = min(self.nvm - need, 63)
        self.raw(f"s_waitcnt vmcnt({n})", "wait")
        self.vm_done = self.nvm - n
        return True


def states(op):
    if op.cls == "label":
        return 0
    m = re.match(r"s_nop (\d+)", op.text)
    return int(m.group(1)) + 1 if m else 1


def fix_hazards(ops):
    out = []
    added = 0
    for op in ops:
        if op.cls == "label":
            out.append(op)
            continue
        need = 0
        dist = 0
        rd, wr = set(op.rd), set(op.wr)
        isv = op.cls in ("valu", "trans")
        for p in reversed(out):
            if dist >= 12:
                break
            pw = set(p.wr)
            req = 0
            if p.cls == "mfma":
                if op.cls == "mfma":
                    ab = rd - set(op.srcc)
                    if pw & ab:
                        req = 8
                    if pw & set(op.srcc) and set(op.srcc) != pw:
                        req = max(req, 6)
                    if pw & wr and set(op.srcc) != pw:
                        req = max(req, 6)
                else:
                    if pw & (rd | wr):
                        req = 8
                    if isv and set(p.srcc) & wr:
                        req = max(req, 3)
            elif p.cls in ("valu", "trans"):
                if op.cls == "mfma" and pw & rd:
                    req = 2
                if p.cls == "trans" and op.cls != "trans" and pw & rd:
                    req = max(req, 1)
                if "permlane" in op.text and pw & rd:
                    req = max(req, 2)
                if ("readfirstlane" in op.text or "readlane" in op.text) and pw & rd:
                    req = max(req, 1)
                sw = {r for r in pw if r[0] == "s" or r == "vcc"}
                if sw & rd:
                    req = max(req, 5 if op.cls == "vmem" else 2)
            elif p.cls == "salu":
                if "m0" in pw and op.cls == "vmem" and "m0" in rd:
                    req = 1
            elif p.cls == "vmem":
                if "store" in p.text and set(p.rd) & wr and op.cls != "salu":
                    req = 2
            need = max(need, req - dist)
            dist += states(p)
        if need > 0:
            out.append(Op(f"s_nop {need - 1}", "nop"))
            added += 1
        out.append(op)
    return out, added


class Pool:
    def __init__(self, prefix, bases):
        self.prefix = prefix
        self.rel = {b: -1 for b in bases}

    def add(self, base, release):
        self.rel[base] = release

    def take(self, release):
        b = min(self.rel, key=lambda k: (self.rel[k], k))
        prev = self.rel[b]
        self.rel[b] = release
        return b, prev


def build(a):
    groups = [int(x) for x in a.groups.split(",")]
    assert sum(groups) == 32 and all(g % 2 == 0 for g in groups)
    G = len(groups)
    gstart = [sum(groups[:g]) for g in range(G + 1)]
    ones_x = [int(c) for c in a.ones if c.isdigit()]
    oacc_x = [int(c) for c in a.oacc if c.isdigit()]
    ld, st = a.ld, a.st
    E = Emitter()
    e = E.raw

    vK, vV = 1, [2, 3, 4, 5]
    vDK, vDV = 6, 7
    vOW, vOR, vOG = 8, 9, 10
    vRL = [12, 13, 14, 15]
    vT0 = 11
    NM = [16 + 4 * x for x in range(4)]
    vnext = 32
    Lreg = {}
    for x in range(4):
        if x in ones_x:
            Lreg[x] = vnext
            vnext += 4
    addx = [x for x in range(4) if x not in ones_x]
    if addx:
        for i, x in enumerate(addx):
            Lreg[x] = vnext + i
        vnext += 4
    Sreg = [vnext + 4 * i for i in range(a.ns)]
    vnext += 4 * a.ns
    vtop = 256
    anext = 0
    Oreg = {}
    for x in range(4):
        if x in oacc_x:
            Oreg[x] = ("a", anext)
            anext += 32
        else:
            vtop -= 32
            Oreg[x] = ("v", vtop)
    Pbases = list(range(vnext, vtop, 4))
    Qreg = [[anext + 16 * x + 4 * s for s in range(4)] for x in range(4)]
    anext += 64
    aONE = anext
    anext += 4
    Fbases = list(range(anext, 256, 4))

    sQ, sK, sV, sO = 12, 16, 20, 24
    sW, sWG, sMODE, sC, sTHR, sBAD, sQW, sTMP = 3, 28, 29, 30, 31, 32, 34, 35
    sWS = 36
    sST = 40
    sOFF = 64

    NK = a.nk
    q0 = a.q0
    vwin = [NK, NK + 16]

    qk_units = [(j, x) for j in range(32) for x in range(4)]
    pv_units = []
    for g in range(G):
        u = []
        last = g == G - 1
        if not last:
            blocks = list(range(8))
            u += [("sum", g, None, x) for x in ones_x]
            u += [("pv", g, b, x) for b in blocks for x in range(4)]
        else:
            for xs in [[int(c) for c in part] for part in a.final.split(",")]:
                u += [("sum", g, None, x) for x in xs if x in ones_x]
                u += [("pv", g, b, x) for b in range(8) for x in xs]
        pv_units.append(u)
    seq = []
    pvq = []
    for g in range(G):
        lo = 4 * gstart[g + 1] + a.lag
        hi = 4 * gstart[min(g + 2, G)] + a.lag
        n = len(pv_units[g])
        for i, u in enumerate(pv_units[g]):
            pos = lo + (hi - lo) * i / n if g < G - 1 else 10 ** 6
            pvq.append((pos, u))
    pi = 0
    for ui, (j, x) in enumerate(qk_units):
        while pi < len(pvq) and pvq[pi][0] < ui:
            seq.append(pvq[pi][1])
            pi += 1
        seq.append(("qk", j, x))
    seq += [u for _, u in pvq[pi:]]

    NPRO = 4
    M = []
    for u in seq:
        if u[0] == "qk":
            M += [("qk", u[1], u[2], s) for s in range(4)]
        else:
            M += [(u[0], u[1], u[2], u[3], k) for k in range(groups[u[1]] // 2)]
    NMF = len(M)
    first_use, last_use = {}, {}

    def use(key, i):
        first_use.setdefault(key, i)
        last_use[key] = i

    for i, m in enumerate(M):
        if m[0] == "qk":
            _, j, x, s = m
            use(("K", j, s), i)
            use(("S", j, x), i)
            use(("Q", x, s), i)
        else:
            kind, g, b, x, k = m
            kap = gstart[g] // 2 + k
            use(("P", kap, x), i)
            if kind == "pv":
                use(("V", kap, b), i)
                use(("O", x, b), i)
            else:
                use(("L", x), i)

    ppool = Pool("v", Pbases)
    Preg, Pfree = {}, {}
    for kap in range(16):
        for x in range(4):
            Preg[kap, x], Pfree[kap, x] = ppool.take(last_use["P", kap, x])
    fpool = Pool("a", Fbases)
    for x in range(4):
        for s in range(4):
            fpool.add(Qreg[x][s], last_use["Q", x, s])
    frags = sorted([k for k in first_use if k[0] in "KV"], key=lambda k: first_use[k])
    Freg, Ffree = {}, {}
    for k in frags:
        Freg[k], Ffree[k] = fpool.take(last_use[k])
        assert Ffree[k] < first_use[k] - a.lat or first_use[k] < 4 * NPRO, ("frag pool too small", k)

    mf = []
    started = set()
    for i, m in enumerate(M):
        if m[0] == "qk":
            _, j, x, s = m
            S = Sreg[(4 * j + x) % a.ns]
            A, B = Freg["K", j, s], Qreg[x][s]
            if s == 0:
                C, cr = ("0", []) if j == 0 else (rr("v", NM[x], 4), regs("v", NM[x], 4))
            else:
                C, cr = rr("v", S, 4), regs("v", S, 4)
            mf.append(Op(f"v_mfma_f32_16x16x32_bf16 {rr('v', S, 4)}, {rr('a', A, 4)}, {rr('a', B, 4)}, {C}", "mfma",
                         rd=regs("a", A, 4) + regs("a", B, 4) + cr, wr=regs("v", S, 4), srcc=cr))
        else:
            kind, g, b, x, k = m
            kap = gstart[g] // 2 + k
            if kind == "pv":
                p, o = Oreg[x][0], Oreg[x][1] + 4 * b
                A = Freg["V", kap, b]
                key = ("O", x, b)
            else:
                p, o, A, key = "v", Lreg[x], aONE, ("L", x)
            B = Preg[kap, x]
            C, cr = (rr(p, o, 4), regs(p, o, 4)) if key in started else ("0", [])
            started.add(key)
            mf.append(Op(f"v_mfma_f32_16x16x32_bf16 {rr(p, o, 4)}, {rr('a', A, 4)}, {rr('v', B, 4)}, {C}", "mfma",
                         rd=regs("a", A, 4) + regs("v", B, 4) + cr, wr=regs(p, o, 4), srcc=cr))

    tile_first = {}
    for j in range(32):
        tile_first["K", j] = first_use["K", j, 0]
        tile_first["V", j] = min(first_use["V", j // 2, b] for b in range(8))
    G0 = 4 * NPRO - 1
    bars = [G0]
    while bars[-1] + a.barper < max(tile_first.values()) - a.lat - 4:
        bars.append(bars[-1] + a.barper)
    pub = {}
    for t, fu in tile_first.items():
        c = [b for b in bars if b <= fu - a.win]
        pub[t] = c[-1] if c else G0
    pub["K", 0] = -1
    if a.k1early:
        pub["K", 1] = -1
    bars = sorted(set(pub.values()) - {-1} | {G0})
    lastk = max(last_use["K", j, s] for j in range(32) for s in range(4))
    obar = (lastk + 2) if a.obar < 0 else a.obar
    if obar not in bars:
        bars = sorted(bars + [obar])
    dma_order = sorted(tile_first, key=lambda t: (pub[t], tile_first[t], t[1]))
    free_slots = {"K": [s for s in range(NK) if not q0 <= s < q0 + 16],
                  "V": [s for s in range(NK, NSLOT) if not q0 <= s < q0 + 16]}
    slot_of, dma_op = {}, {}
    tile_reads = {t: [] for t in tile_first}
    released = set()

    def make_dma(t):
        sl = free_slots[t[0]].pop(0)
        slot_of[t] = sl
        srd, vo = (sK, vDK) if t[0] == "K" else (sV, vDV)
        pre = Op(f"s_add_u32 m0, s{sWG}, {sl * TILE}", "salu", wr=["m0"])
        op = Op(f"buffer_load_dwordx4 v{vo}, s[{srd}:{srd + 3}], s{sOFF + t[1]} offen {ld} lds".replace("  ", " "),
                "vmem", rd=["m0", f"v{vo}"], pre=pre)
        dma_op[t] = op
        return op

    nstamp = [0]

    def stamp():
        if a.stamps:
            r = sST + 2 * nstamp[0]
            nstamp[0] += 1
            assert r + 1 < sOFF
            e(f"s_memrealtime s[{r}:{r + 1}]", "smem")
            E.lds_drain()

    def v(text, wr, rd=(), cls="valu"):
        return e(text, cls, rd=list(rd), wr=list(wr))

    e("s_cmp_ge_u32 s2, 256")
    e("s_cbranch_scc1 L_end")
    e("s_load_dwordx8 s[4:11], s[0:1], 0", "smem")
    if a.stamps:
        e(f"s_load_dwordx2 s[{sWS}:{sWS + 1}], s[0:1], 40", "smem")
    v("v_lshrrev_b32 v12, 6, v0", ["v12"])
    v("v_and_b32 v0, 63, v0", ["v0"])
    v(f"v_readfirstlane_b32 s{sW}, v12", [f"s{sW}"], ["v12"])
    v("v_lshrrev_b32 v13, 4, v0", ["v13"])
    v("v_and_b32 v14, 2, v13", ["v14"])
    v("v_xor_b32 v14, v14, v0", ["v14"])
    v(f"v_lshlrev_b32 v{vT0}, 4, v14", [f"v{vT0}"])
    v(f"v_lshl_add_u32 v{vDK}, v12, 10, v{vT0}", [f"v{vDK}"])
    v("v_and_b32 v14, 1, v13", ["v14"])
    v("v_lshlrev_b32 v14, 1, v14", ["v14"])
    v("v_xor_b32 v14, v14, v0", ["v14"])
    v("v_lshlrev_b32 v14, 4, v14", ["v14"])
    v(f"v_lshl_add_u32 v{vDV}, v12, 10, v14", [f"v{vDV}"])
    e(f"s_mul_i32 s{sWG}, s{sW}, {GRAN}", rd=[f"s{sW}"])
    e(f"s_mul_i32 s{sQW}, s{sW}, {4 * TILE}")
    e(f"s_add_u32 s{sQW}, s{sQW}, {q0 * TILE}")
    e(f"s_mov_b32 s{sMODE}, 0")
    e(f"s_lshl_b32 s{sTMP}, s2, 2")
    e(f"s_add_u32 s{sTMP}, s{sTMP}, s{sW}")
    e(f"s_lshl_b32 s{sTMP}, s{sTMP}, 14")
    e(f"s_lshl_b32 s{sC}, s2, 17")
    for d, size in ((sQ, 16384), (sK, 131072), (sV, 131072), (sO, 16384)):
        e(f"s_mov_b32 s{d + 2}, {size}")
        e(f"s_mov_b32 s{d + 3}, 0x20000")
    for j in range(4):
        e(f"s_mov_b32 s{sOFF + j}, {j * 4096}")
    e("s_waitcnt lgkmcnt(0)", "wait")
    for d, p, o in ((sK, 6, sC), (sQ, 4, sTMP), (sV, 8, sC), (sO, 10, sTMP)):
        e(f"s_add_u32 s{d}, s{p}, s{o}")
        e(f"s_addc_u32 s{d + 1}, s{p + 1}, 0")
    stamp()
    E.label("L_start")
    di = 0

    def issue_dma_now():
        nonlocal di
        op = make_dma(dma_order[di])
        di += 1
        E.emit(op.pre)
        E.emit(op)

    nearly = 2 if a.k1early else 1
    for _ in range(nearly):
        issue_dma_now()
    qdma = []
    for x in range(4):
        for g in range(4):
            e(f"s_add_u32 m0, s{sQW}, {x * TILE + g * (GRAN - 1024)}", wr=["m0"])
            off = f" offset:{g * 1024}" if g else ""
            op = e(f"buffer_load_dwordx4 v{vT0}, s[{sQ}:{sQ + 3}], s{sOFF + x} offen{off} {ld} lds".replace("  ", " "),
                   "vmem", rd=["m0", f"v{vT0}"])
        qdma.append(op)
    for j in range(4, 32):
        e(f"s_mov_b32 s{sOFF + j}, {j * 4096}")
    while di < min(len(dma_order), a.ninit) and free_slots[dma_order[di][0]]:
        issue_dma_now()
    n_init = di

    e(f"s_mov_b32 s{sC}, {f32bits(math.log2(math.e) / math.sqrt(128.0)):#x}")
    e(f"s_mov_b32 s{sTHR}, {f32bits(2.0 ** 32):#x}")
    e(f"s_mov_b64 s[{sBAD}:{sBAD + 1}], 0")
    v("v_and_b32 v12, 3, v0", ["v12"])
    v("v_bfe_u32 v13, v0, 2, 2", ["v13"])
    v("v_lshrrev_b32 v14, 4, v0", ["v14"])
    v(f"v_mul_u32_u24 v{vK}, {GRAN}, v12", [f"v{vK}"], ["v12"])
    v(f"v_lshl_add_u32 v{vK}, v13, 8, v{vK}", [f"v{vK}"])
    v("v_and_b32 v15, 2, v13", ["v15"])
    v("v_xor_b32 v15, v15, v14", ["v15"])
    v(f"v_lshl_add_u32 v{vK}, v15, 4, v{vK}", [f"v{vK}"])
    v(f"v_mul_u32_u24 v{vV[0]}, {GRAN}, v13", [f"v{vV[0]}"])
    v(f"v_lshl_add_u32 v{vV[0]}, v14, 8, v{vV[0]}", [f"v{vV[0]}"])
    v(f"v_lshl_add_u32 v{vV[0]}, v12, 3, v{vV[0]}", [f"v{vV[0]}"])
    v("v_and_b32 v15, 1, v14", ["v15"])
    v(f"v_lshl_add_u32 v{vV[0]}, v15, 5, v{vV[0]}", [f"v{vV[0]}"])
    v(f"v_xor_b32 v{vV[1]}, 32, v{vV[0]}", [f"v{vV[1]}"])
    v(f"v_add_u32 v{vV[2]}, {vwin[1] * TILE}, v{vV[0]}", [f"v{vV[2]}"])
    v(f"v_add_u32 v{vV[3]}, {vwin[1] * TILE}, v{vV[1]}", [f"v{vV[3]}"])
    v(f"v_add_u32 v{vV[0]}, {vwin[0] * TILE}, v{vV[0]}", [f"v{vV[0]}"])
    v(f"v_add_u32 v{vV[1]}, {vwin[0] * TILE}, v{vV[1]}", [f"v{vV[1]}"])
    e(f"s_mul_i32 s{sTMP}, s{sW}, {4 * TILE}")
    v("v_and_b32 v12, 15, v0", ["v12"])
    v(f"v_mul_u32_u24 v{vOW}, 272, v12", [f"v{vOW}"])
    v(f"v_lshl_add_u32 v{vOW}, v14, 3, v{vOW}", [f"v{vOW}"])
    v(f"v_add_u32 v{vOW}, s{sTMP}, v{vOW}", [f"v{vOW}"])
    v("v_lshlrev_b32 v13, 2, v14", ["v13"])
    v("v_sub_u32 v12, v12, v13", ["v12"])
    v("v_and_b32 v12, 15, v12", ["v12"])
    v("v_lshlrev_b32 v12, 4, v12", ["v12"])
    v(f"v_lshl_add_u32 v{vOG}, v14, 8, v12", [f"v{vOG}"])
    v(f"v_mul_u32_u24 v{vOR}, {GRAN}, v14", [f"v{vOR}"])
    v(f"v_add3_u32 v{vOR}, v{vOR}, v12, s{sTMP}", [f"v{vOR}"])
    vQA = 12
    v(f"v_add_u32 v{vQA}, s{sQW}, v{vK}", [f"v{vQA}"])
    v("v_mov_b32 v13, 0x3f803f80", ["v13"])
    for i in range(4):
        v(f"v_accvgpr_write_b32 a{aONE + i}, v13", [f"a{aONE + i}"], ["v13"])
    for x in range(4):
        v(f"v_mov_b32 v{NM[x]}, 0xff800000", [f"v{NM[x]}"])
    for x in addx:
        v(f"v_mov_b32 v{Lreg[x]}, 0", [f"v{Lreg[x]}"])

    def kread(j, s):
        r = Freg["K", j, s]
        return Op(None, "ldsr", rd=[f"v{vK}"], wr=regs("a", r, 4), tag=("K", j, s))

    def vread(kap, b, tau):
        r = Freg["V", kap, b] + 2 * tau
        return Op(None, "ldsr", wr=regs("a", r, 2), tag=("V", kap, b, tau))

    def finalize_read(op):
        if op.text is not None:
            return
        if op.tag[0] == "K":
            _, j, s = op.tag
            off = slot_of["K", j] * TILE + 64 * s
            assert off < 65536
            op.text = f"ds_read_b128 {rr('a', Freg['K', j, s], 4)}, v{vK} offset:{off}"
        else:
            _, kap, b, tau = op.tag
            sl = slot_of["V", 2 * kap + tau]
            w = 0 if sl < vwin[1] else 1
            off = (sl - vwin[w]) * TILE + 64 * (b >> 1)
            assert off < 65536
            av = vV[2 * w + (b & 1)]
            op.rd = [f"v{av}"]
            op.text = f"ds_read_b64_tr_b16 {rr('a', Freg['V', kap, b] + 2 * tau, 2)}, v{av} offset:{off}"

    kr = {(j, s): kread(j, s) for j in range(32) for s in range(4)}
    vr = {(kap, b, t): vread(kap, b, t) for kap in range(16) for b in range(8) for t in range(2)}
    for (j, s), op in kr.items():
        tile_reads["K", j].append(op)
    for (kap, b, t), op in vr.items():
        tile_reads["V", 2 * kap + t].append(op)

    E.vm_wait([dma_op["K", j] for j in range(nearly)])
    e("s_barrier", "barrier")
    for j in range(nearly):
        for s in range(4):
            finalize_read(kr[j, s])
            E.emit(kr[j, s])

    QT = Pbases[0]
    assert len(Pbases) >= 6
    UT = QT + 16

    def q_prepare(x):
        E.vm_wait([qdma[x]])
        rds = [e(f"ds_read_b128 {rr('v', QT + 4 * s, 4)}, v{vQA} offset:{x * TILE + 64 * s}", "ldsr",
                 rd=[f"v{vQA}"], wr=regs("v", QT + 4 * s, 4)) for s in range(4)]
        for s in range(4):
            E.lds_wait([rds[s]])
            for i in range(4):
                src, t = QT + 4 * s + i, UT + 2 * i
                v(f"v_lshlrev_b32 v{t}, 16, v{src}", [f"v{t}"], [f"v{src}"])
                v(f"v_and_b32 v{t + 1}, 0xffff0000, v{src}", [f"v{t + 1}"], [f"v{src}"])
            for i in range(8):
                v(f"v_mul_f32 v{UT + i}, s{sC}, v{UT + i}", [f"v{UT + i}"], [f"v{UT + i}"])
            for i in range(4):
                v(f"v_cvt_pk_bf16_f32 v{UT + 2 * i}, v{UT + 2 * i}, v{UT + 2 * i + 1}", [f"v{UT + 2 * i}"],
                  [f"v{UT + 2 * i}", f"v{UT + 2 * i + 1}"])
            for i in range(4):
                v(f"v_accvgpr_write_b32 a{Qreg[x][s] + i}, v{UT + 2 * i}", [f"a{Qreg[x][s] + i}"], [f"v{UT + 2 * i}"])

    def first_max(x):
        S, n = Sreg[x % a.ns], NM[x]
        v(f"v_max3_f32 v{n}, v{S}, v{S + 1}, v{n}", [f"v{n}"], [f"v{S}", f"v{S + 1}", f"v{n}"])
        v(f"v_max3_f32 v{n}, v{S + 2}, v{S + 3}, v{n}", [f"v{n}"], [f"v{S + 2}", f"v{S + 3}", f"v{n}"])
        for sw in ("v_permlane32_swap_b32", "v_permlane16_swap_b32"):
            v(f"v_mov_b32 v{n + 1}, v{n}", [f"v{n + 1}"], [f"v{n}"])
            v(f"{sw} v{n + 1}, v{n}", [f"v{n}", f"v{n + 1}"], [f"v{n}", f"v{n + 1}"])
            v(f"v_max_f32 v{n}, v{n}, v{n + 1}", [f"v{n}"], [f"v{n}", f"v{n + 1}"])
        for i in range(4):
            v(f"v_sub_f32 v{S + i}, v{S + i}, v{n}", [f"v{S + i}"], [f"v{S + i}", f"v{n}"])
        for i in (1, 2, 3, 0):
            v(f"v_mul_f32 v{n + i}, -1.0, v{n}", [f"v{n + i}"], [f"v{n}"])

    for x in range(4):
        q_prepare(x)
    stamp()
    e(f"s_cmp_lg_u32 s{sMODE}, 0")
    e("s_cbranch_scc1 L_maxpass")
    E.label("L_maxdone")
    E.lds_wait([kr[0, s] for s in range(4)])
    for i in range(4 * NPRO):
        E.emit(mf[i])
    for x in range(4):
        first_max(x)

    F = []
    sm_last = {}
    exps = {}
    for u, (j, x) in enumerate(qk_units):
        S = Sreg[u % a.ns]
        prod = mf[last_use["S", j, x]]
        sdead = first_use["S", (u + a.ns) // 4, (u + a.ns) % 4] - 1 if u + a.ns < 128 else 10 ** 9
        kap = j // 2
        pdead = min(sdead, first_use["P", kap, x] - 2)
        ex = []
        for i in range(4):
            op = Op(f"v_exp_f32 v{S + i}, v{S + i}", "trans", rd=[f"v{S + i}"], wr=[f"v{S + i}"],
                    deps=[(prod, 8)], early=last_use["S", j, x], dead=pdead)
            op.prio = (pdead - 4 + i, u, 3 * i)
            ex.append(op)
            F.append(op)
            if x in addx:
                ad = Op(f"v_add_f32 v{Lreg[x]}, v{Lreg[x]}, v{S + i}", "valu", rd=[f"v{S + i}", f"v{Lreg[x]}"],
                        wr=[f"v{Lreg[x]}"], deps=[(op, 1)], dead=min(sdead, pdead + 8))
                ad.prio = (pdead - 4 + i, u, 3 * i + 2)
                F.append(ad)
                sm_last[x] = ad
            if i % 2:
                P = Preg[kap, x] + 2 * (j % 2) + i // 2
                cv = Op(f"v_cvt_pk_bf16_f32 v{P}, v{S + i - 1}, v{S + i}", "valu",
                        rd=[f"v{S + i - 1}", f"v{S + i}"], wr=[f"v{P}"], deps=[(ex[i - 1], 1), (op, 1)],
                        early=Pfree[kap, x], dead=pdead)
                assert Pfree[kap, x] <= pdead, ("P pool too small", kap, x)
                cv.prio = (pdead - 4 + i, u, 3 * i + 1)
                F.append(cv)
        exps[j, x] = ex
    for (j, s), op in kr.items():
        fu = first_use["K", j, s]
        mf[fu].needs.append(op)
        if op.idx is None:
            op.early = max(Ffree["K", j, s], pub["K", j])
            op.dead = max(fu - a.lat, op.early)
            op.prio = (op.dead - a.rdbias, -1, fu)
            F.append(op)
    for (kap, b, t), op in vr.items():
        fu = first_use["V", kap, b]
        mf[fu].needs.append(op)
        op.early = max(Ffree["V", kap, b], pub["V", 2 * kap + t])
        op.dead = max(fu - a.lat, op.early)
        op.prio = (op.dead - a.rdbias, -1, fu)
        F.append(op)

    tbase = Sreg + NM
    tfree = {b: None for b in tbase}
    tdead = max(last_use["S", 31, x] for x in range(4))
    allsm = [o for o in F if o.cls in ("trans", "valu")]
    lastsm = allsm[-40:]
    tq = list(tbase)
    epi_order = [int(c) for c in a.final if c.isdigit()]
    stores = []

    def ttake():
        b = tq.pop(0)
        tq.append(b)
        return b

    BIG = 10 ** 8
    seqn = [0]

    def epi(op, base, nreg4=()):
        seqn[0] += 1
        op.prio = (BIG, seqn[0], 0)
        F.append(op)
        return op

    for x in epi_order:
        rl = vRL[x]
        L = Lreg[x]
        if x in ones_x:
            src = [(mf[last_use["L", x]], 8)]
            ear = last_use["L", x]
        else:
            prev = sm_last[x]
            ear = -1
            for sw in ("v_permlane32_swap_b32", "v_permlane16_swap_b32"):
                m1 = epi(Op(f"v_mov_b32 v{rl}, v{L}", "valu", rd=[f"v{L}"], wr=[f"v{rl}"],
                            deps=[(prev, 0)] + [(o, 0) for o in lastsm if f"v{L}" in o.wr]), None)
                m2 = epi(Op(f"{sw} v{rl}, v{L}", "valu", rd=[f"v{L}", f"v{rl}"], wr=[f"v{L}", f"v{rl}"],
                            deps=[(m1, 2)]), None)
                prev = epi(Op(f"v_add_f32 v{L}, v{L}, v{rl}", "valu", rd=[f"v{L}", f"v{rl}"], wr=[f"v{L}"],
                              deps=[(m2, 0)]), None)
            src = [(prev, 0)]
        rc = epi(Op(f"v_rcp_f32 v{rl}, v{L}", "trans", rd=[f"v{L}"], wr=[f"v{rl}"], deps=src, early=ear), None)
        cm = epi(Op(f"v_cmp_nge_f32 vcc, s{sTHR}, v{L}", "valu", rd=[f"v{L}"], wr=["vcc"],
                    deps=src + ([(stores[-1][1], 0)] if stores else []), early=ear), None)
        orr = epi(Op(f"s_or_b64 s[{sBAD}:{sBAD + 1}], s[{sBAD}:{sBAD + 1}], vcc", "salu", rd=["vcc"],
                     deps=[(cm, 2)]), None)
        p, ob = Oreg[x]
        wrs = []
        for b in range(8):
            prod = mf[last_use["O", x, b]]
            o = ob + 4 * b
            if p == "a":
                t = ttake()
                dep0 = [(d, 0) for d in (tfree[t] or lastsm)]
                rds = [epi(Op(f"v_accvgpr_read_b32 v{t + i}, a{o + i}", "valu", rd=[f"a{o + i}"], wr=[f"v{t + i}"],
                              deps=[(prod, 8)] + dep0, early=max(last_use["O", x, b], tdead + 1)), None)
                       for i in range(4)]
                src4 = [[(rds[i], 0)] for i in range(4)]
            else:
                t = o
                src4 = [[(prod, 8)] for i in range(4)]
            mu = [epi(Op(f"v_mul_f32 v{t + i}, v{rl}, v{t + i}", "valu", rd=[f"v{rl}", f"v{t + i}"], wr=[f"v{t + i}"],
                         deps=src4[i] + [(rc, 1)], early=last_use["O", x, b]), None) for i in range(4)]
            c0 = epi(Op(f"v_cvt_pk_bf16_f32 v{t}, v{t}, v{t + 1}", "valu", rd=[f"v{t}", f"v{t + 1}"], wr=[f"v{t}"],
                        deps=[(mu[0], 0), (mu[1], 0)]), None)
            c1 = epi(Op(f"v_cvt_pk_bf16_f32 v{t + 1}, v{t + 2}, v{t + 3}", "valu", rd=[f"v{t + 2}", f"v{t + 3}"],
                        wr=[f"v{t + 1}"], deps=[(mu[2], 0), (mu[3], 0), (c0, 0)]), None)
            w = epi(Op(f"ds_write_b64 v{vOW}, {rr('v', t, 2)} offset:{x * TILE + 32 * b}", "ldsw",
                       rd=[f"v{vOW}", f"v{t}", f"v{t + 1}"], deps=[(c0, 0), (c1, 0)], early=obar), None)
            wrs.append(w)
            if p == "a":
                tfree[t] = [w]
        rds = []
        for i in range(4):
            if p == "a":
                t, pp = ob + 4 * i, "a"
            else:
                t, pp = ob + 4 * i, "v"
            r = epi(Op(f"ds_read_b128 {rr(pp, t, 4)}, v{vOR} offset:{x * TILE + 272 * i}", "ldsr", rd=[f"v{vOR}"],
                       wr=regs(pp, t, 4), deps=[(w, 0) for w in wrs]), None)
            rds.append((r, pp, t))
        for i, (r, pp, t) in enumerate(rds):
            off = f" offset:{i * 1024}" if i else ""
            s_ = epi(Op(f"buffer_store_dwordx4 {rr(pp, t, 4)}, v{vOG}, s[{sO}:{sO + 3}], s{sOFF + x} offen{off} {st}".rstrip(),
                        "vmem", rd=regs(pp, t, 4) + [f"v{vOG}"], deps=[(r, a.stdist)], needs=[r]), None)
        stores.append((x, orr))

    pending = sorted(F, key=lambda o: o.prio)
    overflow = [0]

    def ready(op, strict=True):
        if op.early > E.gap:
            return False
        for d, dist in op.deps:
            if d.idx is None:
                return False
            if strict and len(E.out) - d.idx - 1 < dist:
                return False
        return True

    def put(op):
        if op.cls == "ldsr":
            finalize_read(op)
        if op.needs:
            E.lds_wait(op.needs)
        E.emit(op)
        pending.remove(op)

    def force(op):
        assert op.early <= E.gap, ("cannot meet deadline", op.text, op.tag, op.early, E.gap)
        for d, _ in op.deps:
            if d.idx is None:
                assert d.cls != "mfma", ("deadline before producer", op.text)
                force(d)
        put(op)

    def do_barrier(g):
        need = [t for t in pub if pub[t] == g]
        for t in need:
            assert t in dma_op and dma_op[t].idx is not None, ("tile not issued before its barrier", t, g)
        E.vm_wait([dma_op[t] for t in need])
        if g == obar:
            E.lds_wait([o for j in range(32) for o in tile_reads["K", j]])
        e("s_barrier", "barrier")
        if g == G0:
            for s in range(q0, q0 + 16):
                free_slots["K" if s < NK else "V"].append(s)
        for t, rs in tile_reads.items():
            if t not in released and t in slot_of and all(r.idx is not None and r.ldsn < E.lds_done for r in rs):
                released.add(t)
                free_slots[t[0]].append(slot_of[t])

    next_dma_gap = G0
    staged = None
    for g in range(G0, NMF):
        E.gap = g
        if g > G0:
            E.emit(mf[g])
        shadow = True
        if g in bars:
            do_barrier(g)
            shadow = False
        if a.stamps and g in [first_use["S", gs, 0] for gs in (8, 16, 24)] + [tdead]:
            stamp()
        if g + 1 < NMF and mf[g + 1].needs and all(n.idx is not None for n in mf[g + 1].needs):
            if E.lds_wait(mf[g + 1].needs, a.lat):
                shadow = False
        budget = 8
        if staged is not None:
            E.emit(staged)
            staged = None
            budget -= a.dmacost
        elif shadow and di < len(dma_order) and g >= next_dma_gap and free_slots[dma_order[di][0]]:
            staged = make_dma(dma_order[di])
            di += 1
            E.emit(staged.pre)
            next_dma_gap = g + a.dmaper
        while budget > 0:
            cand = [o for o in pending[:400] if ready(o)]
            if not cand:
                break
            pick = None
            for o in cand:
                if COST[o.cls] <= budget:
                    pick = o
                    break
            if pick is None:
                break
            if pick.cls != "trans" and budget == 8:
                tr = [o for o in cand if o.cls == "trans"]
                others = [o for o in cand if o.cls != "trans"]
                if tr and len(others) < 2:
                    pick = tr[0]
            put(pick)
            budget -= COST[pick.cls]
        late = [o for o in pending if o.dead <= g]
        for o in late:
            if o.idx is None:
                n0 = len(E.out)
                force(o)
                overflow[0] += sum(COST.get(x.cls, 4) for x in E.out[n0:])
        if g + 1 < NMF and mf[g + 1].needs:
            E.lds_wait(mf[g + 1].needs)
    assert staged is None and di == len(dma_order)
    stamp()
    ntail = len(pending)
    while pending:
        cand = [o for o in pending if ready(o)] or [o for o in pending if ready(o, False)]
        put(cand[0])
    stamp()

    e(f"s_cmp_lg_u64 s[{sBAD}:{sBAD + 1}], 0")
    e(f"s_cselect_b32 s{sTMP}, 1, 0")
    e(f"s_lshl_b32 s{sC}, s{sW}, 2")
    e(f"s_add_u32 s{sC}, s{sC}, {FLAG_OFF}")
    v(f"v_mov_b32 v12, s{sC}", ["v12"])
    v(f"v_mov_b32 v13, s{sTMP}", ["v13"])
    v(f"v_mov_b32 v14, {FLAG_OFF}", ["v14"])
    e("ds_write_b32 v12, v13", "ldsw", rd=["v12", "v13"])
    E.lds_drain()
    e("s_barrier", "barrier")
    e("ds_read_b128 v[16:19], v14", "ldsr", rd=["v14"], wr=regs("v", 16, 4))
    E.lds_drain()
    v("v_or3_b32 v16, v16, v17, v18", ["v16"], regs("v", 16, 3))
    v("v_or_b32 v16, v16, v19", ["v16"], ["v16", "v19"])
    v(f"v_readfirstlane_b32 s{sTMP}, v16", [f"s{sTMP}"], ["v16"])
    e(f"s_andn2_b32 s{sTMP}, s{sTMP}, s{sMODE}", rd=[f"s{sTMP}"])
    e("s_cbranch_scc1 L_rerun")
    if a.stamps:
        e("s_waitcnt vmcnt(0)", "wait")
        stamp()
        e(f"s_mov_b32 s{sWS + 2}, 1048576")
        e(f"s_mov_b32 s{sWS + 3}, 0x20000")
        e(f"s_lshl_b32 s{sTMP}, s2, 2")
        e(f"s_add_u32 s{sTMP}, s{sTMP}, s{sW}")
        e(f"s_mul_i32 s{sTMP}, s{sTMP}, {8 * nstamp[0]}")
        v("v_mov_b32 v12, 0", ["v12"])
        for i in range(nstamp[0]):
            v(f"v_mov_b32 v14, s{sST + 2 * i}", ["v14"])
            v(f"v_mov_b32 v15, s{sST + 2 * i + 1}", ["v15"])
            e(f"buffer_store_dwordx2 v[14:15], v12, s[{sWS}:{sWS + 3}], s{sTMP} offen offset:{8 * i}", "vmem",
              rd=["v14", "v15", "v12"])
            e("s_nop 1", "nop")
    E.label("L_end")
    e("s_endpgm", "end")

    E.label("L_rerun")
    e(f"s_mov_b32 s{sMODE}, 1")
    e("s_waitcnt vmcnt(0) lgkmcnt(0)", "wait")
    e("s_barrier", "barrier")
    e("s_branch L_start")

    E.label("L_maxpass")
    KT = QT
    v("v_and_b32 v13, 15, v0", ["v13"])
    v("v_lshrrev_b32 v14, 4, v0", ["v14"])
    v("v_lshlrev_b32 v13, 8, v13", ["v13"])
    v("v_lshl_add_u32 v13, v14, 4, v13", ["v13"])
    e(f"s_mov_b32 s{sTMP}, 0")
    E.label("L_maxloop")
    for s in range(4):
        e(f"buffer_load_dwordx4 {rr('v', KT + 4 * s, 4)}, v13, s[{sK}:{sK + 3}], s{sTMP} offen offset:{64 * s}",
          "vmem", rd=["v13"], wr=regs("v", KT + 4 * s, 4))
    e("s_waitcnt vmcnt(0)", "wait")
    for x in range(4):
        S = Sreg[x]
        for s in range(4):
            C, cr = ("0", []) if s == 0 else (rr("v", S, 4), regs("v", S, 4))
            E.emit(Op(f"v_mfma_f32_16x16x32_bf16 {rr('v', S, 4)}, {rr('v', KT + 4 * s, 4)}, {rr('a', Qreg[x][s], 4)}, {C}",
                      "mfma", rd=regs("v", KT + 4 * s, 4) + regs("a", Qreg[x][s], 4) + cr, wr=regs("v", S, 4), srcc=cr))
    e("s_nop 7", "nop")
    for x in range(4):
        S, n = Sreg[x], NM[x]
        v(f"v_max3_f32 v{n}, v{S}, v{S + 1}, v{n}", [f"v{n}"], [f"v{S}", f"v{S + 1}", f"v{n}"])
        v(f"v_max3_f32 v{n}, v{S + 2}, v{S + 3}, v{n}", [f"v{n}"], [f"v{S + 2}", f"v{S + 3}", f"v{n}"])
    e(f"s_add_u32 s{sTMP}, s{sTMP}, 4096")
    e(f"s_cmp_lt_u32 s{sTMP}, 131072")
    e("s_cbranch_scc1 L_maxloop")
    e("s_nop 3", "nop")
    e("s_branch L_maxdone")

    ops, nnop = fix_hazards(E.out)
    info = dict(mfma=NMF, instrs=len(ops), nops=nnop, overflow=overflow[0], tail=ntail, n_init=n_init,
                bars=len(bars), pslots=len(Pbases), fslots=len(Fbases), stamps=nstamp[0])
    head = [
        "; GQA attention forward, B=32 Hq=32 Hkv=8 Sq=64 Sk=512 D=128, bf16 in / bf16 out (generated schedule).",
        "; kernarg: q @0, k @8, v @16, out @24, debug @32, ws @40",
        "; One workgroup per (batch, kv head); wave w handles q head 4*hkv+w.",
        "; Softmax shift: row max of the first 16 keys; a final check on the row sums reruns the",
        "; workgroup with the true row max (L_rerun / L_maxpass) whenever that shift is unsafe.",
        f"; @launch grid=(256,1,1) block=(256,1,1) lds={LDS_BYTES}",
        '.amdgcn_target "amdgcn-amd-amdhsa--gfx950"', ".text", f".globl {KNAME}", ".p2align 8",
        f".type {KNAME},@function", f"{KNAME}:"]
    body = [(o.text if o.cls == "label" else "    " + o.text) for o in ops]
    tail = ['.section .rodata,"a"', ".p2align 6", f".amdhsa_kernel {KNAME}",
            "  .amdhsa_next_free_vgpr 512", "  .amdhsa_next_free_sgpr 102", "  .amdhsa_accum_offset 256",
            "  .amdhsa_group_segment_fixed_size 0", "  .amdhsa_kernarg_size 48", "  .amdhsa_user_sgpr_count 2",
            "  .amdhsa_user_sgpr_kernarg_segment_ptr 1", "  .amdhsa_system_sgpr_workgroup_id_x 1",
            ".end_amdhsa_kernel"]
    return "\n".join(head + body + tail) + "\n", info


def parser():
    ap = argparse.ArgumentParser()
    ap.add_argument("out")
    ap.add_argument("--groups", default="2,2,4,4,4,4,4,8")
    ap.add_argument("--final", default="0,1,2,3")
    ap.add_argument("--ones", default="0123")
    ap.add_argument("--oacc", default="01")
    ap.add_argument("--ld", default="nt")
    ap.add_argument("--st", default="nt")
    ap.add_argument("--ns", type=int, default=5)
    ap.add_argument("--lag", type=int, default=3)
    ap.add_argument("--lat", type=int, default=6)
    ap.add_argument("--win", type=int, default=24)
    ap.add_argument("--barper", type=int, default=64)
    ap.add_argument("--dmaper", type=int, default=8)
    ap.add_argument("--dmacost", type=int, default=4)
    ap.add_argument("--rdbias", type=int, default=8)
    ap.add_argument("--stdist", type=int, default=12)
    ap.add_argument("--nk", type=int, default=16)
    ap.add_argument("--q0", type=int, default=11)
    ap.add_argument("--ninit", type=int, default=64)
    ap.add_argument("--k1early", type=int, default=1)
    ap.add_argument("--obar", type=int, default=-1)
    ap.add_argument("--stamps", type=int, default=0)
    return ap


if __name__ == "__main__":
    a = parser().parse_args()
    txt, info = build(a)
    open(a.out, "w").write(txt)
    print(a.out, info)
```

```python
import argparse, math, re, struct, sys

KNAME = "standalone__gqa_softmax__near_ridge_kernel"
TILE = 4352
GRAN = 1088
NSLOT = 37
LDS_BYTES = 163840
FLAG_OFF = NSLOT * TILE


def f32bits(x):
    return struct.unpack("<I", struct.pack("<f", x))[0]


def regs(p, lo, n):
    return [f"{p}{lo + i}" for i in range(n)]


def rr(p, lo, n):
    return f"{p}[{lo}:{lo + n - 1}]" if n > 1 else f"{p}{lo}"


class Op:
    __slots__ = ("text", "cls", "rd", "wr", "deps", "early", "dead", "prio", "needs", "idx", "gap",
                 "ldsn", "pre", "vmn", "tag", "srcc")

    def __init__(self, text, cls, rd=(), wr=(), deps=(), early=-1, dead=10 ** 9, needs=(), pre=None, tag=None,
                 srcc=()):
        self.text, self.cls = text, cls
        self.rd, self.wr = list(rd), list(wr)
        self.deps = list(deps)
        self.early, self.dead = early, dead
        self.needs = list(needs)
        self.idx = None
        self.gap = None
        self.ldsn = None
        self.vmn = None
        self.pre = pre
        self.tag = tag
        self.prio = 0
        self.srcc = list(srcc)


COST = dict(trans=8, valu=4, ldsr=4, ldsw=4, vmem=4, salu=4)


class Emitter:
    def __init__(self):
        self.out = []
        self.nlds = 0
        self.lds_done = 0
        self.lds_gap = []
        self.nvm = 0
        self.vm_done = 0
        self.gap = -1

    def emit(self, op):
        op.idx = len(self.out)
        op.gap = self.gap
        if op.cls in ("ldsr", "ldsw"):
            op.ldsn = self.nlds
            self.nlds += 1
            self.lds_gap.append(self.gap)
        if op.cls == "vmem":
            op.vmn = self.nvm
            self.nvm += 1
        self.out.append(op)
        return op

    def raw(self, text, cls="salu", **kw):
        return self.emit(Op(text, cls, **kw))

    def label(self, name):
        self.out.append(Op(name + ":", "label"))

    def lds_wait(self, needs, lat=None):
        need = max((n.ldsn for n in needs), default=-1) + 1
        if need <= self.lds_done:
            return False
        if lat is not None:
            k = need
            while k < self.nlds and self.lds_gap[k] <= self.gap - lat:
                k += 1
            need = k
        n = min(self.nlds - need, 15)
        self.raw(f"s_waitcnt lgkmcnt({n})", "wait")
        self.lds_done = self.nlds - n
        return True

    def lds_drain(self):
        self.raw("s_waitcnt lgkmcnt(0)", "wait")
        self.lds_done = self.nlds

    def vm_wait(self, ops):
        need = max((o.vmn for o in ops), default=-1) + 1
        if need <= self.vm_done:
            return False
        n = min(self.nvm - need, 63)
        self.raw(f"s_waitcnt vmcnt({n})", "wait")
        self.vm_done = self.nvm - n
        return True


def states(op):
    if op.cls == "label":
        return 0
    m = re.match(r"s_nop (\d+)", op.text)
    return int(m.group(1)) + 1 if m else 1


def fix_hazards(ops):
    out = []
    added = 0
    for op in ops:
        if op.cls == "label":
            out.append(op)
            continue
        need = 0
        dist = 0
        rd, wr = set(op.rd), set(op.wr)
        isv = op.cls in ("valu", "trans")
        for p in reversed(out):
            if dist >= 12:
                break
            pw = set(p.wr)
            req = 0
            if p.cls == "mfma":
                if op.cls == "mfma":
                    ab = rd - set(op.srcc)
                    if pw & ab:
                        req = 8
                    if pw & set(op.srcc) and set(op.srcc) != pw:
                        req = max(req, 6)
                    if pw & wr and set(op.srcc) != pw:
                        req = max(req, 6)
                else:
                    if pw & (rd | wr):
                        req = 8
                    if isv and set(p.srcc) & wr:
                        req = max(req, 3)
            elif p.cls in ("valu", "trans"):
                if op.cls == "mfma" and pw & rd:
                    req = 2
                if p.cls == "trans" and op.cls != "trans" and pw & rd:
                    req = max(req, 1)
                if "permlane" in op.text and pw & rd:
                    req = max(req, 2)
                if ("readfirstlane" in op.text or "readlane" in op.text) and pw & rd:
                    req = max(req, 1)
                sw = {r for r in pw if r[0] == "s" or r == "vcc"}
                if sw & rd:
                    req = max(req, 5 if op.cls == "vmem" else 2)
            elif p.cls == "salu":
                if "m0" in pw and op.cls == "vmem" and "m0" in rd:
                    req = 1
            elif p.cls == "vmem":
                if "store" in p.text and set(p.rd) & wr and op.cls != "salu":
                    req = 2
            need = max(need, req - dist)
            dist += states(p)
        if need > 0:
            out.append(Op(f"s_nop {need - 1}", "nop"))
            added += 1
        out.append(op)
    return out, added


class Pool:
    def __init__(self, prefix, bases):
        self.prefix = prefix
        self.rel = {b: -1 for b in bases}

    def add(self, base, release):
        self.rel[base] = release

    def take(self, release):
        b = min(self.rel, key=lambda k: (self.rel[k], k))
        prev = self.rel[b]
        self.rel[b] = release
        return b, prev


def build(a):
    groups = [int(x) for x in a.groups.split(",")]
    assert sum(groups) == 32 and all(g % 2 == 0 for g in groups)
    G = len(groups)
    gstart = [sum(groups[:g]) for g in range(G + 1)]
    ones_x = [int(c) for c in a.ones if c.isdigit()]
    oacc_x = [int(c) for c in a.oacc if c.isdigit()]
    ld, st = a.ld, a.st
    E = Emitter()
    e = E.raw

    vK, vV = 1, [2, 3, 4, 5]
    vDK, vDV = 6, 7
    vOW, vOR, vOG = 8, 9, 10
    vRL = [12, 13, 14, 15]
    vT0 = 11
    NM = [16 + 4 * x for x in range(4)]
    vnext = 32
    Lreg = {}
    for x in range(4):
        if x in ones_x:
            Lreg[x] = vnext
            vnext += 4
    addx = [x for x in range(4) if x not in ones_x]
    if addx:
        for i, x in enumerate(addx):
            Lreg[x] = vnext + i
        vnext += 4
    Sreg = [vnext + 4 * i for i in range(a.ns)]
    vnext += 4 * a.ns
    vtop = 256
    anext = 0
    Oreg = {}
    for x in range(4):
        if x in oacc_x:
            Oreg[x] = ("a", anext)
            anext += 32
        else:
            vtop -= 32
            Oreg[x] = ("v", vtop)
    Pbases = list(range(vnext, vtop, 4))
    Qreg = [[anext + 16 * x + 4 * s for s in range(4)] for x in range(4)]
    anext += 64
    aONE = anext
    anext += 4
    Fbases = list(range(anext, 256, 4))

    sQ, sK, sV, sO = 12, 16, 20, 24
    sW, sWG, sMODE, sC, sTHR, sBAD, sQW, sTMP = 3, 28, 29, 30, 31, 32, 34, 35
    sWS = 36
    sST = 40
    sOFF = 64

    NK = a.nk
    q0 = a.q0
    vwin = [NK, NK + 16]

    qk_units = [(j, x) for j in range(32) for x in range(4)]
    pv_units = []
    for g in range(G):
        u = []
        last = g == G - 1
        if not last:
            blocks = list(range(8))
            u += [("sum", g, None, x) for x in ones_x]
            u += [("pv", g, b, x) for b in blocks for x in range(4)]
        else:
            for xs in [[int(c) for c in part] for part in a.final.split(",")]:
                u += [("sum", g, None, x) for x in xs if x in ones_x]
                u += [("pv", g, b, x) for b in range(8) for x in xs]
        pv_units.append(u)
    seq = []
    pvq = []
    for g in range(G):
        lo = 4 * gstart[g + 1] + a.lag
        hi = 4 * gstart[min(g + 2, G)] + a.lag
        n = len(pv_units[g])
        for i, u in enumerate(pv_units[g]):
            pos = lo + (hi - lo) * i / n if g < G - 1 else 10 ** 6
            pvq.append((pos, u))
    pi = 0
    for ui, (j, x) in enumerate(qk_units):
        while pi < len(pvq) and pvq[pi][0] < ui:
            seq.append(pvq[pi][1])
            pi += 1
        seq.append(("qk", j, x))
    seq += [u for _, u in pvq[pi:]]

    NPRO = 4
    M = []
    for u in seq:
        if u[0] == "qk":
            M += [("qk", u[1], u[2], s) for s in range(4)]
        else:
            M += [(u[0], u[1], u[2], u[3], k) for k in range(groups[u[1]] // 2)]
    NMF = len(M)
    first_use, last_use = {}, {}

    def use(key, i):
        first_use.setdefault(key, i)
        last_use[key] = i

    for i, m in enumerate(M):
        if m[0] == "qk":
            _, j, x, s = m
            use(("K", j, s), i)
            use(("S", j, x), i)
            use(("Q", x, s), i)
        else:
            kind, g, b, x, k = m
            kap = gstart[g] // 2 + k
            use(("P", kap, x), i)
            if kind == "pv":
                use(("V", kap, b), i)
                use(("O", x, b), i)
            else:
                use(("L", x), i)

    ppool = Pool("v", Pbases)
    Preg, Pfree = {}, {}
    for kap in range(16):
        for x in range(4):
            Preg[kap, x], Pfree[kap, x] = ppool.take(last_use["P", kap, x])
    fpool = Pool("a", Fbases)
    for x in range(4):
        for s in range(4):
            fpool.add(Qreg[x][s], last_use["Q", x, s])
    frags = sorted([k for k in first_use if k[0] in "KV"], key=lambda k: first_use[k])
    Freg, Ffree = {}, {}
    for k in frags:
        Freg[k], Ffree[k] = fpool.take(last_use[k])
        assert Ffree[k] < first_use[k] - a.lat or first_use[k] < 4 * NPRO, ("frag pool too small", k)

    mf = []
    started = set()
    for i, m in enumerate(M):
        if m[0] == "qk":
            _, j, x, s = m
            S = Sreg[(4 * j + x) % a.ns]
            A, B = Freg["K", j, s], Qreg[x][s]
            if s == 0:
                C, cr = ("0", []) if j == 0 else (rr("v", NM[x], 4), regs("v", NM[x], 4))
            else:
                C, cr = rr("v", S, 4), regs("v", S, 4)
            mf.append(Op(f"v_mfma_f32_16x16x32_bf16 {rr('v', S, 4)}, {rr('a', A, 4)}, {rr('a', B, 4)}, {C}", "mfma",
                         rd=regs("a", A, 4) + regs("a", B, 4) + cr, wr=regs("v", S, 4), srcc=cr))
        else:
            kind, g, b, x, k = m
            kap = gstart[g] // 2 + k
            if kind == "pv":
                p, o = Oreg[x][0], Oreg[x][1] + 4 * b
                A = Freg["V", kap, b]
                key = ("O", x, b)
            else:
                p, o, A, key = "v", Lreg[x], aONE, ("L", x)
            B = Preg[kap, x]
            C, cr = (rr(p, o, 4), regs(p, o, 4)) if key in started else ("0", [])
            started.add(key)
            mf.append(Op(f"v_mfma_f32_16x16x32_bf16 {rr(p, o, 4)}, {rr('a', A, 4)}, {rr('v', B, 4)}, {C}", "mfma",
                         rd=regs("a", A, 4) + regs("v", B, 4) + cr, wr=regs(p, o, 4), srcc=cr))

    tile_first = {}
    for j in range(32):
        tile_first["K", j] = first_use["K", j, 0]
        tile_first["V", j] = min(first_use["V", j // 2, b] for b in range(8))
    G0 = 4 * NPRO - 1
    bars = [G0]
    while bars[-1] + a.barper < max(tile_first.values()) - a.lat - 4:
        bars.append(bars[-1] + a.barper)
    pub = {}
    for t, fu in tile_first.items():
        c = [b for b in bars if b <= fu - a.win]
        pub[t] = c[-1] if c else G0
    pub["K", 0] = -1
    if a.k1early:
        pub["K", 1] = -1
    bars = sorted(set(pub.values()) - {-1} | {G0})
    lastk = max(last_use["K", j, s] for j in range(32) for s in range(4))
    obar = (lastk + 2) if a.obar < 0 else a.obar
    if obar not in bars:
        bars = sorted(bars + [obar])
    dma_order = sorted(tile_first, key=lambda t: (pub[t], tile_first[t], t[1]))
    free_slots = {"K": [s for s in range(NK) if not q0 <= s < q0 + 16],
                  "V": [s for s in range(NK, NSLOT) if not q0 <= s < q0 + 16]}
    slot_of, dma_op = {}, {}
    tile_reads = {t: [] for t in tile_first}
    released = set()

    def make_dma(t):
        sl = free_slots[t[0]].pop(0)
        slot_of[t] = sl
        srd, vo = (sK, vDK) if t[0] == "K" else (sV, vDV)
        pre = Op(f"s_add_u32 m0, s{sWG}, {sl * TILE}", "salu", wr=["m0"])
        op = Op(f"buffer_load_dwordx4 v{vo}, s[{srd}:{srd + 3}], s{sOFF + t[1]} offen {ld} lds".replace("  ", " "),
                "vmem", rd=["m0", f"v{vo}"], pre=pre)
        dma_op[t] = op
        return op

    nstamp = [0]

    def stamp():
        if a.stamps:
            r = sST + 2 * nstamp[0]
            nstamp[0] += 1
            assert r + 1 < sOFF
            e(f"s_memrealtime s[{r}:{r + 1}]", "smem")
            E.lds_drain()

    def v(text, wr, rd=(), cls="valu"):
        return e(text, cls, rd=list(rd), wr=list(wr))

    e("s_cmp_ge_u32 s2, 256")
    e("s_cbranch_scc1 L_end")
    if a.spin:
        e("s_memrealtime s[96:97]", "smem")
    e("s_load_dwordx8 s[4:11], s[0:1], 0", "smem")
    if a.stamps:
        e(f"s_load_dwordx2 s[{sWS}:{sWS + 1}], s[0:1], 40", "smem")
    v("v_lshrrev_b32 v12, 6, v0", ["v12"])
    v("v_and_b32 v0, 63, v0", ["v0"])
    v(f"v_readfirstlane_b32 s{sW}, v12", [f"s{sW}"], ["v12"])
    v("v_lshrrev_b32 v13, 4, v0", ["v13"])
    v("v_and_b32 v14, 2, v13", ["v14"])
    v("v_xor_b32 v14, v14, v0", ["v14"])
    v(f"v_lshlrev_b32 v{vT0}, 4, v14", [f"v{vT0}"])
    v(f"v_lshl_add_u32 v{vDK}, v12, 10, v{vT0}", [f"v{vDK}"])
    v("v_and_b32 v14, 1, v13", ["v14"])
    v("v_lshlrev_b32 v14, 1, v14", ["v14"])
    v("v_xor_b32 v14, v14, v0", ["v14"])
    v("v_lshlrev_b32 v14, 4, v14", ["v14"])
    v(f"v_lshl_add_u32 v{vDV}, v12, 10, v14", [f"v{vDV}"])
    e(f"s_mul_i32 s{sWG}, s{sW}, {GRAN}", rd=[f"s{sW}"])
    e(f"s_mul_i32 s{sQW}, s{sW}, {4 * TILE}")
    e(f"s_add_u32 s{sQW}, s{sQW}, {q0 * TILE}")
    e(f"s_mov_b32 s{sMODE}, 0")
    e(f"s_lshl_b32 s{sTMP}, s2, 2")
    e(f"s_add_u32 s{sTMP}, s{sTMP}, s{sW}")
    e(f"s_lshl_b32 s{sTMP}, s{sTMP}, 14")
    e(f"s_lshl_b32 s{sC}, s2, 17")
    for d, size in ((sQ, 16384), (sK, 131072), (sV, 131072), (sO, 16384)):
        e(f"s_mov_b32 s{d + 2}, {size}")
        e(f"s_mov_b32 s{d + 3}, 0x20000")
    for j in range(4):
        e(f"s_mov_b32 s{sOFF + j}, {j * 4096}")
    e("s_waitcnt lgkmcnt(0)", "wait")
    for d, p, o in ((sK, 6, sC), (sQ, 4, sTMP), (sV, 8, sC), (sO, 10, sTMP)):
        e(f"s_add_u32 s{d}, s{p}, s{o}")
        e(f"s_addc_u32 s{d + 1}, s{p + 1}, 0")
    stamp()
    E.label("L_start")
    di = 0

    def issue_dma_now():
        nonlocal di
        op = make_dma(dma_order[di])
        di += 1
        E.emit(op.pre)
        E.emit(op)

    nearly = 2 if a.k1early else 1
    for _ in range(nearly):
        issue_dma_now()
    qdma = []
    for x in range(4):
        for g in range(4):
            e(f"s_add_u32 m0, s{sQW}, {x * TILE + g * (GRAN - 1024)}", wr=["m0"])
            off = f" offset:{g * 1024}" if g else ""
            op = e(f"buffer_load_dwordx4 v{vT0}, s[{sQ}:{sQ + 3}], s{sOFF + x} offen{off} {ld} lds".replace("  ", " "),
                   "vmem", rd=["m0", f"v{vT0}"])
        qdma.append(op)
    for j in range(4, 32):
        e(f"s_mov_b32 s{sOFF + j}, {j * 4096}")
    while di < min(len(dma_order), a.ninit) and free_slots[dma_order[di][0]]:
        issue_dma_now()
    n_init = di

    e(f"s_mov_b32 s{sC}, {f32bits(math.log2(math.e) / math.sqrt(128.0)):#x}")
    e(f"s_mov_b32 s{sTHR}, {f32bits(2.0 ** 32):#x}")
    e(f"s_mov_b64 s[{sBAD}:{sBAD + 1}], 0")
    v("v_and_b32 v12, 3, v0", ["v12"])
    v("v_bfe_u32 v13, v0, 2, 2", ["v13"])
    v("v_lshrrev_b32 v14, 4, v0", ["v14"])
    v(f"v_mul_u32_u24 v{vK}, {GRAN}, v12", [f"v{vK}"], ["v12"])
    v(f"v_lshl_add_u32 v{vK}, v13, 8, v{vK}", [f"v{vK}"])
    v("v_and_b32 v15, 2, v13", ["v15"])
    v("v_xor_b32 v15, v15, v14", ["v15"])
    v(f"v_lshl_add_u32 v{vK}, v15, 4, v{vK}", [f"v{vK}"])
    v(f"v_mul_u32_u24 v{vV[0]}, {GRAN}, v13", [f"v{vV[0]}"])
    v(f"v_lshl_add_u32 v{vV[0]}, v14, 8, v{vV[0]}", [f"v{vV[0]}"])
    v(f"v_lshl_add_u32 v{vV[0]}, v12, 3, v{vV[0]}", [f"v{vV[0]}"])
    v("v_and_b32 v15, 1, v14", ["v15"])
    v(f"v_lshl_add_u32 v{vV[0]}, v15, 5, v{vV[0]}", [f"v{vV[0]}"])
    v(f"v_xor_b32 v{vV[1]}, 32, v{vV[0]}", [f"v{vV[1]}"])
    v(f"v_add_u32 v{vV[2]}, {vwin[1] * TILE}, v{vV[0]}", [f"v{vV[2]}"])
    v(f"v_add_u32 v{vV[3]}, {vwin[1] * TILE}, v{vV[1]}", [f"v{vV[3]}"])
    v(f"v_add_u32 v{vV[0]}, {vwin[0] * TILE}, v{vV[0]}", [f"v{vV[0]}"])
    v(f"v_add_u32 v{vV[1]}, {vwin[0] * TILE}, v{vV[1]}", [f"v{vV[1]}"])
    e(f"s_mul_i32 s{sTMP}, s{sW}, {4 * TILE}")
    v("v_and_b32 v12, 15, v0", ["v12"])
    v(f"v_mul_u32_u24 v{vOW}, 272, v12", [f"v{vOW}"])
    v(f"v_lshl_add_u32 v{vOW}, v14, 3, v{vOW}", [f"v{vOW}"])
    v(f"v_add_u32 v{vOW}, s{sTMP}, v{vOW}", [f"v{vOW}"])
    v("v_lshlrev_b32 v13, 2, v14", ["v13"])
    v("v_sub_u32 v12, v12, v13", ["v12"])
    v("v_and_b32 v12, 15, v12", ["v12"])
    v("v_lshlrev_b32 v12, 4, v12", ["v12"])
    v(f"v_lshl_add_u32 v{vOG}, v14, 8, v12", [f"v{vOG}"])
    v(f"v_mul_u32_u24 v{vOR}, {GRAN}, v14", [f"v{vOR}"])
    v(f"v_add3_u32 v{vOR}, v{vOR}, v12, s{sTMP}", [f"v{vOR}"])
    vQA = 12
    v(f"v_add_u32 v{vQA}, s{sQW}, v{vK}", [f"v{vQA}"])
    v("v_mov_b32 v13, 0x3f803f80", ["v13"])
    for i in range(4):
        v(f"v_accvgpr_write_b32 a{aONE + i}, v13", [f"a{aONE + i}"], ["v13"])
    for x in range(4):
        v(f"v_mov_b32 v{NM[x]}, 0xff800000", [f"v{NM[x]}"])
    for x in addx:
        v(f"v_mov_b32 v{Lreg[x]}, 0", [f"v{Lreg[x]}"])

    def kread(j, s):
        r = Freg["K", j, s]
        return Op(None, "ldsr", rd=[f"v{vK}"], wr=regs("a", r, 4), tag=("K", j, s))

    def vread(kap, b, tau):
        r = Freg["V", kap, b] + 2 * tau
        return Op(None, "ldsr", wr=regs("a", r, 2), tag=("V", kap, b, tau))

    def finalize_read(op):
        if op.text is not None:
            return
        if op.tag[0] == "K":
            _, j, s = op.tag
            off = slot_of["K", j] * TILE + 64 * s
            assert off < 65536
            op.text = f"ds_read_b128 {rr('a', Freg['K', j, s], 4)}, v{vK} offset:{off}"
        else:
            _, kap, b, tau = op.tag
            sl = slot_of["V", 2 * kap + tau]
            w = 0 if sl < vwin[1] else 1
            off = (sl - vwin[w]) * TILE + 64 * (b >> 1)
            assert off < 65536
            av = vV[2 * w + (b & 1)]
            op.rd = [f"v{av}"]
            op.text = f"ds_read_b64_tr_b16 {rr('a', Freg['V', kap, b] + 2 * tau, 2)}, v{av} offset:{off}"

    kr = {(j, s): kread(j, s) for j in range(32) for s in range(4)}
    vr = {(kap, b, t): vread(kap, b, t) for kap in range(16) for b in range(8) for t in range(2)}
    for (j, s), op in kr.items():
        tile_reads["K", j].append(op)
    for (kap, b, t), op in vr.items():
        tile_reads["V", 2 * kap + t].append(op)

    E.vm_wait([dma_op["K", j] for j in range(nearly)])
    e("s_barrier", "barrier")
    for j in range(nearly):
        for s in range(4):
            finalize_read(kr[j, s])
            E.emit(kr[j, s])

    QT = Pbases[0]
    assert len(Pbases) >= 6
    UT = QT + 16

    def q_prepare(x):
        E.vm_wait([qdma[x]])
        rds = [e(f"ds_read_b128 {rr('v', QT + 4 * s, 4)}, v{vQA} offset:{x * TILE + 64 * s}", "ldsr",
                 rd=[f"v{vQA}"], wr=regs("v", QT + 4 * s, 4)) for s in range(4)]
        for s in range(4):
            E.lds_wait([rds[s]])
            for i in range(4):
                src, t = QT + 4 * s + i, UT + 2 * i
                v(f"v_lshlrev_b32 v{t}, 16, v{src}", [f"v{t}"], [f"v{src}"])
                v(f"v_and_b32 v{t + 1}, 0xffff0000, v{src}", [f"v{t + 1}"], [f"v{src}"])
            for i in range(8):
                v(f"v_mul_f32 v{UT + i}, s{sC}, v{UT + i}", [f"v{UT + i}"], [f"v{UT + i}"])
            for i in range(4):
                v(f"v_cvt_pk_bf16_f32 v{UT + 2 * i}, v{UT + 2 * i}, v{UT + 2 * i + 1}", [f"v{UT + 2 * i}"],
                  [f"v{UT + 2 * i}", f"v{UT + 2 * i + 1}"])
            for i in range(4):
                v(f"v_accvgpr_write_b32 a{Qreg[x][s] + i}, v{UT + 2 * i}", [f"a{Qreg[x][s] + i}"], [f"v{UT + 2 * i}"])

    def first_max(x):
        S, n = Sreg[x % a.ns], NM[x]
        v(f"v_max3_f32 v{n}, v{S}, v{S + 1}, v{n}", [f"v{n}"], [f"v{S}", f"v{S + 1}", f"v{n}"])
        v(f"v_max3_f32 v{n}, v{S + 2}, v{S + 3}, v{n}", [f"v{n}"], [f"v{S + 2}", f"v{S + 3}", f"v{n}"])
        for sw in ("v_permlane32_swap_b32", "v_permlane16_swap_b32"):
            v(f"v_mov_b32 v{n + 1}, v{n}", [f"v{n + 1}"], [f"v{n}"])
            v(f"{sw} v{n + 1}, v{n}", [f"v{n}", f"v{n + 1}"], [f"v{n}", f"v{n + 1}"])
            v(f"v_max_f32 v{n}, v{n}, v{n + 1}", [f"v{n}"], [f"v{n}", f"v{n + 1}"])
        for i in range(4):
            v(f"v_sub_f32 v{S + i}, v{S + i}, v{n}", [f"v{S + i}"], [f"v{S + i}", f"v{n}"])
        for i in (1, 2, 3, 0):
            v(f"v_mul_f32 v{n + i}, -1.0, v{n}", [f"v{n + i}"], [f"v{n}"])

    for x in range(4):
        q_prepare(x)
    stamp()
    e(f"s_cmp_lg_u32 s{sMODE}, 0")
    e("s_cbranch_scc1 L_maxpass")
    E.label("L_maxdone")
    E.lds_wait([kr[0, s] for s in range(4)])
    for i in range(4 * NPRO):
        E.emit(mf[i])
    for x in range(4):
        first_max(x)

    F = []
    sm_last = {}
    exps = {}
    for u, (j, x) in enumerate(qk_units):
        S = Sreg[u % a.ns]
        prod = mf[last_use["S", j, x]]
        sdead = first_use["S", (u + a.ns) // 4, (u + a.ns) % 4] - 1 if u + a.ns < 128 else 10 ** 9
        kap = j // 2
        pdead = min(sdead, first_use["P", kap, x] - 2)
        ex = []
        for i in range(4):
            op = Op(f"v_exp_f32 v{S + i}, v{S + i}", "trans", rd=[f"v{S + i}"], wr=[f"v{S + i}"],
                    deps=[(prod, 8)], early=last_use["S", j, x], dead=pdead)
            op.prio = (pdead - 4 + i, u, 3 * i)
            ex.append(op)
            F.append(op)
            if x in addx:
                ad = Op(f"v_add_f32 v{Lreg[x]}, v{Lreg[x]}, v{S + i}", "valu", rd=[f"v{S + i}", f"v{Lreg[x]}"],
                        wr=[f"v{Lreg[x]}"], deps=[(op, 1)], dead=min(sdead, pdead + 8))
                ad.prio = (pdead - 4 + i, u, 3 * i + 2)
                F.append(ad)
                sm_last[x] = ad
            if i % 2:
                P = Preg[kap, x] + 2 * (j % 2) + i // 2
                cv = Op(f"v_cvt_pk_bf16_f32 v{P}, v{S + i - 1}, v{S + i}", "valu",
                        rd=[f"v{S + i - 1}", f"v{S + i}"], wr=[f"v{P}"], deps=[(ex[i - 1], 1), (op, 1)],
                        early=Pfree[kap, x], dead=pdead)
                assert Pfree[kap, x] <= pdead, ("P pool too small", kap, x)
                cv.prio = (pdead - 4 + i, u, 3 * i + 1)
                F.append(cv)
        exps[j, x] = ex
    for (j, s), op in kr.items():
        fu = first_use["K", j, s]
        mf[fu].needs.append(op)
        if op.idx is None:
            op.early = max(Ffree["K", j, s], pub["K", j])
            op.dead = max(fu - a.lat, op.early)
            op.prio = (op.dead - a.rdbias, -1, fu)
            F.append(op)
    for (kap, b, t), op in vr.items():
        fu = first_use["V", kap, b]
        mf[fu].needs.append(op)
        op.early = max(Ffree["V", kap, b], pub["V", 2 * kap + t])
        op.dead = max(fu - a.lat, op.early)
        op.prio = (op.dead - a.rdbias, -1, fu)
        F.append(op)

    tbase = Sreg + NM
    tfree = {b: None for b in tbase}
    tdead = max(last_use["S", 31, x] for x in range(4))
    allsm = [o for o in F if o.cls in ("trans", "valu")]
    lastsm = allsm[-40:]
    tq = list(tbase)
    epi_order = [int(c) for c in a.final if c.isdigit()]
    stores = []

    def ttake():
        b = tq.pop(0)
        tq.append(b)
        return b

    BIG = 10 ** 8
    seqn = [0]

    def epi(op, base, nreg4=()):
        seqn[0] += 1
        op.prio = (BIG, seqn[0], 0)
        F.append(op)
        return op

    for x in epi_order:
        rl = vRL[x]
        L = Lreg[x]
        if x in ones_x:
            src = [(mf[last_use["L", x]], 8)]
            ear = last_use["L", x]
        else:
            prev = sm_last[x]
            ear = -1
            for sw in ("v_permlane32_swap_b32", "v_permlane16_swap_b32"):
                m1 = epi(Op(f"v_mov_b32 v{rl}, v{L}", "valu", rd=[f"v{L}"], wr=[f"v{rl}"],
                            deps=[(prev, 0)] + [(o, 0) for o in lastsm if f"v{L}" in o.wr]), None)
                m2 = epi(Op(f"{sw} v{rl}, v{L}", "valu", rd=[f"v{L}", f"v{rl}"], wr=[f"v{L}", f"v{rl}"],
                            deps=[(m1, 2)]), None)
                prev = epi(Op(f"v_add_f32 v{L}, v{L}, v{rl}", "valu", rd=[f"v{L}", f"v{rl}"], wr=[f"v{L}"],
                              deps=[(m2, 0)]), None)
            src = [(prev, 0)]
        rc = epi(Op(f"v_rcp_f32 v{rl}, v{L}", "trans", rd=[f"v{L}"], wr=[f"v{rl}"], deps=src, early=ear), None)
        cm = epi(Op(f"v_cmp_nge_f32 vcc, s{sTHR}, v{L}", "valu", rd=[f"v{L}"], wr=["vcc"],
                    deps=src + ([(stores[-1][1], 0)] if stores else []), early=ear), None)
        orr = epi(Op(f"s_or_b64 s[{sBAD}:{sBAD + 1}], s[{sBAD}:{sBAD + 1}], vcc", "salu", rd=["vcc"],
                     deps=[(cm, 2)]), None)
        p, ob = Oreg[x]
        wrs = []
        for b in range(8):
            prod = mf[last_use["O", x, b]]
            o = ob + 4 * b
            if p == "a":
                t = ttake()
                dep0 = [(d, 0) for d in (tfree[t] or lastsm)]
                rds = [epi(Op(f"v_accvgpr_read_b32 v{t + i}, a{o + i}", "valu", rd=[f"a{o + i}"], wr=[f"v{t + i}"],
                              deps=[(prod, 8)] + dep0, early=max(last_use["O", x, b], tdead + 1)), None)
                       for i in range(4)]
                src4 = [[(rds[i], 0)] for i in range(4)]
            else:
                t = o
                src4 = [[(prod, 8)] for i in range(4)]
            mu = [epi(Op(f"v_mul_f32 v{t + i}, v{rl}, v{t + i}", "valu", rd=[f"v{rl}", f"v{t + i}"], wr=[f"v{t + i}"],
                         deps=src4[i] + [(rc, 1)], early=last_use["O", x, b]), None) for i in range(4)]
            c0 = epi(Op(f"v_cvt_pk_bf16_f32 v{t}, v{t}, v{t + 1}", "valu", rd=[f"v{t}", f"v{t + 1}"], wr=[f"v{t}"],
                        deps=[(mu[0], 0), (mu[1], 0)]), None)
            c1 = epi(Op(f"v_cvt_pk_bf16_f32 v{t + 1}, v{t + 2}, v{t + 3}", "valu", rd=[f"v{t + 2}", f"v{t + 3}"],
                        wr=[f"v{t + 1}"], deps=[(mu[2], 0), (mu[3], 0), (c0, 0)]), None)
            w = epi(Op(f"ds_write_b64 v{vOW}, {rr('v', t, 2)} offset:{x * TILE + 32 * b}", "ldsw",
                       rd=[f"v{vOW}", f"v{t}", f"v{t + 1}"], deps=[(c0, 0), (c1, 0)], early=obar), None)
            wrs.append(w)
            if p == "a":
                tfree[t] = [w]
        rds = []
        for i in range(4):
            if p == "a":
                t, pp = ob + 4 * i, "a"
            else:
                t, pp = ob + 4 * i, "v"
            r = epi(Op(f"ds_read_b128 {rr(pp, t, 4)}, v{vOR} offset:{x * TILE + 272 * i}", "ldsr", rd=[f"v{vOR}"],
                       wr=regs(pp, t, 4), deps=[(w, 0) for w in wrs]), None)
            rds.append((r, pp, t))
        for i, (r, pp, t) in enumerate(rds):
            off = f" offset:{i * 1024}" if i else ""
            s_ = epi(Op(f"buffer_store_dwordx4 {rr(pp, t, 4)}, v{vOG}, s[{sO}:{sO + 3}], s{sOFF + x} offen{off} {st}".rstrip(),
                        "vmem", rd=regs(pp, t, 4) + [f"v{vOG}"], deps=[(r, a.stdist)], needs=[r]), None)
        stores.append((x, orr))

    pending = sorted(F, key=lambda o: o.prio)
    overflow = [0]

    def ready(op, strict=True):
        if op.early > E.gap:
            return False
        for d, dist in op.deps:
            if d.idx is None:
                return False
            if strict and len(E.out) - d.idx - 1 < dist:
                return False
        return True

    def put(op):
        if op.cls == "ldsr":
            finalize_read(op)
        if op.needs:
            E.lds_wait(op.needs)
        E.emit(op)
        pending.remove(op)

    def force(op):
        assert op.early <= E.gap, ("cannot meet deadline", op.text, op.tag, op.early, E.gap)
        for d, _ in op.deps:
            if d.idx is None:
                assert d.cls != "mfma", ("deadline before producer", op.text)
                force(d)
        put(op)

    def do_barrier(g):
        need = [t for t in pub if pub[t] == g]
        for t in need:
            assert t in dma_op and dma_op[t].idx is not None, ("tile not issued before its barrier", t, g)
        E.vm_wait([dma_op[t] for t in need])
        if g == obar:
            E.lds_wait([o for j in range(32) for o in tile_reads["K", j]])
        e("s_barrier", "barrier")
        if g == G0:
            for s in range(q0, q0 + 16):
                free_slots["K" if s < NK else "V"].append(s)
        for t, rs in tile_reads.items():
            if t not in released and t in slot_of and all(r.idx is not None and r.ldsn < E.lds_done for r in rs):
                released.add(t)
                free_slots[t[0]].append(slot_of[t])

    next_dma_gap = G0
    staged = None
    for g in range(G0, NMF):
        E.gap = g
        if g > G0:
            E.emit(mf[g])
        shadow = True
        if g in bars:
            do_barrier(g)
            shadow = False
        if a.stamps and g in [first_use["S", gs, 0] for gs in (8, 16, 24)] + [tdead]:
            stamp()
        if g + 1 < NMF and mf[g + 1].needs and all(n.idx is not None for n in mf[g + 1].needs):
            if E.lds_wait(mf[g + 1].needs, a.lat):
                shadow = False
        budget = 8
        if staged is not None:
            E.emit(staged)
            staged = None
            budget -= a.dmacost
        elif shadow and di < len(dma_order) and g >= next_dma_gap and free_slots[dma_order[di][0]]:
            staged = make_dma(dma_order[di])
            di += 1
            E.emit(staged.pre)
            next_dma_gap = g + a.dmaper
        while budget > 0:
            cand = [o for o in pending[:400] if ready(o)]
            if not cand:
                break
            pick = None
            for o in cand:
                if COST[o.cls] <= budget:
                    pick = o
                    break
            if pick is None:
                break
            if pick.cls != "trans" and budget == 8:
                tr = [o for o in cand if o.cls == "trans"]
                others = [o for o in cand if o.cls != "trans"]
                if tr and len(others) < 2:
                    pick = tr[0]
            put(pick)
            budget -= COST[pick.cls]
        late = [o for o in pending if o.dead <= g]
        for o in late:
            if o.idx is None:
                n0 = len(E.out)
                force(o)
                overflow[0] += sum(COST.get(x.cls, 4) for x in E.out[n0:])
        if g + 1 < NMF and mf[g + 1].needs:
            E.lds_wait(mf[g + 1].needs)
    assert staged is None and di == len(dma_order)
    stamp()
    ntail = len(pending)
    while pending:
        cand = [o for o in pending if ready(o)] or [o for o in pending if ready(o, False)]
        put(cand[0])
    stamp()

    e(f"s_cmp_lg_u64 s[{sBAD}:{sBAD + 1}], 0")
    e(f"s_cselect_b32 s{sTMP}, 1, 0")
    e(f"s_lshl_b32 s{sC}, s{sW}, 2")
    e(f"s_add_u32 s{sC}, s{sC}, {FLAG_OFF}")
    v(f"v_mov_b32 v12, s{sC}", ["v12"])
    v(f"v_mov_b32 v13, s{sTMP}", ["v13"])
    v(f"v_mov_b32 v14, {FLAG_OFF}", ["v14"])
    e("ds_write_b32 v12, v13", "ldsw", rd=["v12", "v13"])
    E.lds_drain()
    e("s_barrier", "barrier")
    e("ds_read_b128 v[16:19], v14", "ldsr", rd=["v14"], wr=regs("v", 16, 4))
    E.lds_drain()
    v("v_or3_b32 v16, v16, v17, v18", ["v16"], regs("v", 16, 3))
    v("v_or_b32 v16, v16, v19", ["v16"], ["v16", "v19"])
    v(f"v_readfirstlane_b32 s{sTMP}, v16", [f"s{sTMP}"], ["v16"])
    e(f"s_andn2_b32 s{sTMP}, s{sTMP}, s{sMODE}", rd=[f"s{sTMP}"])
    e("s_cbranch_scc1 L_rerun")
    if a.stamps:
        e("s_waitcnt vmcnt(0)", "wait")
        stamp()
        e(f"s_mov_b32 s{sWS + 2}, 1048576")
        e(f"s_mov_b32 s{sWS + 3}, 0x20000")
        e(f"s_lshl_b32 s{sTMP}, s2, 2")
        e(f"s_add_u32 s{sTMP}, s{sTMP}, s{sW}")
        e(f"s_mul_i32 s{sTMP}, s{sTMP}, {8 * nstamp[0]}")
        v("v_mov_b32 v12, 0", ["v12"])
        for i in range(nstamp[0]):
            v(f"v_mov_b32 v14, s{sST + 2 * i}", ["v14"])
            v(f"v_mov_b32 v15, s{sST + 2 * i + 1}", ["v15"])
            e(f"buffer_store_dwordx2 v[14:15], v12, s[{sWS}:{sWS + 3}], s{sTMP} offen offset:{8 * i}", "vmem",
              rd=["v14", "v15", "v12"])
            e("s_nop 1", "nop")
    if a.spin:
        e("s_waitcnt vmcnt(0)", "wait")
        E.label("L_spin")
        e("s_memrealtime s[98:99]", "smem")
        e("s_waitcnt lgkmcnt(0)", "wait")
        e("s_sub_u32 s98, s98, s96")
        e(f"s_cmp_lt_u32 s98, {a.spin * 100}")
        e("s_cbranch_scc1 L_spin")
    E.label("L_end")
    e("s_endpgm", "end")

    E.label("L_rerun")
    e(f"s_mov_b32 s{sMODE}, 1")
    e("s_waitcnt vmcnt(0) lgkmcnt(0)", "wait")
    e("s_barrier", "barrier")
    e("s_branch L_start")

    E.label("L_maxpass")
    KT = QT
    v("v_and_b32 v13, 15, v0", ["v13"])
    v("v_lshrrev_b32 v14, 4, v0", ["v14"])
    v("v_lshlrev_b32 v13, 8, v13", ["v13"])
    v("v_lshl_add_u32 v13, v14, 4, v13", ["v13"])
    e(f"s_mov_b32 s{sTMP}, 0")
    E.label("L_maxloop")
    for s in range(4):
        e(f"buffer_load_dwordx4 {rr('v', KT + 4 * s, 4)}, v13, s[{sK}:{sK + 3}], s{sTMP} offen offset:{64 * s}",
          "vmem", rd=["v13"], wr=regs("v", KT + 4 * s, 4))
    e("s_waitcnt vmcnt(0)", "wait")
    for x in range(4):
        S = Sreg[x]
        for s in range(4):
            C, cr = ("0", []) if s == 0 else (rr("v", S, 4), regs("v", S, 4))
            E.emit(Op(f"v_mfma_f32_16x16x32_bf16 {rr('v', S, 4)}, {rr('v', KT + 4 * s, 4)}, {rr('a', Qreg[x][s], 4)}, {C}",
                      "mfma", rd=regs("v", KT + 4 * s, 4) + regs("a", Qreg[x][s], 4) + cr, wr=regs("v", S, 4), srcc=cr))
    e("s_nop 7", "nop")
    for x in range(4):
        S, n = Sreg[x], NM[x]
        v(f"v_max3_f32 v{n}, v{S}, v{S + 1}, v{n}", [f"v{n}"], [f"v{S}", f"v{S + 1}", f"v{n}"])
        v(f"v_max3_f32 v{n}, v{S + 2}, v{S + 3}, v{n}", [f"v{n}"], [f"v{S + 2}", f"v{S + 3}", f"v{n}"])
    e(f"s_add_u32 s{sTMP}, s{sTMP}, 4096")
    e(f"s_cmp_lt_u32 s{sTMP}, 131072")
    e("s_cbranch_scc1 L_maxloop")
    e("s_nop 3", "nop")
    e("s_branch L_maxdone")

    ops, nnop = fix_hazards(E.out)
    info = dict(mfma=NMF, instrs=len(ops), nops=nnop, overflow=overflow[0], tail=ntail, n_init=n_init,
                bars=len(bars), pslots=len(Pbases), fslots=len(Fbases), stamps=nstamp[0])
    head = [
        "; GQA attention forward, B=32 Hq=32 Hkv=8 Sq=64 Sk=512 D=128, bf16 in / bf16 out (generated schedule).",
        "; kernarg: q @0, k @8, v @16, out @24, debug @32, ws @40",
        "; One workgroup per (batch, kv head); wave w handles q head 4*hkv+w.",
        "; Softmax shift: row max of the first 16 keys; a final check on the row sums reruns the",
        "; workgroup with the true row max (L_rerun / L_maxpass) whenever that shift is unsafe.",
        f"; @launch grid=(256,1,1) block=(256,1,1) lds={LDS_BYTES}",
        '.amdgcn_target "amdgcn-amd-amdhsa--gfx950"', ".text", f".globl {KNAME}", ".p2align 8",
        f".type {KNAME},@function", f"{KNAME}:"]
    body = [(o.text if o.cls == "label" else "    " + o.text) for o in ops]
    tail = ['.section .rodata,"a"', ".p2align 6", f".amdhsa_kernel {KNAME}",
            "  .amdhsa_next_free_vgpr 512", "  .amdhsa_next_free_sgpr 102", "  .amdhsa_accum_offset 256",
            "  .amdhsa_group_segment_fixed_size 0", "  .amdhsa_kernarg_size 48", "  .amdhsa_user_sgpr_count 2",
            "  .amdhsa_user_sgpr_kernarg_segment_ptr 1", "  .amdhsa_system_sgpr_workgroup_id_x 1",
            ".end_amdhsa_kernel"]
    return "\n".join(head + body + tail) + "\n", info


def parser():
    ap = argparse.ArgumentParser()
    ap.add_argument("out")
    ap.add_argument("--groups", default="2,2,4,4,4,4,4,8")
    ap.add_argument("--final", default="0,1,2,3")
    ap.add_argument("--ones", default="0123")
    ap.add_argument("--oacc", default="01")
    ap.add_argument("--ld", default="nt")
    ap.add_argument("--st", default="nt")
    ap.add_argument("--ns", type=int, default=5)
    ap.add_argument("--lag", type=int, default=3)
    ap.add_argument("--lat", type=int, default=6)
    ap.add_argument("--win", type=int, default=24)
    ap.add_argument("--barper", type=int, default=64)
    ap.add_argument("--dmaper", type=int, default=8)
    ap.add_argument("--dmacost", type=int, default=4)
    ap.add_argument("--rdbias", type=int, default=8)
    ap.add_argument("--stdist", type=int, default=12)
    ap.add_argument("--nk", type=int, default=16)
    ap.add_argument("--q0", type=int, default=11)
    ap.add_argument("--ninit", type=int, default=64)
    ap.add_argument("--k1early", type=int, default=1)
    ap.add_argument("--obar", type=int, default=-1)
    ap.add_argument("--stamps", type=int, default=0)
    ap.add_argument("--spin", type=int, default=0)
    return ap


if __name__ == "__main__":
    a = parser().parse_args()
    txt, info = build(a)
    open(a.out, "w").write(txt)
    print(a.out, info)
```

```python
import argparse, math, re, struct, sys

KNAME = "standalone__gqa_softmax__near_ridge_kernel"
TILE = 4352
GRAN = 1088
NSLOT = 36
LDS_BYTES = 163840
FLAG_OFF = NSLOT * TILE


def f32bits(x):
    return struct.unpack("<I", struct.pack("<f", x))[0]


def regs(p, lo, n):
    return [f"{p}{lo + i}" for i in range(n)]


def rr(p, lo, n):
    return f"{p}[{lo}:{lo + n - 1}]" if n > 1 else f"{p}{lo}"


class Op:
    __slots__ = ("text", "cls", "rd", "wr", "deps", "early", "dead", "prio", "needs", "idx", "gap",
                 "ldsn", "pre", "vmn", "tag", "srcc", "st")

    def __init__(self, text, cls, rd=(), wr=(), deps=(), early=-1, dead=10 ** 9, needs=(), pre=None, tag=None,
                 srcc=()):
        self.text, self.cls = text, cls
        self.rd, self.wr = list(rd), list(wr)
        self.deps = list(deps)
        self.early, self.dead = early, dead
        self.needs = list(needs)
        self.idx = None
        self.gap = None
        self.ldsn = None
        self.vmn = None
        self.pre = pre
        self.tag = tag
        self.prio = 0
        self.srcc = list(srcc)


COST = dict(trans=8, valu=4, ldsr=4, ldsw=12, vmem=20, salu=4)


class Emitter:
    def __init__(self):
        self.out = []
        self.nlds = 0
        self.lds_done = 0
        self.lds_gap = []
        self.nvm = 0
        self.vm_done = 0
        self.gap = -1
        self.nst = 0

    def emit(self, op):
        self.nst += states(op)
        op.st = self.nst
        op.idx = len(self.out)
        op.gap = self.gap
        if op.cls in ("ldsr", "ldsw"):
            op.ldsn = self.nlds
            self.nlds += 1
            self.lds_gap.append(self.gap)
        if op.cls == "vmem":
            op.vmn = self.nvm
            self.nvm += 1
        self.out.append(op)
        return op

    def raw(self, text, cls="salu", **kw):
        return self.emit(Op(text, cls, **kw))

    def label(self, name):
        self.out.append(Op(name + ":", "label"))

    def lds_wait(self, needs, lat=None):
        need = max((n.ldsn for n in needs), default=-1) + 1
        if need <= self.lds_done:
            return False
        if lat is not None:
            k = need
            while k < self.nlds and self.lds_gap[k] <= self.gap - lat:
                k += 1
            need = k
        n = min(self.nlds - need, 15)
        self.raw(f"s_waitcnt lgkmcnt({n})", "wait")
        self.lds_done = self.nlds - n
        return True

    def lds_drain(self):
        self.raw("s_waitcnt lgkmcnt(0)", "wait")
        self.lds_done = self.nlds

    def vm_wait(self, ops):
        need = max((o.vmn for o in ops), default=-1) + 1
        if need <= self.vm_done:
            return False
        n = min(self.nvm - need, 63)
        self.raw(f"s_waitcnt vmcnt({n})", "wait")
        self.vm_done = self.nvm - n
        return True


def states(op):
    if op.cls == "label":
        return 0
    m = re.match(r"s_nop (\d+)", op.text)
    return int(m.group(1)) + 1 if m else 1


def fix_hazards(ops):
    out = []
    added = 0
    for op in ops:
        if op.cls == "label":
            out.append(op)
            continue
        need = 0
        dist = 0
        rd, wr = set(op.rd), set(op.wr)
        isv = op.cls in ("valu", "trans")
        for p in reversed(out):
            if dist >= 12:
                break
            pw = set(p.wr)
            req = 0
            if p.cls == "mfma":
                if op.cls == "mfma":
                    ab = rd - set(op.srcc)
                    if pw & ab:
                        req = 8
                    if pw & set(op.srcc) and set(op.srcc) != pw:
                        req = max(req, 6)
                    if pw & wr and set(op.srcc) != pw:
                        req = max(req, 6)
                else:
                    if pw & (rd | wr):
                        req = 8
                    if isv and set(p.srcc) & wr:
                        req = max(req, 3)
            elif p.cls in ("valu", "trans"):
                if op.cls == "mfma" and pw & rd:
                    req = 2
                if p.cls == "trans" and op.cls != "trans" and pw & rd:
                    req = max(req, 1)
                if "permlane" in op.text and pw & rd:
                    req = max(req, 2)
                if ("readfirstlane" in op.text or "readlane" in op.text) and pw & rd:
                    req = max(req, 1)
                sw = {r for r in pw if r[0] == "s" or r == "vcc"}
                if sw & rd:
                    req = max(req, 5 if op.cls == "vmem" else 2)
            elif p.cls == "salu":
                if "m0" in pw and op.cls == "vmem" and "m0" in rd:
                    req = 1
            elif p.cls == "vmem":
                if "store" in p.text and set(p.rd) & wr and op.cls != "salu":
                    req = 2
            need = max(need, req - dist)
            dist += states(p)
        if need > 0:
            out.append(Op(f"s_nop {need - 1}", "nop"))
            added += 1
        out.append(op)
    return out, added


def isize(op):
    t = op.text
    if op.cls == "label":
        return 0
    mn = t.split()[0]
    if op.cls in ("mfma", "ldsr", "ldsw", "vmem", "smem"):
        return 8
    if mn in ("s_movk_i32", "s_nop", "s_waitcnt", "s_barrier", "s_branch", "s_endpgm") or mn.startswith("s_cbranch"):
        return 4
    if mn.startswith(("v_cvt_pk", "v_max3", "v_accvgpr", "v_pk_", "v_lshl_add", "v_add3", "v_bfe", "v_or3", "v_mbcnt",
                      "v_fma")):
        return 8
    for arg in [x.strip() for x in t[len(mn):].split(",")]:
        if re.fullmatch(r"-?(0x[0-9a-f]+|\d+)", arg) and not -16 <= int(arg, 0) <= 64:
            return 8
        if arg.startswith("L_"):
            return 8
    return 4


def insert_pads(ops):
    i0 = next(i for i, o in enumerate(ops) if o.text == "L_main:")
    i1 = next(i for i, o in enumerate(ops) if o.text == "L_end:")
    out, addr, page, pads = ops[:i0], 0, 1, []
    for i in range(i0, len(ops)):
        o = ops[i]
        if i <= i1 and addr >= 4096 * page:
            good = out[-1].cls == "mfma" and o.cls not in ("salu", "wait", "barrier", "nop")
            if good or addr + isize(o) > 4096 * page + 56:
                lab = Op(f"L_pad{len(pads)}:", "label")
                br = Op("", "salu")
                pads.append(br)
                out += [lab, br]
                addr += 4
                page += 1
        out.append(o)
        addr += isize(o)
    assert len(pads) >= 4
    for k, br in enumerate(pads):
        br.text = f"s_cbranch_execz L_pad{k + 4}" if k + 4 < len(pads) else "s_cbranch_execz L_main"
    return out


class Pool:
    def __init__(self, prefix, bases):
        self.prefix = prefix
        self.rel = {b: -1 for b in bases}

    def add(self, base, release):
        self.rel[base] = release

    def take(self, release):
        b = min(self.rel, key=lambda k: (self.rel[k], k))
        prev = self.rel[b]
        self.rel[b] = release
        return b, prev


def build(a):
    groups = [int(x) for x in a.groups.split(",")]
    assert sum(groups) == 32 and all(g % 2 == 0 for g in groups)
    G = len(groups)
    gstart = [sum(groups[:g]) for g in range(G + 1)]
    ones_x = [int(c) for c in a.ones if c.isdigit()]
    oacc_x = [int(c) for c in a.oacc if c.isdigit()]
    ld, st = a.ld, a.st
    E = Emitter()
    e = E.raw

    vK, vV = 1, [2, 3, 4, 5]
    vDK, vDV = (6, 7), (11, 0)
    vOW, vOR, vOG = 8, 9, 10
    vRL = [12, 13, 14, 15]
    NM = [16 + 4 * x for x in range(4)]
    vnext = 32
    Lreg = {}
    for x in range(4):
        if x in ones_x:
            Lreg[x] = vnext
            vnext += 4
    addx = [x for x in range(4) if x not in ones_x]
    if addx:
        for i, x in enumerate(addx):
            Lreg[x] = vnext + i
        vnext += 4
    Sreg = [vnext + 4 * i for i in range(a.ns)]
    vnext += 4 * a.ns
    vtop = 256
    anext = 0
    Oreg = {}
    for x in range(4):
        if x in oacc_x:
            Oreg[x] = ("a", anext)
            anext += 32
        else:
            vtop -= 32
            Oreg[x] = ("v", vtop)
    Pbases = list(range(vnext, vtop, 4))
    Qreg = [[anext + 16 * x + 4 * s for s in range(4)] for x in range(4)]
    anext += 64
    aONE = anext
    anext += 4
    Fbases = list(range(anext, 256, 4))

    sQ, sK, sV, sO = 12, 16, 20, 24
    sW, sWG, sMODE, sC, sTHR, sBAD, sQW, sTMP = 3, 28, 29, 30, 31, 32, 34, 35
    sWS = 36
    sST = 40
    sOFF = 64
    sX = 80
    sQO = 84

    NK = a.nk
    q0 = a.q0
    vwin = [NK, NK + 16]

    qk_units = [(j, x) for x in range(4) for j in range(2)] + [(j, x) for j in range(2, 32) for x in range(4)]
    uidx = {u: i for i, u in enumerate(qk_units)}
    pv_units = []
    for g in range(G):
        u = []
        last = g == G - 1
        if not last:
            blocks = list(range(8))
            u += [("sum", g, None, x) for x in ones_x]
            u += [("pv", g, b, x) for b in blocks for x in range(4)]
        else:
            for xs in [[int(c) for c in part] for part in a.final.split(",")]:
                u += [("sum", g, None, x) for x in xs if x in ones_x]
                u += [("pv", g, b, x) for b in range(8) for x in xs]
        pv_units.append(u)
    seq = []
    pvq = []
    for g in range(G):
        lo = 4 * gstart[g + 1] + a.lag
        hi = 4 * gstart[min(g + 2, G)] + a.lag
        n = len(pv_units[g])
        for i, u in enumerate(pv_units[g]):
            pos = lo + (hi - lo) * i / n if g < G - 1 else 10 ** 6
            pvq.append((pos, u))
    pi = 0
    for ui, (j, x) in enumerate(qk_units):
        while pi < len(pvq) and pvq[pi][0] < ui:
            seq.append(pvq[pi][1])
            pi += 1
        seq.append(("qk", j, x))
    seq += [u for _, u in pvq[pi:]]

    NPRO = 6
    M = []
    for u in seq:
        if u[0] == "qk":
            M += [("qk", u[1], u[2], s) for s in range(4)]
        else:
            M += [(u[0], u[1], u[2], u[3], k) for k in range(groups[u[1]] // 2)]
    NMF = len(M)
    first_use, last_use = {}, {}

    def use(key, i):
        first_use.setdefault(key, i)
        last_use[key] = i

    for i, m in enumerate(M):
        if m[0] == "qk":
            _, j, x, s = m
            use(("K", j, s), i)
            use(("S", j, x), i)
            use(("Q", x, s), i)
        else:
            kind, g, b, x, k = m
            kap = gstart[g] // 2 + k
            use(("P", kap, x), i)
            if kind == "pv":
                use(("V", kap, b), i)
                use(("O", x, b), i)
            else:
                use(("L", x), i)

    ppool = Pool("v", Pbases)
    Preg, Pfree = {}, {}
    for kap in range(16):
        for x in range(4):
            Preg[kap, x], Pfree[kap, x] = ppool.take(last_use["P", kap, x])
    fpool = Pool("a", Fbases)
    for x in range(4):
        for s in range(4):
            fpool.add(Qreg[x][s], last_use["Q", x, s])
    frags = sorted([k for k in first_use if k[0] in "KV"], key=lambda k: first_use[k])
    Freg, Ffree = {}, {}
    for k in frags:
        Freg[k], Ffree[k] = fpool.take(last_use[k])
        assert Ffree[k] < first_use[k] - a.lat or Ffree[k] < 0, ("frag pool too small", k)

    mf = []
    started = set()
    for i, m in enumerate(M):
        if m[0] == "qk":
            _, j, x, s = m
            S = Sreg[uidx[j, x] % a.ns]
            A, B = Freg["K", j, s], Qreg[x][s]
            if s == 0:
                C, cr = ("0", []) if j < 2 else (rr("v", NM[x], 4), regs("v", NM[x], 4))
            else:
                C, cr = rr("v", S, 4), regs("v", S, 4)
            mf.append(Op(f"v_mfma_f32_16x16x32_bf16 {rr('v', S, 4)}, {rr('a', A, 4)}, {rr('a', B, 4)}, {C}", "mfma",
                         rd=regs("a", A, 4) + regs("a", B, 4) + cr, wr=regs("v", S, 4), srcc=cr))
        else:
            kind, g, b, x, k = m
            kap = gstart[g] // 2 + k
            if kind == "pv":
                p, o = Oreg[x][0], Oreg[x][1] + 4 * b
                A = Freg["V", kap, b]
                key = ("O", x, b)
            else:
                p, o, A, key = "v", Lreg[x], aONE, ("L", x)
            B = Preg[kap, x]
            C, cr = (rr(p, o, 4), regs(p, o, 4)) if key in started else ("0", [])
            started.add(key)
            mf.append(Op(f"v_mfma_f32_16x16x32_bf16 {rr(p, o, 4)}, {rr('a', A, 4)}, {rr('v', B, 4)}, {C}", "mfma",
                         rd=regs("a", A, 4) + regs("v", B, 4) + cr, wr=regs(p, o, 4), srcc=cr))

    tile_first = {}
    for d in range(16):
        tile_first["K", d] = first_use["K", 2 * d, 0]
        tile_first["V", d] = min(first_use["V", d, b] for b in range(8))
    G0 = 4 * NPRO - 1
    bars = [G0]
    per = [int(x) for x in a.barper.split(",")]
    while bars[-1] + per[0] < max(tile_first.values()) - a.lat - 4:
        bars.append(bars[-1] + per[0])
        if len(per) > 1:
            per.pop(0)
    pub = {}
    for t, fu in tile_first.items():
        c = [b for b in bars if b <= fu - (a.win if fu > a.wincut else a.win0)]
        pub[t] = c[-1] if c else G0
    pub["K", 0] = -1
    bars = sorted(set(pub.values()) - {-1} | {G0})
    lastk = max(last_use["K", j, s] for j in range(32) for s in range(4))
    obar = (lastk + 2) if a.obar < 0 else a.obar
    if obar not in bars:
        bars = sorted(bars + [obar])
    dma_order = sorted(tile_first, key=lambda t: (pub[t], tile_first[t], t[1]))
    free_slots = {"K": [s for s in range(0, NK, 2) if not q0 <= s < q0 + 16],
                  "V": [s for s in range(NK, NSLOT, 2) if not q0 <= s < q0 + 16]}
    slot_of, dma_op = {}, {}
    tile_reads = {t: [] for t in tile_first}
    released = set()

    def dma_pair(srd, vo, soff):
        return [Op(f"buffer_load_dwordx4 v{vo[i]}, s[{srd}:{srd + 3}], s{soff} offen{' offset:%d' % GRAN if i else ''} {ld} lds"
                   .replace("  ", " "), "vmem", rd=["m0", f"v{vo[i]}"]) for i in range(2)]

    def make_dma(t):
        sl = free_slots[t[0]].pop(0)
        slot_of[t] = sl
        srd, vo = (sK, vDK) if t[0] == "K" else (sV, vDV)
        pre = Op(f"s_add_u32 m0, s{sWG}, {sl * TILE}", "salu", wr=["m0"])
        ops = dma_pair(srd, vo, sOFF + t[1])
        dma_op[t] = ops[1]
        return pre, ops

    nstamp = [0]
    stampreg = list(range(40, 64, 2)) + [100]

    def stamp():
        if a.stamps:
            r = stampreg[nstamp[0]]
            nstamp[0] += 1
            e(f"{'s_memrealtime' if a.stamps == 1 else 's_memtime'} s[{r}:{r + 1}]", "smem")

    def v(text, wr, rd=(), cls="valu"):
        return e(text, cls, rd=list(rd), wr=list(wr))

    e("s_cmp_ge_u32 s2, 256")
    e("s_cbranch_scc1 L_end")
    if a.spin:
        e("s_memrealtime s[60:61]", "smem")
    e("s_load_dwordx8 s[4:11], s[0:1], 0", "smem")
    if a.stamps:
        e(f"s_load_dwordx2 s[{sWS}:{sWS + 1}], s[0:1], 40", "smem")
    if a.pfcode:
        e("s_getpc_b64 s[96:97]")
        E.label("L_pc")
        if a.pads:
            e("s_add_u32 s96, s96, L_main-L_pc")
            e("s_addc_u32 s97, s97, 0")
        e(f"s_mov_b32 s98, L_codeend-{'L_main' if a.pads else 'L_pc'}")
        e("s_mov_b32 s99, 0x20000")
        e(f"s_lshr_b32 s{sTHR}, s2, 3")
        e(f"s_lshl_b32 s{sTHR}, s{sTHR}, 10")
        v("v_lshlrev_b32 v15, 2, v0", ["v15"])
        e(f"buffer_load_dword v255, v15, s[96:99], s{sTHR} offen", "vmem", rd=["v15"], wr=["v255"])
    vLN = Pbases[0]
    v("v_lshrrev_b32 v12, 6, v0", ["v12"])
    v(f"v_and_b32 v{vLN}, 63, v0", [f"v{vLN}"])
    v(f"v_readfirstlane_b32 s{sW}, v12", [f"s{sW}"], ["v12"])
    v(f"v_lshrrev_b32 v13, 4, v{vLN}", ["v13"])
    v("v_and_b32 v14, 2, v13", ["v14"])
    v(f"v_xor_b32 v14, v14, v{vLN}", ["v14"])
    v("v_lshlrev_b32 v14, 4, v14", ["v14"])
    v(f"v_lshl_add_u32 v{vDK[1]}, v12, 11, v14", [f"v{vDK[1]}"])
    v(f"v_add_u32 v{vDK[0]}, {GRAN - 1024}, v{vDK[1]}", [f"v{vDK[0]}"])
    v("v_and_b32 v14, 1, v13", ["v14"])
    v("v_lshlrev_b32 v14, 1, v14", ["v14"])
    v(f"v_xor_b32 v14, v14, v{vLN}", ["v14"])
    v("v_lshlrev_b32 v14, 4, v14", ["v14"])
    v(f"v_lshl_add_u32 v{vDV[1]}, v12, 11, v14", [f"v{vDV[1]}"])
    v(f"v_add_u32 v{vDV[0]}, {GRAN - 1024}, v{vDV[1]}", [f"v{vDV[0]}"])
    BIAS = GRAN - 1024
    e(f"s_mul_i32 s{sWG}, s{sW}, {2 * GRAN}", rd=[f"s{sW}"])
    e(f"s_mul_i32 s{sQW}, s{sW}, {4 * TILE}")
    e(f"s_add_u32 s{sQW}, s{sQW}, {q0 * TILE}")
    e(f"s_mov_b32 s{sMODE}, 0")
    e(f"s_lshl_b32 s{sTMP}, s2, 2")
    e(f"s_add_u32 s{sTMP}, s{sTMP}, s{sW}")
    e(f"s_lshl_b32 s{sTMP}, s{sTMP}, 14")
    e(f"s_lshl_b32 s{sC}, s2, 17")
    e(f"s_lshl_b32 s{sBAD}, s{sW}, 11")
    e(f"s_add_u32 s{sQ + 2}, s{sBAD}, {16384 + BIAS}")
    e(f"s_sub_u32 s{sBAD}, s{sTMP}, s{sBAD}")
    for d, size in ((sK, 131072 + BIAS), (sV, 131072 + BIAS), (sO, 16384)):
        e(f"s_mov_b32 s{d + 2}, {size}")
    for d in (sQ, sK, sV, sO):
        e(f"s_mov_b32 s{d + 3}, 0x20000")
    e(f"s_mov_b32 s{sOFF}, 0")
    e("s_waitcnt lgkmcnt(0)", "wait")
    for d, p, o in ((sK, 6, sC), (sQ, 4, sBAD), (sV, 8, sC), (sO, 10, sTMP)):
        e(f"s_add_u32 s{d}, s{p}, s{o}")
        e(f"s_addc_u32 s{d + 1}, s{p + 1}, 0")
        if d != sO:
            e(f"s_sub_u32 s{d}, s{d}, {BIAS}")
            e(f"s_subb_u32 s{d + 1}, s{d + 1}, 0")
    stamp()
    E.label("L_start")
    di = 0

    def issue_dma_now():
        nonlocal di
        pre, ops = make_dma(dma_order[di])
        di += 1
        E.emit(pre)
        for o in ops:
            E.emit(o)

    qdma = {}
    pro_q = [("t",)] + [("q", x, g) for x in range(4) for g in range(2)] + [("t",)] * (a.ninit - 1)

    def topup(limit):
        while pro_q and E.nvm - E.vm_done < limit:
            it = pro_q.pop(0)
            if it[0] == "t":
                assert free_slots[dma_order[di][0]]
                issue_dma_now()
            else:
                _, x, g = it
                e(f"s_add_u32 m0, s{sQW}, {x * TILE + 2 * g * GRAN}", wr=["m0"])
                so = sQO + (2 * x + g) % 4
                e(f"s_movk_i32 s{so}, {x * 4096 + g * 2048}")
                for o in dma_pair(sQ, vDK, so):
                    qdma[x] = E.emit(o)

    topup(a.infl)
    for j in range(1, 16):
        e(f"s_mov_b32 s{sOFF + j}, {j * 8192}")
    for j in range(4):
        e(f"s_movk_i32 s{sX + j}, {j * 4096}")
    v(f"v_mbcnt_lo_u32_b32 v{vLN}, -1, 0", [f"v{vLN}"])
    v(f"v_mbcnt_hi_u32_b32 v{vLN}, -1, v{vLN}", [f"v{vLN}"])

    e(f"s_mov_b32 s{sC}, {f32bits(math.log2(math.e) / math.sqrt(128.0)):#x}")
    e(f"s_mov_b32 s{sTHR}, {f32bits(2.0 ** 32):#x}")
    e(f"s_mov_b64 s[{sBAD}:{sBAD + 1}], 0")
    v(f"v_and_b32 v12, 3, v{vLN}", ["v12"])
    v(f"v_bfe_u32 v13, v{vLN}, 2, 2", ["v13"])
    v(f"v_lshrrev_b32 v14, 4, v{vLN}", ["v14"])
    v(f"v_mul_u32_u24 v{vK}, {GRAN}, v12", [f"v{vK}"], ["v12"])
    v(f"v_lshl_add_u32 v{vK}, v13, 8, v{vK}", [f"v{vK}"])
    v("v_and_b32 v15, 2, v13", ["v15"])
    v("v_xor_b32 v15, v15, v14", ["v15"])
    v(f"v_lshl_add_u32 v{vK}, v15, 4, v{vK}", [f"v{vK}"])
    v(f"v_mul_u32_u24 v{vV[0]}, {GRAN}, v13", [f"v{vV[0]}"])
    v(f"v_lshl_add_u32 v{vV[0]}, v14, 8, v{vV[0]}", [f"v{vV[0]}"])
    v(f"v_lshl_add_u32 v{vV[0]}, v12, 3, v{vV[0]}", [f"v{vV[0]}"])
    v("v_and_b32 v15, 1, v14", ["v15"])
    v(f"v_lshl_add_u32 v{vV[0]}, v15, 5, v{vV[0]}", [f"v{vV[0]}"])
    v(f"v_xor_b32 v{vV[1]}, 32, v{vV[0]}", [f"v{vV[1]}"])
    v(f"v_add_u32 v{vV[2]}, {vwin[1] * TILE}, v{vV[0]}", [f"v{vV[2]}"])
    v(f"v_add_u32 v{vV[3]}, {vwin[1] * TILE}, v{vV[1]}", [f"v{vV[3]}"])
    v(f"v_add_u32 v{vV[0]}, {vwin[0] * TILE}, v{vV[0]}", [f"v{vV[0]}"])
    v(f"v_add_u32 v{vV[1]}, {vwin[0] * TILE}, v{vV[1]}", [f"v{vV[1]}"])
    e(f"s_mul_i32 s{sTMP}, s{sW}, {4 * TILE}")
    v(f"v_and_b32 v12, 15, v{vLN}", ["v12"])
    v(f"v_mul_u32_u24 v{vOW}, 272, v12", [f"v{vOW}"])
    v(f"v_lshl_add_u32 v{vOW}, v14, 3, v{vOW}", [f"v{vOW}"])
    v(f"v_add_u32 v{vOW}, s{sTMP}, v{vOW}", [f"v{vOW}"])
    v("v_lshlrev_b32 v13, 2, v14", ["v13"])
    v("v_sub_u32 v12, v12, v13", ["v12"])
    v("v_and_b32 v12, 15, v12", ["v12"])
    v("v_lshlrev_b32 v12, 4, v12", ["v12"])
    v(f"v_lshl_add_u32 v{vOG}, v14, 8, v12", [f"v{vOG}"])
    v(f"v_mul_u32_u24 v{vOR}, {GRAN}, v14", [f"v{vOR}"])
    v(f"v_add3_u32 v{vOR}, v{vOR}, v12, s{sTMP}", [f"v{vOR}"])
    vQA = 12
    v(f"v_add_u32 v{vQA}, s{sQW}, v{vK}", [f"v{vQA}"])
    v("v_mov_b32 v13, 0x3f803f80", ["v13"])
    for i in range(4):
        v(f"v_accvgpr_write_b32 a{aONE + i}, v13", [f"a{aONE + i}"], ["v13"])
    for x in range(4):
        v(f"v_mov_b32 v{NM[x]}, 0xff800000", [f"v{NM[x]}"])
    for x in addx:
        v(f"v_mov_b32 v{Lreg[x]}, 0", [f"v{Lreg[x]}"])

    if a.pads:
        e("s_mov_b64 exec, 0")
        for w in range(3):
            e(f"s_cmp_eq_u32 s{sW}, {w}")
            e(f"s_cbranch_scc1 L_pad{w}")
        e("s_branch L_pad3")
        E.out.append(Op(".p2align 12", "label"))
        E.label("L_main")
        e("s_mov_b64 exec, -1")

    def kread(j, s):
        r = Freg["K", j, s]
        return Op(None, "ldsr", rd=[f"v{vK}"], wr=regs("a", r, 4), tag=("K", j, s))

    def vread(kap, b, tau):
        r = Freg["V", kap, b] + 2 * tau
        return Op(None, "ldsr", wr=regs("a", r, 2), tag=("V", kap, b, tau))

    def finalize_read(op):
        if op.text is not None:
            return
        if op.tag[0] == "K":
            _, j, s = op.tag
            off = (slot_of["K", j // 2] + j % 2) * TILE + 64 * s
            assert off < 65536
            op.text = f"ds_read_b128 {rr('a', Freg['K', j, s], 4)}, v{vK} offset:{off}"
        else:
            _, kap, b, tau = op.tag
            sl = slot_of["V", kap] + tau
            w = 0 if sl < vwin[1] else 1
            off = (sl - vwin[w]) * TILE + 64 * (b >> 1)
            assert off < 65536
            av = vV[2 * w + (b & 1)]
            op.rd = [f"v{av}"]
            op.text = f"ds_read_b64_tr_b16 {rr('a', Freg['V', kap, b] + 2 * tau, 2)}, v{av} offset:{off}"

    kr = {(j, s): kread(j, s) for j in range(32) for s in range(4)}
    vr = {(kap, b, t): vread(kap, b, t) for kap in range(16) for b in range(8) for t in range(2)}
    for (j, s), op in kr.items():
        tile_reads["K", j // 2].append(op)
    for (kap, b, t), op in vr.items():
        tile_reads["V", kap].append(op)

    E.vm_wait([dma_op["K", 0]])
    topup(a.infl)
    e("s_barrier", "barrier")
    for j in range(2):
        for s in range(4):
            finalize_read(kr[j, s])
            E.emit(kr[j, s])

    QT = Pbases[-6]
    assert len(Pbases) >= 12
    UT = QT + 16

    def q_scale(x, s):
        for i in range(4):
            src, t = QT + 4 * s + i, UT + 2 * i
            v(f"v_lshlrev_b32 v{t}, 16, v{src}", [f"v{t}"], [f"v{src}"])
            v(f"v_and_b32 v{t + 1}, 0xffff0000, v{src}", [f"v{t + 1}"], [f"v{src}"])
        for i in range(4):
            t = UT + 2 * i
            v(f"v_pk_mul_f32 {rr('v', t, 2)}, {rr('v', t, 2)}, s[{sC}:{sC + 1}] op_sel_hi:[1,0]", regs("v", t, 2),
              regs("v", t, 2))
        for i in range(4):
            v(f"v_cvt_pk_bf16_f32 v{UT + 2 * i}, v{UT + 2 * i}, v{UT + 2 * i + 1}", [f"v{UT + 2 * i}"],
              [f"v{UT + 2 * i}", f"v{UT + 2 * i + 1}"])
        for i in range(4):
            v(f"v_accvgpr_write_b32 a{Qreg[x][s] + i}, v{UT + 2 * i}", [f"a{Qreg[x][s] + i}"], [f"v{UT + 2 * i}"])

    def q_prepare(x):
        assert ("q", x, 1) not in pro_q
        E.vm_wait([qdma[x]])
        rds = [e(f"ds_read_b128 {rr('v', QT + 4 * s, 4)}, v{vQA} offset:{x * TILE + 64 * s}", "ldsr",
                 rd=[f"v{vQA}"], wr=regs("v", QT + 4 * s, 4)) for s in range(4)]
        topup(a.infl if x < 3 else 99)
        for s in range(4):
            E.lds_wait([rds[s]])
            q_scale(x, s)

    def first_max_ops(x):
        S0, S1, n = Sreg[uidx[0, x] % a.ns], Sreg[uidx[1, x] % a.ns], NM[x]
        prod = mf[last_use["S", 1, x]]
        ops = []

        def add(text, wr, rd, dist=0):
            deps = [(ops[-1], dist)] if ops else [(prod, 8)]
            ops.append(Op(text, "valu", rd=rd, wr=wr, deps=deps))

        for S in (S0, S0 + 2, S1, S1 + 2):
            add(f"v_max3_f32 v{n}, v{S}, v{S + 1}, v{n}", [f"v{n}"], [f"v{S}", f"v{S + 1}", f"v{n}"])
        for sw in ("v_permlane32_swap_b32", "v_permlane16_swap_b32"):
            add(f"v_mov_b32 v{n + 1}, v{n}", [f"v{n + 1}"], [f"v{n}"])
            add(f"{sw} v{n + 1}, v{n}", [f"v{n}", f"v{n + 1}"], [f"v{n}", f"v{n + 1}"], 2)
            add(f"v_max_f32 v{n}, v{n}, v{n + 1}", [f"v{n}"], [f"v{n}", f"v{n + 1}"])
        for i in (1, 2, 3, 0):
            add(f"v_mul_f32 v{n + i}, -1.0, v{n}", [f"v{n + i}"], [f"v{n}"])
        nm_done = ops[-1]
        subs = {}
        for j, S in ((0, S0), (1, S1)):
            for i in range(4):
                subs[j, i] = Op(f"v_add_f32 v{S + i}, v{S + i}, v{n}", "valu", rd=[f"v{S + i}", f"v{n}"],
                                wr=[f"v{S + i}"], deps=[(nm_done, 0)])
        return ops, subs

    F = []
    sm_last = {}
    exps = {}
    for u, (j, x) in enumerate(qk_units):
        S = Sreg[u % a.ns]
        prod = mf[last_use["S", j, x]]
        sdead = first_use[("S",) + qk_units[u + a.ns]] - 1 if u + a.ns < 128 else 10 ** 9
        if j == 0:
            mops, subs = first_max_ops(x)
            for k, o in enumerate(mops):
                o.early = last_use["S", 1, x]
                o.dead = min(sdead, first_use["S", 2, x] - 2)
                o.prio = (-1, u, k)
                o.tag = ("sm", x)
            F += mops
        nF = len(F)
        kap = j // 2
        pdead = min(sdead, first_use["P", kap, x] - 2)
        ex = []
        for i in range(4):
            op = Op(f"v_exp_f32 v{S + i}, v{S + i}", "trans", rd=[f"v{S + i}"], wr=[f"v{S + i}"],
                    deps=[(prod, 8)], early=last_use["S", j, x], dead=pdead)
            op.prio = (pdead - 4 + i, u, 3 * i)
            if j < 2:
                subs[j, i].prio = (pdead - 5 + i, u, 3 * i)
                subs[j, i].dead = pdead
                F.append(subs[j, i])
                op.deps.append((subs[j, i], 0))
            ex.append(op)
            F.append(op)
            if x in addx:
                ad = Op(f"v_add_f32 v{Lreg[x]}, v{Lreg[x]}, v{S + i}", "valu", rd=[f"v{S + i}", f"v{Lreg[x]}"],
                        wr=[f"v{Lreg[x]}"], deps=[(op, 1)], dead=min(sdead, pdead + 8))
                ad.prio = (pdead - 4 + i, u, 3 * i + 2)
                F.append(ad)
                sm_last[x] = ad
            if i % 2:
                P = Preg[kap, x] + 2 * (j % 2) + i // 2
                cv = Op(f"v_cvt_pk_bf16_f32 v{P}, v{S + i - 1}, v{S + i}", "valu",
                        rd=[f"v{S + i - 1}", f"v{S + i}"], wr=[f"v{P}"], deps=[(ex[i - 1], 1), (op, 1)],
                        early=Pfree[kap, x], dead=pdead)
                assert Pfree[kap, x] <= pdead, ("P pool too small", kap, x)
                cv.prio = (pdead - 4 + i, u, 3 * i + 1)
                F.append(cv)
        exps[j, x] = ex
        if j < 2:
            for o in F[nF:]:
                o.tag = ("sm", x)
    for (j, s), op in kr.items():
        fu = first_use["K", j, s]
        mf[fu].needs.append(op)
        if op.idx is None:
            op.early = max(Ffree["K", j, s], pub["K", j // 2])
            op.dead = max(fu - a.lat, op.early)
            op.prio = (op.dead - a.rdbias, -1, fu)
            F.append(op)
    for (kap, b, t), op in vr.items():
        fu = first_use["V", kap, b]
        mf[fu].needs.append(op)
        op.early = max(Ffree["V", kap, b], pub["V", kap])
        op.dead = max(fu - a.lat, op.early)
        op.prio = (op.dead - a.rdbias, -1, fu)
        F.append(op)

    tbase = Sreg + NM
    tfree = {b: None for b in tbase}
    tdead = max(last_use["S", 31, x] for x in range(4))
    allsm = [o for o in F if o.cls in ("trans", "valu")]
    lastsm = allsm[-40:]
    tq = list(tbase)
    epi_order = [int(c) for c in a.final if c.isdigit()]
    stores = []

    def ttake():
        b = tq.pop(0)
        tq.append(b)
        return b

    BIG = 10 ** 8
    seqn = [0]

    def epi(op, base, nreg4=()):
        seqn[0] += 1
        op.prio = (BIG, seqn[0], 0)
        F.append(op)
        return op

    for x in epi_order:
        rl = vRL[x]
        L = Lreg[x]
        if x in ones_x:
            src = [(mf[last_use["L", x]], 8)]
            ear = last_use["L", x]
        else:
            prev = sm_last[x]
            ear = -1
            for sw in ("v_permlane32_swap_b32", "v_permlane16_swap_b32"):
                m1 = epi(Op(f"v_mov_b32 v{rl}, v{L}", "valu", rd=[f"v{L}"], wr=[f"v{rl}"],
                            deps=[(prev, 0)] + [(o, 0) for o in lastsm if f"v{L}" in o.wr]), None)
                m2 = epi(Op(f"{sw} v{rl}, v{L}", "valu", rd=[f"v{L}", f"v{rl}"], wr=[f"v{L}", f"v{rl}"],
                            deps=[(m1, 2)]), None)
                prev = epi(Op(f"v_add_f32 v{L}, v{L}, v{rl}", "valu", rd=[f"v{L}", f"v{rl}"], wr=[f"v{L}"],
                              deps=[(m2, 0)]), None)
            src = [(prev, 0)]
        rc = epi(Op(f"v_rcp_f32 v{rl}, v{L}", "trans", rd=[f"v{L}"], wr=[f"v{rl}"], deps=src, early=ear), None)
        cm = epi(Op(f"v_cmp_nge_f32 vcc, s{sTHR}, v{L}", "valu", rd=[f"v{L}"], wr=["vcc"],
                    deps=src + ([(stores[-1][1], 0)] if stores else []), early=ear), None)
        orr = epi(Op(f"s_or_b64 s[{sBAD}:{sBAD + 1}], s[{sBAD}:{sBAD + 1}], vcc", "salu", rd=["vcc"],
                     deps=[(cm, 2)]), None)
        p, ob = Oreg[x]
        wrs = []
        for b in range(8):
            prod = mf[last_use["O", x, b]]
            o = ob + 4 * b
            if p == "a":
                t = ttake()
                dep0 = [(d, 0) for d in (tfree[t] or lastsm)]
                rds = [epi(Op(f"v_accvgpr_read_b32 v{t + i}, a{o + i}", "valu", rd=[f"a{o + i}"], wr=[f"v{t + i}"],
                              deps=[(prod, 8)] + dep0, early=max(last_use["O", x, b], tdead + 1)), None)
                       for i in range(4)]
                src4 = [[(rds[i], 0)] for i in range(4)]
            else:
                t = o
                src4 = [[(prod, 8)] for i in range(4)]
            mu = [epi(Op(f"v_mul_f32 v{t + i}, v{rl}, v{t + i}", "valu", rd=[f"v{rl}", f"v{t + i}"], wr=[f"v{t + i}"],
                         deps=src4[i] + [(rc, 1)], early=last_use["O", x, b]), None) for i in range(4)]
            c0 = epi(Op(f"v_cvt_pk_bf16_f32 v{t}, v{t}, v{t + 1}", "valu", rd=[f"v{t}", f"v{t + 1}"], wr=[f"v{t}"],
                        deps=[(mu[0], 0), (mu[1], 0)]), None)
            c1 = epi(Op(f"v_cvt_pk_bf16_f32 v{t + 1}, v{t + 2}, v{t + 3}", "valu", rd=[f"v{t + 2}", f"v{t + 3}"],
                        wr=[f"v{t + 1}"], deps=[(mu[2], 0), (mu[3], 0), (c0, 0)]), None)
            w = epi(Op(f"ds_write_b64 v{vOW}, {rr('v', t, 2)} offset:{x * TILE + 32 * b}", "ldsw",
                       rd=[f"v{vOW}", f"v{t}", f"v{t + 1}"], deps=[(c0, 0), (c1, 0)], early=obar), None)
            wrs.append(w)
            if p == "a":
                tfree[t] = [w]
        rds = []
        for i in range(4):
            if p == "a":
                t, pp = ob + 4 * i, "a"
            else:
                t, pp = ob + 4 * i, "v"
            r = epi(Op(f"ds_read_b128 {rr(pp, t, 4)}, v{vOR} offset:{x * TILE + 272 * i}", "ldsr", rd=[f"v{vOR}"],
                       wr=regs(pp, t, 4), deps=[(w, 0) for w in wrs]), None)
            rds.append((r, pp, t))
        for i, (r, pp, t) in enumerate(rds):
            off = f" offset:{i * 1024}" if i else ""
            s_ = epi(Op(f"buffer_store_dwordx4 {rr(pp, t, 4)}, v{vOG}, s[{sO}:{sO + 3}], s{sX + x} offen{off} {st}".rstrip(),
                        "vmem", rd=regs(pp, t, 4) + [f"v{vOG}"], deps=[(r, a.stdist)], needs=[r]), None)
        stores.append((x, orr))

    pending = sorted(F, key=lambda o: o.prio)
    overflow = [0]

    def ready(op, strict=True):
        if op.early > E.gap:
            return False
        for d, dist in op.deps:
            if d.idx is None:
                return False
            if strict and E.nst - d.st < dist:
                return False
        return True

    def put(op):
        if op.cls == "ldsr":
            finalize_read(op)
        if op.needs:
            E.lds_wait(op.needs)
        E.emit(op)
        pending.remove(op)

    def force(op):
        assert op.early <= E.gap, ("cannot meet deadline", op.text, op.tag, op.early, E.gap)
        for d, _ in op.deps:
            if d.idx is None:
                assert d.cls != "mfma", ("deadline before producer", op.text)
                force(d)
        put(op)

    def do_barrier(g):
        need = [t for t in pub if pub[t] == g]
        for t in need:
            assert t in dma_op and dma_op[t].idx is not None, ("tile not issued before its barrier", t, g)
        E.vm_wait([dma_op[t] for t in need])
        if g == obar:
            E.lds_wait([o for j in range(16) for o in tile_reads["K", j]])
        e("s_barrier", "barrier")
        if g == G0:
            for s in range(q0, q0 + 16, 2):
                free_slots["K" if s < NK else "V"].append(s)
        for t, rs in tile_reads.items():
            if t not in released and t in slot_of and all(r.idx is not None and r.ldsn < E.lds_done for r in rs):
                released.add(t)
                free_slots[t[0]].append(slot_of[t])

    for x in range(4):
        if x == 0:
            e(f"s_cmp_lg_u32 s{sMODE}, 0")
            e("s_cbranch_scc1 L_maxpass")
            E.label("L_maxdone")
        q_prepare(x)
        if x == 3:
            stamp()
        if x < 3:
            for i in range(8 * x, 8 * x + 8):
                E.gap = i
                E.emit(mf[i])
            mine = [o for o in pending if o.tag == ("sm", x)]
            while mine:
                o = ([o for o in mine if ready(o)] or [o for o in mine if ready(o, False)])[0]
                put(o)
                mine.remove(o)
    n_init = di
    assert not pro_q

    next_dma_gap = G0
    staged = None

    def closure(op, acc):
        assert op.early <= E.gap, ("cannot meet deadline", op.text, op.tag, op.early, E.gap)
        for d, _ in op.deps:
            if d.idx is None and d not in acc:
                assert d.cls != "mfma", ("deadline before producer", op.text)
                closure(d, acc)
        if op not in acc:
            acc.append(op)

    for g in range(G0, NMF):
        E.gap = g
        if g > G0:
            E.emit(mf[g])
        shadow = True
        budget = 8
        if g in bars:
            do_barrier(g)
            shadow = False
        if a.stamps and g in [first_use["S", gs, 0] for gs in (4, 8, 12, 16, 20, 24, 28)] + [tdead]:
            stamp()
        if g + 1 < NMF and mf[g + 1].needs and all(n.idx is not None for n in mf[g + 1].needs):
            if E.lds_wait(mf[g + 1].needs, a.lat):
                shadow = False
        if staged is not None:
            for o in staged:
                E.emit(o)
            staged = None
            budget -= a.dmacost
        elif shadow and di < len(dma_order) and g >= next_dma_gap and free_slots[dma_order[di][0]]:
            pre, staged = make_dma(dma_order[di])
            di += 1
            E.emit(pre)
            shadow = False
            next_dma_gap = g + a.dmaper
        picks = []
        for o in pending:
            if o.dead <= g:
                closure(o, picks)
        budget -= sum(COST[o.cls] for o in picks)
        cand = [o for o in pending[:400] if o not in picks and ready(o)]
        sal = [o for o in cand if o.cls == "salu"]
        if sal and shadow:
            put(sal[0])
        cand = [o for o in cand if o.cls != "salu"]
        if budget == 8 and cand:
            first = cand[0]
            small = [o for o in cand if COST[o.cls] == 4]
            tr = [o for o in cand if o.cls == "trans"]
            if COST[first.cls] == 4 and len(small) < 2 and tr:
                first = tr[0]
            picks.append(first)
            budget -= COST[first.cls]
        for o in cand:
            if o not in picks and COST[o.cls] <= budget:
                picks.append(o)
                budget -= COST[o.cls]
        mem = [o for o in picks if o.cls in ("ldsr", "ldsw", "vmem") and all(d.idx is not None for d, _ in o.deps)]
        rest = [o for o in picks if o not in mem]
        for o in mem:
            put(o)
        while rest:
            o = ([o for o in rest if ready(o)] or [o for o in rest if ready(o, False)])[0]
            put(o)
            rest.remove(o)
        while budget > 0:
            more = [o for o in pending[:400] if o.cls == "valu" and ready(o)]
            if not more:
                break
            put(more[0])
            budget -= 4
        if budget == 8 and any(ready(o, False) for o in pending[:400]):
            e("s_nop 1", "nop")
        overflow[0] += max(0, -budget)
        if g + 1 < NMF and mf[g + 1].needs:
            E.lds_wait(mf[g + 1].needs)
    assert staged is None and di == len(dma_order)
    stamp()
    ntail = len(pending)
    while pending:
        cand = [o for o in pending if ready(o)] or [o for o in pending if ready(o, False)]
        put(cand[0])
    stamp()

    e(f"s_cmp_lg_u64 s[{sBAD}:{sBAD + 1}], 0")
    e(f"s_cselect_b32 s{sTMP}, 1, 0")
    e(f"s_lshl_b32 s{sC}, s{sW}, 2")
    e(f"s_add_u32 s{sC}, s{sC}, {FLAG_OFF}")
    v(f"v_mov_b32 v12, s{sC}", ["v12"])
    v(f"v_mov_b32 v13, s{sTMP}", ["v13"])
    v(f"v_mov_b32 v14, {FLAG_OFF}", ["v14"])
    e("ds_write_b32 v12, v13", "ldsw", rd=["v12", "v13"])
    E.lds_drain()
    e("s_barrier", "barrier")
    e("ds_read_b128 v[16:19], v14", "ldsr", rd=["v14"], wr=regs("v", 16, 4))
    E.lds_drain()
    v("v_or3_b32 v16, v16, v17, v18", ["v16"], regs("v", 16, 3))
    v("v_or_b32 v16, v16, v19", ["v16"], ["v16", "v19"])
    v(f"v_readfirstlane_b32 s{sTMP}, v16", [f"s{sTMP}"], ["v16"])
    e(f"s_andn2_b32 s{sTMP}, s{sTMP}, s{sMODE}", rd=[f"s{sTMP}"])
    e("s_cbranch_scc1 L_rerun")
    if a.stamps:
        e("s_waitcnt vmcnt(0)", "wait")
        stamp()
        E.lds_drain()
        e(f"s_mov_b32 s{sWS + 2}, 1048576")
        e(f"s_mov_b32 s{sWS + 3}, 0x20000")
        e(f"s_lshl_b32 s{sTMP}, s2, 2")
        e(f"s_add_u32 s{sTMP}, s{sTMP}, s{sW}")
        e(f"s_mul_i32 s{sTMP}, s{sTMP}, {8 * nstamp[0]}")
        v("v_mov_b32 v12, 0", ["v12"])
        for i in range(nstamp[0]):
            v(f"v_mov_b32 v14, s{stampreg[i]}", ["v14"])
            v(f"v_mov_b32 v15, s{stampreg[i] + 1}", ["v15"])
            e(f"buffer_store_dwordx2 v[14:15], v12, s[{sWS}:{sWS + 3}], s{sTMP} offen offset:{8 * i}", "vmem",
              rd=["v14", "v15", "v12"])
            e("s_nop 1", "nop")
    if a.spin:
        e("s_waitcnt vmcnt(0)", "wait")
        E.label("L_spin")
        e("s_memrealtime s[62:63]", "smem")
        e("s_waitcnt lgkmcnt(0)", "wait")
        e("s_sub_u32 s62, s62, s60")
        e(f"s_cmp_lt_u32 s62, {a.spin * 100}")
        e("s_cbranch_scc1 L_spin")
    E.label("L_end")
    e("s_endpgm", "end")

    E.label("L_codeend")
    E.label("L_rerun")
    e(f"s_mov_b32 s{sMODE}, 1")
    e("s_waitcnt vmcnt(0) lgkmcnt(0)", "wait")
    e("s_barrier", "barrier")
    e("s_branch L_start")

    E.label("L_maxpass")
    KT = QT
    v(f"v_and_b32 v13, 3, v{vLN}", ["v13"])
    v(f"v_bfe_u32 v14, v{vLN}, 2, 2", ["v14"])
    v("v_lshl_add_u32 v13, v13, 2, v14", ["v13"])
    v(f"v_lshrrev_b32 v14, 4, v{vLN}", ["v14"])
    v("v_lshlrev_b32 v13, 8, v13", ["v13"])
    v("v_lshl_add_u32 v13, v14, 4, v13", ["v13"])
    v(f"v_add_u32 v13, {BIAS}, v13", ["v13"])
    e(f"s_lshl_b32 s{sTMP}, s{sW}, 11")
    v(f"v_add_u32 v14, s{sTMP}, v13", ["v14"])
    for x in range(4):
        for s in range(4):
            e(f"buffer_load_dwordx4 {rr('v', QT + 4 * s, 4)}, v14, s[{sQ}:{sQ + 3}], s{sX + x} offen offset:{64 * s}",
              "vmem", rd=["v14"], wr=regs("v", QT + 4 * s, 4))
        e("s_waitcnt vmcnt(0)", "wait")
        for s in range(4):
            q_scale(x, s)
    e(f"s_mov_b32 s{sTMP}, 0")
    E.label("L_maxloop")
    for s in range(4):
        e(f"buffer_load_dwordx4 {rr('v', KT + 4 * s, 4)}, v13, s[{sK}:{sK + 3}], s{sTMP} offen offset:{64 * s}",
          "vmem", rd=["v13"], wr=regs("v", KT + 4 * s, 4))
    e("s_waitcnt vmcnt(0)", "wait")
    for x in range(4):
        S = Sreg[x]
        for s in range(4):
            C, cr = ("0", []) if s == 0 else (rr("v", S, 4), regs("v", S, 4))
            E.emit(Op(f"v_mfma_f32_16x16x32_bf16 {rr('v', S, 4)}, {rr('v', KT + 4 * s, 4)}, {rr('a', Qreg[x][s], 4)}, {C}",
                      "mfma", rd=regs("v", KT + 4 * s, 4) + regs("a", Qreg[x][s], 4) + cr, wr=regs("v", S, 4), srcc=cr))
    e("s_nop 7", "nop")
    for x in range(4):
        S, n = Sreg[x], NM[x]
        v(f"v_max3_f32 v{n}, v{S}, v{S + 1}, v{n}", [f"v{n}"], [f"v{S}", f"v{S + 1}", f"v{n}"])
        v(f"v_max3_f32 v{n}, v{S + 2}, v{S + 3}, v{n}", [f"v{n}"], [f"v{S + 2}", f"v{S + 3}", f"v{n}"])
    e(f"s_add_u32 s{sTMP}, s{sTMP}, 4096")
    e(f"s_cmp_lt_u32 s{sTMP}, 131072")
    e("s_cbranch_scc1 L_maxloop")
    e("s_nop 3", "nop")
    e("s_branch L_maxdone")

    if a.drop:
        i0 = mf[G0 + 1].idx - 8
        i1 = mf[-1].idx

        def dropped(o):
            if o.idx is None or not i0 <= o.idx <= i1:
                return False
            t = o.text
            return (("d" in a.drop and (" lds" in t and "buffer_load" in t or "vmcnt" in t)) or
                    ("m" in a.drop and "m0" in t) or
                    ("b" in a.drop and "s_barrier" in t) or
                    ("r" in a.drop and ("ds_read" in t or "lgkmcnt" in t)) or
                    ("w" in a.drop and "lgkmcnt" in t) or
                    ("n" in a.drop and "s_nop" in t) or
                    ("s" in a.drop and "buffer_store" in t) or
                    ("a" in a.drop and "accvgpr_read" in t) or
                    ("x" in a.drop and "ds_write" in t) or
                    ("e" in a.drop and "v_exp" in t))
        E.out = [o for o in E.out if not dropped(o)]
        for o in E.out:
            if o.text == "s_cbranch_scc1 L_rerun":
                o.text = "s_nop 0"
    ops, nnop = fix_hazards(E.out)
    if a.pads:
        ops = insert_pads(ops)
    info = dict(mfma=NMF, instrs=len(ops), nops=nnop, overflow=overflow[0], tail=ntail, n_init=n_init,
                bars=len(bars), pslots=len(Pbases), fslots=len(Fbases), stamps=nstamp[0])
    head = [
        "; GQA attention forward, B=32 Hq=32 Hkv=8 Sq=64 Sk=512 D=128, bf16 in / bf16 out (generated schedule).",
        "; kernarg: q @0, k @8, v @16, out @24, debug @32, ws @40",
        "; One workgroup per (batch, kv head); wave w handles q head 4*hkv+w.",
        "; Softmax shift: row max of the first 16 keys; a final check on the row sums reruns the",
        "; workgroup with the true row max (L_rerun / L_maxpass) whenever that shift is unsafe.",
        f"; @launch grid=(256,1,1) block=(256,1,1) lds={LDS_BYTES}",
        '.amdgcn_target "amdgcn-amd-amdhsa--gfx950"', ".text", f".globl {KNAME}", ".p2align 8",
        f".type {KNAME},@function", f"{KNAME}:"]
    body = [(o.text if o.cls == "label" else "    " + o.text) for o in ops]
    tail = ['.section .rodata,"a"', ".p2align 6", f".amdhsa_kernel {KNAME}",
            "  .amdhsa_next_free_vgpr 512", "  .amdhsa_next_free_sgpr 102", "  .amdhsa_accum_offset 256",
            "  .amdhsa_group_segment_fixed_size 0", "  .amdhsa_kernarg_size 48", "  .amdhsa_user_sgpr_count 2",
            "  .amdhsa_user_sgpr_kernarg_segment_ptr 1", "  .amdhsa_system_sgpr_workgroup_id_x 1",
            ".end_amdhsa_kernel"]
    return "\n".join(head + body + tail) + "\n", info


def parser():
    ap = argparse.ArgumentParser()
    ap.add_argument("out")
    ap.add_argument("--groups", default="2,2,4,4,4,4,4,8")
    ap.add_argument("--final", default="0,1,2,3")
    ap.add_argument("--ones", default="0123")
    ap.add_argument("--oacc", default="01")
    ap.add_argument("--ld", default="nt")
    ap.add_argument("--st", default="nt")
    ap.add_argument("--ns", type=int, default=5)
    ap.add_argument("--lag", type=int, default=3)
    ap.add_argument("--lat", type=int, default=6)
    ap.add_argument("--win", type=int, default=24)
    ap.add_argument("--barper", default="16,16,16,32,32,32,64")
    ap.add_argument("--win0", type=int, default=8)
    ap.add_argument("--wincut", type=int, default=128)
    ap.add_argument("--dmaper", type=int, default=28)
    ap.add_argument("--dmacost", type=int, default=8)
    ap.add_argument("--rdbias", type=int, default=8)
    ap.add_argument("--stdist", type=int, default=12)
    ap.add_argument("--nk", type=int, default=16)
    ap.add_argument("--q0", type=int, default=10)
    ap.add_argument("--ninit", type=int, default=5)
    ap.add_argument("--infl", type=int, default=8)
    ap.add_argument("--obar", type=int, default=-1)
    ap.add_argument("--stamps", type=int, default=0)
    ap.add_argument("--spin", type=int, default=0)
    ap.add_argument("--pfcode", type=int, default=1)
    ap.add_argument("--drop", default="")
    ap.add_argument("--pads", type=int, default=1)
    return ap


if __name__ == "__main__":
    a = parser().parse_args()
    txt, info = build(a)
    open(a.out, "w").write(txt)
    print(a.out, info)
```

```python
import argparse, math, re, struct, sys

KNAME = "standalone__gqa_softmax__near_ridge_kernel"
TILE = 4352
GRAN = 1088
NSLOT = 36
LDS_BYTES = 163840
FLAG_OFF = NSLOT * TILE
SYNC_OFF = FLAG_OFF + 256


def f32bits(x):
    return struct.unpack("<I", struct.pack("<f", x))[0]


def regs(p, lo, n):
    return [f"{p}{lo + i}" for i in range(n)]


def rr(p, lo, n):
    return f"{p}[{lo}:{lo + n - 1}]" if n > 1 else f"{p}{lo}"


class Op:
    __slots__ = ("text", "cls", "rd", "wr", "deps", "early", "dead", "prio", "needs", "idx", "gap",
                 "ldsn", "pre", "vmn", "tag", "srcc", "st")

    def __init__(self, text, cls, rd=(), wr=(), deps=(), early=-1, dead=10 ** 9, needs=(), pre=None, tag=None,
                 srcc=()):
        self.text, self.cls = text, cls
        self.rd, self.wr = list(rd), list(wr)
        self.deps = list(deps)
        self.early, self.dead = early, dead
        self.needs = list(needs)
        self.idx = None
        self.gap = None
        self.ldsn = None
        self.vmn = None
        self.pre = pre
        self.tag = tag
        self.prio = 0
        self.srcc = list(srcc)


COST = dict(trans=8, valu=4, ldsr=4, ldsw=12, vmem=20, salu=4)


class Emitter:
    def __init__(self):
        self.out = []
        self.nlds = 0
        self.lds_done = 0
        self.lds_gap = []
        self.nvm = 0
        self.vm_done = 0
        self.gap = -1
        self.nst = 0

    def emit(self, op):
        self.nst += states(op)
        op.st = self.nst
        op.idx = len(self.out)
        op.gap = self.gap
        if op.cls in ("ldsr", "ldsw"):
            op.ldsn = self.nlds
            self.nlds += 1
            self.lds_gap.append(self.gap)
        if op.cls == "vmem":
            op.vmn = self.nvm
            self.nvm += 1
        self.out.append(op)
        return op

    def raw(self, text, cls="salu", **kw):
        return self.emit(Op(text, cls, **kw))

    def label(self, name):
        self.out.append(Op(name + ":", "label"))

    def lds_wait(self, needs, lat=None):
        need = max((n.ldsn for n in needs), default=-1) + 1
        if need <= self.lds_done:
            return False
        if lat is not None:
            k = need
            while k < self.nlds and self.lds_gap[k] <= self.gap - lat:
                k += 1
            need = k
        n = min(self.nlds - need, 15)
        self.raw(f"s_waitcnt lgkmcnt({n})", "wait")
        self.lds_done = self.nlds - n
        return True

    def lds_drain(self):
        self.raw("s_waitcnt lgkmcnt(0)", "wait")
        self.lds_done = self.nlds

    def vm_wait(self, ops):
        need = max((o.vmn for o in ops), default=-1) + 1
        if need <= self.vm_done:
            return False
        n = min(self.nvm - need, 63)
        self.raw(f"s_waitcnt vmcnt({n})", "wait")
        self.vm_done = self.nvm - n
        return True


def states(op):
    if op.cls == "label":
        return 0
    m = re.match(r"s_nop (\d+)", op.text)
    return int(m.group(1)) + 1 if m else 1


def fix_hazards(ops):
    out = []
    added = 0
    for op in ops:
        if op.cls == "label":
            out.append(op)
            continue
        need = 0
        dist = 0
        rd, wr = set(op.rd), set(op.wr)
        isv = op.cls in ("valu", "trans")
        for p in reversed(out):
            if dist >= 12:
                break
            pw = set(p.wr)
            req = 0
            if p.cls == "mfma":
                if op.cls == "mfma":
                    ab = rd - set(op.srcc)
                    if pw & ab:
                        req = 8
                    if pw & set(op.srcc) and set(op.srcc) != pw:
                        req = max(req, 6)
                    if pw & wr and set(op.srcc) != pw:
                        req = max(req, 6)
                else:
                    if pw & (rd | wr):
                        req = 8
                    if isv and set(p.srcc) & wr:
                        req = max(req, 3)
            elif p.cls in ("valu", "trans"):
                if op.cls == "mfma" and pw & rd:
                    req = 2
                if p.cls == "trans" and op.cls != "trans" and pw & rd:
                    req = max(req, 1)
                if "permlane" in op.text and pw & rd:
                    req = max(req, 2)
                if ("readfirstlane" in op.text or "readlane" in op.text) and pw & rd:
                    req = max(req, 1)
                sw = {r for r in pw if r[0] == "s" or r == "vcc"}
                if sw & rd:
                    req = max(req, 5 if op.cls == "vmem" else 2)
            elif p.cls == "salu":
                if "m0" in pw and op.cls == "vmem" and "m0" in rd:
                    req = 1
            elif p.cls == "vmem":
                if "store" in p.text and set(p.rd) & wr and op.cls != "salu":
                    req = 2
            need = max(need, req - dist)
            dist += states(p)
        if need > 0:
            out.append(Op(f"s_nop {need - 1}", "nop"))
            added += 1
        out.append(op)
    return out, added


def isize(op):
    t = op.text
    if op.cls == "label":
        return 0
    mn = t.split()[0]
    if op.cls in ("mfma", "ldsr", "ldsw", "vmem", "smem"):
        return 8
    if mn in ("s_movk_i32", "s_nop", "s_waitcnt", "s_barrier", "s_branch", "s_endpgm") or mn.startswith("s_cbranch"):
        return 4
    if mn.startswith("v_cmp") and " s[" in t:
        return 8
    if mn.startswith(("v_cvt_pk", "v_max3", "v_accvgpr", "v_pk_", "v_lshl_add", "v_add3", "v_bfe", "v_or3", "v_mbcnt",
                      "v_fma")):
        return 8
    for arg in [x.strip() for x in t[len(mn):].split(",")]:
        if re.fullmatch(r"-?(0x[0-9a-f]+|\d+)", arg) and not -16 <= int(arg, 0) <= 64:
            return 8
        if arg.startswith("L_"):
            return 8
    return 4


def insert_pads(ops):
    i0 = next(i for i, o in enumerate(ops) if o.text == "L_main:")
    i1 = next(i for i, o in enumerate(ops) if o.text == "L_end:")
    out, addr, page, pads = ops[:i0], 0, 1, []
    for i in range(i0, len(ops)):
        o = ops[i]
        if i <= i1 and addr >= 4096 * page:
            good = out[-1].cls == "mfma" and o.cls not in ("salu", "wait", "barrier", "nop")
            if good or addr + isize(o) > 4096 * page + 56:
                lab = Op(f"L_pad{len(pads)}:", "label")
                br = Op("", "salu")
                pads.append(br)
                out += [lab, br]
                addr += 4
                page += 1
        out.append(o)
        addr += isize(o)
    assert len(pads) >= 4
    for k, br in enumerate(pads):
        br.text = f"s_cbranch_execz L_pad{k + 4}" if k + 4 < len(pads) else "s_cbranch_execz L_main"
    return out


class Pool:
    def __init__(self, prefix, bases):
        self.prefix = prefix
        self.rel = {b: -1 for b in bases}

    def add(self, base, release):
        self.rel[base] = release

    def take(self, release):
        b = min(self.rel, key=lambda k: (self.rel[k], k))
        prev = self.rel[b]
        self.rel[b] = release
        return b, prev


def build(a):
    groups = [int(x) for x in a.groups.split(",")]
    assert sum(groups) == 32 and all(g % 2 == 0 for g in groups)
    G = len(groups)
    gstart = [sum(groups[:g]) for g in range(G + 1)]
    ones_x = [int(c) for c in a.ones if c.isdigit()]
    oacc_x = [int(c) for c in a.oacc if c.isdigit()]
    addx = [x for x in range(4) if x not in ones_x]
    ld, st = a.ld, a.st
    PK = 2 * a.prek
    flag = a.sync == "flag"
    E = Emitter()
    e = E.raw

    vK, vV = 1, [2, 3, 4, 5]
    vDK, vDV = (6, 7), (11, 0)
    vOW, vOR, vOG = 8, 9, 10
    vRL = [12, 13, 14, 15]
    vFW, vFR, vFE, vFT = 12, 13, 14, 15
    NM = [16 + 4 * x for x in range(4)]
    vnext, anext, vtop = 32, 0, 256
    Lreg = {}
    for x in ones_x:
        Lreg[x] = anext
        anext += 4
    if addx:
        for i, x in enumerate(addx):
            Lreg[x] = vnext + i
        vnext += 4
    Sreg = [vnext + 4 * i for i in range(a.ns)]
    vnext += 4 * a.ns
    Oreg = {}
    for x in range(4):
        if x in oacc_x:
            Oreg[x] = ("a", anext)
            anext += 32
        else:
            vtop -= 32
            Oreg[x] = ("v", vtop)
    Pbases = list(range(vnext, vtop, 4))
    Qreg = [[anext + 16 * x + 4 * s for s in range(4)] for x in range(4)]
    anext += 64
    aONE = anext
    anext += 4
    Fbases = list(range(anext, 256, 4))
    QT = Pbases[-7]
    UT = QT + 16
    vLN, vQA, vT1, vT2 = QT + 24, QT + 25, QT + 26, QT + 27
    assert len(Pbases) >= 7 + 4 * a.prek

    sQ, sK, sV, sO = 12, 16, 20, 24
    sW, sWG, sMODE, sC, sTHR, sQW, sTMP, sT2 = 3, 28, 29, 30, 31, 34, 35, 32
    sWS = 36
    sOFF = 64
    sX = 80
    sQO = 84
    sBAD = 88

    NK = 16
    q0 = a.q0
    vwin = [NK, NK + 16]

    qk_units = [(j, x) for x in range(4) for j in range(PK)] + [(j, x) for j in range(PK, 32) for x in range(4)]
    uidx = {u: i for i, u in enumerate(qk_units)}
    assert gstart[a.prev + 1] >= PK >= gstart[a.prev]
    pvq = []
    for g in range(G):
        if g < a.prev:
            for x in range(4):
                u = ([("sum", g, None, x)] if x in ones_x else []) + [("pv", g, b, x) for b in range(8)]
                pvq += [(PK * (x + 1) - 0.5, w) for w in u]
            continue
        if g < G - 1:
            u = [("sum", g, None, x) for x in ones_x] + [("pv", g, b, x) for b in range(8) for x in range(4)]
        else:
            u = []
            for xs in [[int(c) for c in part] for part in a.final.split(",")]:
                u += [("sum", g, None, x) for x in xs if x in ones_x]
                u += [("pv", g, b, x) for b in range(8) for x in xs]
        lo = 4 * gstart[g + 1] + a.lag
        hi = 4 * gstart[min(g + 2, G)] + a.lag
        pvq += [(lo + (hi - lo) * i / len(u) if g < G - 1 else 10 ** 6, w) for i, w in enumerate(u)]
    pvq.sort(key=lambda p: p[0])
    seq, pi = [], 0
    for ui, (j, x) in enumerate(qk_units):
        while pi < len(pvq) and pvq[pi][0] < ui:
            seq.append(pvq[pi][1])
            pi += 1
        seq.append(("qk", j, x))
    seq += [u for _, u in pvq[pi:]]

    M = []
    for u in seq:
        if u[0] == "qk":
            M += [("qk", u[1], u[2], s) for s in range(4)]
        else:
            M += [(u[0], u[1], u[2], u[3], k) for k in range(groups[u[1]] // 2)]
    NMF = len(M)
    first_use, last_use = {}, {}

    def use(key, i):
        first_use.setdefault(key, i)
        last_use[key] = i

    for i, m in enumerate(M):
        if m[0] == "qk":
            _, j, x, s = m
            use(("K", j, s), i)
            use(("S", j, x), i)
            use(("Q", x, s), i)
        else:
            kind, g, b, x, k = m
            kap = gstart[g] // 2 + k
            use(("P", kap, x), i)
            if kind == "pv":
                use(("V", kap, b), i)
                use(("O", x, b), i)
            else:
                use(("L", x), i)
    qgap = {first_use["S", 0, x] - 1: x for x in range(4)}
    G0 = first_use["S", 0, 3] - 1

    ppool = Pool("v", Pbases)
    for b in Pbases[-7:]:
        ppool.add(b, G0 + 1)
    Preg, Pfree = {}, {}
    for kap, x in sorted([(k, x) for k in range(16) for x in range(4)], key=lambda p: uidx[2 * p[0], p[1]]):
        Preg[kap, x], Pfree[kap, x] = ppool.take(last_use["P", kap, x])
    fpool = Pool("a", Fbases)
    for x in range(4):
        for s in range(4):
            fpool.add(Qreg[x][s], last_use["Q", x, s])
    frags = sorted([k for k in first_use if k[0] in "KV"], key=lambda k: first_use[k])
    Freg, Ffree = {}, {}
    for k in frags:
        Freg[k], Ffree[k] = fpool.take(last_use[k])
        assert Ffree[k] < first_use[k] - a.lat or Ffree[k] < 0, ("frag pool too small", k)

    mf = []
    started = set()
    for i, m in enumerate(M):
        if m[0] == "qk":
            _, j, x, s = m
            S = Sreg[uidx[j, x] % a.ns]
            A, B = Freg["K", j, s], Qreg[x][s]
            if s == 0:
                C, cr = ("0", []) if j < a.nc0 else (rr("v", NM[x], 4), regs("v", NM[x], 4))
            else:
                C, cr = rr("v", S, 4), regs("v", S, 4)
            mf.append(Op(f"v_mfma_f32_16x16x32_bf16 {rr('v', S, 4)}, {rr('a', A, 4)}, {rr('a', B, 4)}, {C}", "mfma",
                         rd=regs("a", A, 4) + regs("a", B, 4) + cr, wr=regs("v", S, 4), srcc=cr))
        else:
            kind, g, b, x, k = m
            kap = gstart[g] // 2 + k
            if kind == "pv":
                p, o = Oreg[x][0], Oreg[x][1] + 4 * b
                A = Freg["V", kap, b]
                key = ("O", x, b)
            else:
                p, o, A, key = "a", Lreg[x], aONE, ("L", x)
            B = Preg[kap, x]
            C, cr = (rr(p, o, 4), regs(p, o, 4)) if key in started else ("0", [])
            started.add(key)
            mf.append(Op(f"v_mfma_f32_16x16x32_bf16 {rr(p, o, 4)}, {rr('a', A, 4)}, {rr('v', B, 4)}, {C}", "mfma",
                         rd=regs("a", A, 4) + regs("v", B, 4) + cr, wr=regs(p, o, 4), srcc=cr))

    tile_first = {}
    for d in range(16):
        tile_first["K", d] = first_use["K", 2 * d, 0]
        tile_first["V", d] = min(first_use["V", d, b] for b in range(8))
    dma_order = sorted(tile_first, key=lambda t: (tile_first[t], t[1]))
    pre_tiles = [t for t in dma_order if tile_first[t] <= G0]
    merge = [int(x) for x in a.merge.split(",")]
    wins = [int(x) for x in a.win.split(",")]
    nbar = a.nbar if flag else 99
    epochs, pub = [], {t: -1 for t in pre_tiles}
    for t in dma_order[len(pre_tiles):]:
        k = len(epochs)
        gc = max(tile_first[t] - wins[min(k, len(wins) - 1)], G0 + 1)
        if epochs and gc < epochs[-1]["gc"] + merge[min(k - 1, len(merge) - 1)]:
            epochs[-1]["tiles"].append(t)
        else:
            isbar = k < nbar
            epochs.append(dict(gc=gc, gr=gc - (0 if isbar else a.lat + 1), gs=gc - (0 if isbar else a.lat + 1 + a.skew),
                               tiles=[t], bar=isbar, n=k + 1))
            assert epochs[-1]["gs"] > G0 and (k == 0 or epochs[-1]["gr"] > epochs[-2]["gc"])
            assert k == 0 or epochs[-1]["gs"] > epochs[-2]["gs"]
        pub[t] = epochs[-1]["gc"]
    free_slots = {"K": [s for s in range(0, NK, 2) if not q0 <= s < q0 + 16],
                  "V": [s for s in range(NK, NSLOT, 2) if not q0 <= s < q0 + 16]}
    slot_of, dma_op = {}, {}
    tile_reads = {t: [] for t in tile_first}
    released = set()

    def slot_for(t):
        c = [s for s in free_slots[t[0]] if not (t[0] == "K" and t[1] >= 12 and s < 8)]
        if t[0] == "K" and 8 <= t[1] < 12:
            c.sort(key=lambda s: s >= 8)
        return c[0] if c else None

    def dma_pair(srd, vo, soff):
        return [Op(f"buffer_load_dwordx4 v{vo[i]}, s[{srd}:{srd + 3}], s{soff} offen{' offset:%d' % GRAN if i else ''} {ld} lds"
                   .replace("  ", " "), "vmem", rd=["m0", f"v{vo[i]}"]) for i in range(2)]

    def make_dma(t):
        sl = slot_for(t)
        free_slots[t[0]].remove(sl)
        slot_of[t] = sl
        srd, vo = (sK, vDK) if t[0] == "K" else (sV, vDV)
        pre = Op(f"s_add_u32 m0, s{sWG}, {sl * TILE}", "salu", wr=["m0"])
        ops = dma_pair(srd, vo, sOFF + t[1])
        dma_op[t] = ops[1]
        return pre, ops

    nstamp = [0]
    stampreg = list(range(40, 64, 2)) + [4, 6, 8, 10, 96, 98, 32, 100]

    def stamp(kind="m"):
        if a.stamps and (kind in a.stampat or kind == "x") and (nstamp[0] < 18 or kind == "x"):
            for k, ins in enumerate(("s_memrealtime", "s_memtime")):
                if a.stamps >> k & 1:
                    r = stampreg[nstamp[0]]
                    nstamp[0] += 1
                    e(f"{ins} s[{r}:{r + 1}]", "smem")

    def v(text, wr, rd=(), cls="valu"):
        return e(text, cls, rd=list(rd), wr=list(wr))

    def va(text):
        return v(text, [text.split()[1].rstrip(",")])

    BIAS = GRAN - 1024
    e("s_cmp_ge_u32 s2, 256")
    e("s_cbranch_scc1 L_end")
    if a.spin:
        e("s_memrealtime s[60:61]", "smem")
    e("s_load_dwordx8 s[4:11], s[0:1], 0", "smem")
    if a.stamps:
        e(f"s_load_dwordx2 s[{sWS}:{sWS + 1}], s[0:1], 40", "smem")
    if a.pfcode:
        e("s_getpc_b64 s[96:97]")
        E.label("L_pc")
        e("s_add_u32 s96, s96, L_main-L_pc")
        e("s_addc_u32 s97, s97, 0")
        e("s_mov_b32 s98, L_codeend-L_main")
        e("s_mov_b32 s99, 0x20000")
        e(f"s_lshr_b32 s{sTHR}, s2, 3")
        e(f"s_lshl_b32 s{sTHR}, s{sTHR}, 10")
        va("v_lshlrev_b32 v15, 2, v0")
        e(f"buffer_load_dword v{UT}, v15, s[96:99], s{sTHR} offen", "vmem", rd=["v15"], wr=[f"v{UT}"])
    va("v_lshrrev_b32 v12, 6, v0")
    va(f"v_and_b32 v{vLN}, 63, v0")
    v(f"v_readfirstlane_b32 s{sW}, v12", [f"s{sW}"], ["v12"])
    va(f"v_lshrrev_b32 v13, 4, v{vLN}")
    va("v_and_b32 v14, 2, v13")
    va(f"v_xor_b32 v14, v14, v{vLN}")
    va("v_lshlrev_b32 v14, 4, v14")
    va(f"v_lshl_add_u32 v{vDK[1]}, v12, 11, v14")
    va(f"v_add_u32 v{vDK[0]}, {BIAS}, v{vDK[1]}")
    va("v_and_b32 v14, 1, v13")
    va("v_lshlrev_b32 v14, 1, v14")
    va(f"v_xor_b32 v14, v14, v{vLN}")
    va("v_lshlrev_b32 v14, 4, v14")
    va(f"v_lshl_add_u32 v{vDV[1]}, v12, 11, v14")
    va(f"v_add_u32 v{vDV[0]}, {BIAS}, v{vDV[1]}")
    e(f"s_mul_i32 s{sWG}, s{sW}, {2 * GRAN}", rd=[f"s{sW}"])
    e(f"s_mul_i32 s{sQW}, s{sW}, {4 * TILE}")
    e(f"s_add_u32 s{sQW}, s{sQW}, {q0 * TILE}")
    e(f"s_mov_b32 s{sMODE}, 0")
    e(f"s_lshl_b32 s{sTMP}, s2, 2")
    e(f"s_add_u32 s{sTMP}, s{sTMP}, s{sW}")
    e(f"s_lshl_b32 s{sTMP}, s{sTMP}, 14")
    e(f"s_lshl_b32 s{sC}, s2, 17")
    e(f"s_lshl_b32 s{sT2}, s{sW}, 11")
    e(f"s_add_u32 s{sQ + 2}, s{sT2}, {16384 + BIAS}")
    e(f"s_sub_u32 s{sT2}, s{sTMP}, s{sT2}")
    for d, size in ((sK, 131072 + BIAS), (sV, 131072 + BIAS), (sO, 16384)):
        e(f"s_mov_b32 s{d + 2}, {size}")
    for d in (sQ, sK, sV, sO):
        e(f"s_mov_b32 s{d + 3}, 0x20000")
    def set_off(j):
        if a.rot and j:
            e(f"s_xor_b32 s{sOFF + j}, s{sOFF}, {j * 8192}")
        elif a.rot:
            e(f"s_lshr_b32 s{sOFF}, s2, {a.rot - 1}")
            e(f"s_lshl_b32 s{sOFF}, s{sOFF}, 13")
            e(f"s_and_b32 s{sOFF}, s{sOFF}, 0x1ffff")
        else:
            e(f"s_mov_b32 s{sOFF + j}, {j * 8192}")

    for j in range(a.prek):
        set_off(j)
    e("s_waitcnt lgkmcnt(0)", "wait")
    for d, p, o in ((sK, 6, sC), (sQ, 4, sT2), (sV, 8, sC), (sO, 10, sTMP)):
        e(f"s_add_u32 s{d}, s{p}, s{o}")
        e(f"s_addc_u32 s{d + 1}, s{p + 1}, 0")
        if d != sO:
            e(f"s_sub_u32 s{d}, s{d}, {BIAS}")
            e(f"s_subb_u32 s{d + 1}, s{d + 1}, 0")
    stamp("x")
    E.label("L_start")
    di = 0
    qdma = {}
    pro_q = ([("t",)] * len(pre_tiles) + [("q", x, g) for x in range(4) for g in range(2)] + [("t",)] * a.ninit)

    def topup(limit):
        nonlocal di
        while pro_q and E.nvm - E.vm_done < limit:
            it = pro_q.pop(0)
            if it[0] == "t":
                pre, ops = make_dma(dma_order[di])
                di += 1
                for o in [pre] + ops:
                    E.emit(o)
            else:
                _, x, g = it
                e(f"s_add_u32 m0, s{sQW}, {x * TILE + 2 * g * GRAN}", wr=["m0"])
                so = sQO + (2 * x + g) % 4
                e(f"s_movk_i32 s{so}, {x * 4096 + g * 2048}")
                for o in dma_pair(sQ, vDK, so):
                    qdma[x, g] = E.emit(o)

    topup(a.infl)
    for j in range(a.prek, 16):
        set_off(j)
    for j in range(4):
        e(f"s_movk_i32 s{sX + j}, {j * 4096}")
    va(f"v_mbcnt_lo_u32_b32 v{vLN}, -1, 0")
    va(f"v_mbcnt_hi_u32_b32 v{vLN}, -1, v{vLN}")
    e(f"s_mov_b32 s{sC}, {f32bits(math.log2(math.e) / math.sqrt(128.0)):#x}")
    e(f"s_mov_b32 s{sTHR}, {f32bits(2.0 ** 32):#x}")
    va(f"v_and_b32 v12, 3, v{vLN}")
    va(f"v_bfe_u32 v13, v{vLN}, 2, 2")
    va(f"v_lshrrev_b32 v14, 4, v{vLN}")
    va(f"v_mul_u32_u24 v{vK}, {GRAN}, v12")
    va(f"v_lshl_add_u32 v{vK}, v13, 8, v{vK}")
    va("v_and_b32 v15, 2, v13")
    va("v_xor_b32 v15, v15, v14")
    va(f"v_lshl_add_u32 v{vK}, v15, 4, v{vK}")
    va(f"v_add_u32 v{vQA}, s{sQW}, v{vK}")
    va(f"v_mul_u32_u24 v{vV[0]}, {GRAN}, v13")
    va(f"v_lshl_add_u32 v{vV[0]}, v14, 8, v{vV[0]}")
    va(f"v_lshl_add_u32 v{vV[0]}, v12, 3, v{vV[0]}")
    va("v_and_b32 v15, 1, v14")
    va(f"v_lshl_add_u32 v{vV[0]}, v15, 5, v{vV[0]}")
    va(f"v_xor_b32 v{vV[1]}, 32, v{vV[0]}")
    va(f"v_add_u32 v{vV[2]}, {vwin[1] * TILE}, v{vV[0]}")
    va(f"v_add_u32 v{vV[3]}, {vwin[1] * TILE}, v{vV[1]}")
    va(f"v_add_u32 v{vV[0]}, {vwin[0] * TILE}, v{vV[0]}")
    va(f"v_add_u32 v{vV[1]}, {vwin[0] * TILE}, v{vV[1]}")
    e(f"s_mul_i32 s{sTMP}, s{sW}, {2 * TILE}")
    va(f"v_and_b32 v15, 15, v{vLN}")
    va(f"v_mul_u32_u24 v{vOW}, 272, v15")
    va(f"v_lshl_add_u32 v{vOW}, v14, 3, v{vOW}")
    va(f"v_add_u32 v{vOW}, s{sTMP}, v{vOW}")
    va("v_lshlrev_b32 v13, 2, v14")
    va("v_sub_u32 v15, v15, v13")
    va("v_and_b32 v15, 15, v15")
    va("v_lshlrev_b32 v15, 4, v15")
    va(f"v_lshl_add_u32 v{vOG}, v14, 8, v15")
    va(f"v_mul_u32_u24 v{vOR}, {GRAN}, v14")
    va(f"v_add3_u32 v{vOR}, v{vOR}, v15, s{sTMP}")
    va("v_mov_b32 v15, 0x3f803f80")
    for i in range(4):
        v(f"v_accvgpr_write_b32 a{aONE + i}, v15", [f"a{aONE + i}"], ["v15"])
    for x in range(4):
        va(f"v_mov_b32 v{NM[x]}, 0xff800000")
    for x in addx:
        va(f"v_mov_b32 v{Lreg[x]}, 0")
    if flag:
        e(f"s_lshl_b32 s{sTMP}, s{sW}, 8")
        e(f"s_add_u32 s{sTMP}, s{sTMP}, {SYNC_OFF}")
        va(f"v_lshlrev_b32 v{vFE}, 2, v{vLN}")
        va(f"v_lshl_add_u32 v{vFR}, v12, 8, v{vFE}")
        va(f"v_add_u32 v{vFR}, {SYNC_OFF}, v{vFR}")
        va(f"v_add_u32 v{vFW}, s{sTMP}, v{vFE}")
        va(f"v_mov_b32 v{vFE}, 0")
        e(f"ds_write_b32 v{vFW}, v{vFE}", "ldsw", rd=[f"v{vFW}", f"v{vFE}"])
        E.lds_drain()
    if a.pads:
        e("s_mov_b64 exec, 0")
        for w in range(3):
            e(f"s_cmp_eq_u32 s{sW}, {w}")
            e(f"s_cbranch_scc1 L_pad{w}")
        e("s_branch L_pad3")
        E.out.append(Op(".p2align 12", "label"))
    E.label("L_main")
    if a.pads:
        e("s_mov_b64 exec, -1")

    def finalize_read(op):
        if op.text is not None:
            return
        if op.tag[0] == "K":
            _, j, s = op.tag
            off = (slot_of["K", j // 2] + j % 2) * TILE + 64 * s
            assert off < 65536
            op.text = f"ds_read_b128 {rr('a', Freg['K', j, s], 4)}, v{vK} offset:{off}"
        else:
            _, kap, b, tau = op.tag
            sl = slot_of["V", kap] + tau
            w = 0 if sl < vwin[1] else 1
            off = (sl - vwin[w]) * TILE + 64 * (b >> 1)
            assert off < 65536
            av = vV[2 * w + (b & 1)]
            op.rd = [f"v{av}"]
            op.text = f"ds_read_b64_tr_b16 {rr('a', Freg['V', kap, b] + 2 * tau, 2)}, v{av} offset:{off}"

    kr = {(j, s): Op(None, "ldsr", rd=[f"v{vK}"], wr=regs("a", Freg["K", j, s], 4), tag=("K", j, s))
          for j in range(32) for s in range(4)}
    vr = {(kap, b, t): Op(None, "ldsr", wr=regs("a", Freg["V", kap, b] + 2 * t, 2), tag=("V", kap, b, t))
          for kap in range(16) for b in range(8) for t in range(2)}
    for (j, s), op in kr.items():
        tile_reads["K", j // 2].append(op)
    for (kap, b, t), op in vr.items():
        tile_reads["V", kap].append(op)

    for t in pre_tiles:
        E.vm_wait([dma_op[t]])
        topup(a.infl)
    e("s_barrier", "barrier")
    for t in pre_tiles:
        for op in tile_reads[t]:
            finalize_read(op)
            E.emit(op)
    e(f"s_cmp_lg_u32 s{sMODE}, 0")
    e("s_cbranch_scc1 L_maxpass")
    E.label("L_maxdone")

    def q_scale(x, s):
        for i in range(4):
            src, t = QT + 4 * s + i, UT + 2 * i
            v(f"v_lshlrev_b32 v{t}, 16, v{src}", [f"v{t}"], [f"v{src}"])
            v(f"v_and_b32 v{t + 1}, 0xffff0000, v{src}", [f"v{t + 1}"], [f"v{src}"])
        for i in range(4):
            t = UT + 2 * i
            v(f"v_pk_mul_f32 {rr('v', t, 2)}, {rr('v', t, 2)}, s[{sC}:{sC + 1}] op_sel_hi:[1,0]", regs("v", t, 2),
              regs("v", t, 2))
        for i in range(4):
            v(f"v_cvt_pk_bf16_f32 v{UT + 2 * i}, v{UT + 2 * i}, v{UT + 2 * i + 1}", [f"v{UT + 2 * i}"],
              [f"v{UT + 2 * i}", f"v{UT + 2 * i + 1}"])
        for i in range(4):
            v(f"v_accvgpr_write_b32 a{Qreg[x][s] + i}, v{UT + 2 * i}", [f"a{Qreg[x][s] + i}"], [f"v{UT + 2 * i}"])

    def q_prepare(x):
        if a.halftop:
            E.vm_wait([qdma[x, 0]])
            topup(a.infl)
        E.vm_wait([qdma[x, 1]])
        stamp("q")
        rds = [e(f"ds_read_b128 {rr('v', QT + 4 * s, 4)}, v{vQA} offset:{x * TILE + 64 * s}", "ldsr",
                 rd=[f"v{vQA}"], wr=regs("v", QT + 4 * s, 4)) for s in range(4)]
        topup(a.infl if x < 3 else 99)
        for s in range(4):
            E.lds_wait([rds[s]])
            q_scale(x, s)

    def first_max_ops(x):
        n = NM[x]
        ops = []

        def add(text, wr, rd, dist=0, deps=()):
            ops.append(Op(text, "valu", rd=rd, wr=wr, deps=([(ops[-1], dist)] if ops else []) + list(deps)))

        for j in range(a.nmax):
            S = Sreg[uidx[j, x] % a.ns]
            for r in (S, S + 2):
                add(f"v_max3_f32 v{n}, v{r}, v{r + 1}, v{n}", [f"v{n}"], [f"v{r}", f"v{r + 1}", f"v{n}"],
                    deps=[(mf[last_use["S", j, x]], 8)])
        for sw in ("v_permlane32_swap_b32", "v_permlane16_swap_b32"):
            add(f"v_mov_b32 v{n + 1}, v{n}", [f"v{n + 1}"], [f"v{n}"])
            add(f"{sw} v{n + 1}, v{n}", [f"v{n}", f"v{n + 1}"], [f"v{n}", f"v{n + 1}"], 2)
            add(f"v_max_f32 v{n}, v{n}, v{n + 1}", [f"v{n}"], [f"v{n}", f"v{n + 1}"])
        for i in (1, 2, 3, 0):
            add(f"v_mul_f32 v{n + i}, -1.0, v{n}", [f"v{n + i}"], [f"v{n}"])
        return ops

    F = []
    ladds = {x: [] for x in range(4)}
    nmdone = {}
    for u, (j, x) in enumerate(qk_units):
        S = Sreg[u % a.ns]
        prod = mf[last_use["S", j, x]]
        sdead = first_use[("S",) + qk_units[u + a.ns]] - 1 if u + a.ns < 128 else 10 ** 9
        kap = j // 2
        pdead = max(min(sdead, first_use["P", kap, x] - 2), last_use["S", j, x])
        assert pdead < first_use["P", kap, x]
        if j == 0:
            mops = first_max_ops(x)
            for k, o in enumerate(mops):
                o.dead = max(min(pdead, first_use["S", a.nc0, x] - 2), last_use["S", a.nmax - 1, x])
                assert o.dead < first_use["S", a.nc0, x]
                o.prio = (-1, u, k)
            nmdone[x] = mops[-4]
            F += mops
        ex = []
        for i in range(4):
            op = Op(f"v_exp_f32 v{S + i}, v{S + i}", "trans", rd=[f"v{S + i}"], wr=[f"v{S + i}"],
                    deps=[(prod, 8)], dead=pdead)
            op.prio = (pdead - 4 + i, u, 3 * i)
            if j < a.nc0:
                n = NM[x] + 1
                sub = Op(f"v_add_f32 v{S + i}, v{S + i}, v{n}", "valu", rd=[f"v{S + i}", f"v{n}"], wr=[f"v{S + i}"],
                         deps=[(nmdone[x], 0), (prod, 8)], dead=pdead)
                sub.prio = (pdead - 5 + i, u, 3 * i)
                F.append(sub)
                op.deps.append((sub, 0))
            ex.append(op)
            F.append(op)
            if x in addx:
                ad = Op(f"v_add_f32 v{Lreg[x]}, v{Lreg[x]}, v{S + i}", "valu", rd=[f"v{S + i}", f"v{Lreg[x]}"],
                        wr=[f"v{Lreg[x]}"], deps=[(op, 1)], dead=min(sdead, pdead + 8))
                ad.prio = (pdead - 4 + i, u, 3 * i + 2)
                F.append(ad)
                ladds[x].append(ad)
            if i % 2:
                P = Preg[kap, x] + 2 * (j % 2) + i // 2
                cv = Op(f"v_cvt_pk_bf16_f32 v{P}, v{S + i - 1}, v{S + i}", "valu",
                        rd=[f"v{S + i - 1}", f"v{S + i}"], wr=[f"v{P}"], deps=[(ex[i - 1], 1), (op, 1)],
                        early=Pfree[kap, x], dead=pdead)
                assert Pfree[kap, x] <= pdead, ("P pool too small", kap, x)
                cv.prio = (pdead - 4 + i, u, 3 * i + 1)
                F.append(cv)
    lastsm = F[-12 * a.ns:]
    for key, op in [(("K",) + k, o) for k, o in kr.items()] + [(("V",) + k[:2], o) for k, o in vr.items()]:
        fu = first_use[key]
        mf[fu].needs.append(op)
        if op.idx is None:
            op.early = max(Ffree[key], pub[key[0], key[1] // 2 if key[0] == "K" else key[1]], fu - a.hoist)
            op.dead = max(fu - a.lat, op.early)
            assert op.dead < fu
            op.prio = (op.dead - a.rdbias, -1, fu)
            F.append(op)

    tq = Sreg + NM
    tfree = {b: None for b in tq}
    tdead = max(last_use["S", 31, x] for x in range(4))
    lastsync = epochs[-1]["gc"] + 1
    epi_order = [int(c) for c in a.final if c.isdigit()]
    seqn = [0]
    stage_w, stage_r, mulpair = [], {}, {}

    def epi(text, cls, **kw):
        op = Op(text, cls, **kw)
        seqn[0] += 1
        op.prio = (10 ** 8, seqn[0], 0)
        F.append(op)
        return op

    for xi, x in enumerate(epi_order):
        rl, L = vRL[x], Lreg[x]
        if x in ones_x:
            prev = epi(f"v_accvgpr_read_b32 v{rl}, a{L}", "valu", rd=[f"a{L}"], wr=[f"v{rl}"],
                       deps=[(mf[last_use["L", x]], 8)], early=lastsync)
            L = rl
        else:
            prev = None
            for sw in ("v_permlane32_swap_b32", "v_permlane16_swap_b32"):
                m1 = epi(f"v_mov_b32 v{rl}, v{L}", "valu", rd=[f"v{L}"], wr=[f"v{rl}"], early=lastsync,
                         deps=[(prev, 0)] if prev else [(o, 0) for o in ladds[x][-16:]])
                m2 = epi(f"{sw} v{rl}, v{L}", "valu", rd=[f"v{L}", f"v{rl}"], wr=[f"v{L}", f"v{rl}"], deps=[(m1, 2)])
                prev = epi(f"v_add_f32 v{L}, v{L}, v{rl}", "valu", rd=[f"v{L}", f"v{rl}"], wr=[f"v{L}"], deps=[(m2, 0)])
        cm = epi(f"v_cmp_nge_f32 s[{sBAD + 2 * x}:{sBAD + 2 * x + 1}], s{sTHR}, v{L}", "valu", rd=[f"v{L}"],
                 wr=[f"s{sBAD + 2 * x}"], deps=[(prev, 0)])
        rc = epi(f"v_rcp_f32 v{rl}, v{L}", "trans", rd=[f"v{L}"], wr=[f"v{rl}"], deps=[(cm, 0)])
        p, ob = Oreg[x]
        so = (xi % 2) * TILE
        wrs = []
        for b in range(8):
            prod = mf[last_use["O", x, b]]
            o = ob + 4 * b
            if p == "a":
                t = tq.pop(0)
                tq.append(t)
                dep0 = [(d, 0) for d in (tfree[t] or lastsm)]
                src4 = [[(epi(f"v_accvgpr_read_b32 v{t + i}, a{o + i}", "valu", rd=[f"a{o + i}"], wr=[f"v{t + i}"],
                              deps=[(prod, 8)] + dep0, early=tdead + 1), 0)] for i in range(4)]
            else:
                t = o
                src4 = [[(prod, 8)] for i in range(4)]
            mu = [epi(f"v_mul_f32 v{t + i}, v{rl}, v{t + i}", "valu", rd=[f"v{rl}", f"v{t + i}"], wr=[f"v{t + i}"],
                      deps=src4[i] + [(rc, 1)]) for i in range(4)]
            for i in (0, 2):
                sel = "op_sel:[0,1] op_sel_hi:[1,1]" if rl % 2 else "op_sel_hi:[1,0]"
                mulpair[mu[i]] = (mu[i + 1], f"v_pk_mul_f32 {rr('v', t + i, 2)}, {rr('v', t + i, 2)}, "
                                             f"{rr('v', rl & ~1, 2)} {sel}")
            c0 = epi(f"v_cvt_pk_bf16_f32 v{t}, v{t}, v{t + 1}", "valu", rd=[f"v{t}", f"v{t + 1}"], wr=[f"v{t}"],
                     deps=[(mu[0], 0), (mu[1], 0)])
            c1 = epi(f"v_cvt_pk_bf16_f32 v{t + 1}, v{t + 2}, v{t + 3}", "valu", rd=[f"v{t + 2}", f"v{t + 3}"],
                     wr=[f"v{t + 1}"], deps=[(mu[2], 0), (mu[3], 0), (c0, 0)])
            w = epi(f"ds_write_b64 v{vOW}, {rr('v', t, 2)} offset:{so + 32 * b}", "ldsw",
                    rd=[f"v{vOW}", f"v{t}", f"v{t + 1}"], early=10 ** 9,
                    deps=[(c0, 0), (c1, 0)] + [(r, 0) for r in stage_r.get(xi - 2, [])])
            wrs.append(w)
            stage_w.append(w)
            if p == "a":
                tfree[t] = [w]
        stage_r[xi] = [epi(f"ds_read_b128 {rr(p, ob + 4 * i, 4)}, v{vOR} offset:{so + 272 * i}", "ldsr",
                           rd=[f"v{vOR}"], wr=regs(p, ob + 4 * i, 4), deps=[(w, 0) for w in wrs]) for i in range(4)]
        for i, r in enumerate(stage_r[xi]):
            off = f" offset:{i * 1024}" if i else ""
            epi(f"buffer_store_dwordx4 {rr(p, ob + 4 * i, 4)}, v{vOG}, s[{sO}:{sO + 3}], s{sX + x} offen{off} {st}".rstrip(),
                "vmem", rd=regs(p, ob + 4 * i, 4) + [f"v{vOG}"], deps=[(r, a.stdist)], needs=[r])

    pending = sorted(F, key=lambda o: o.prio)
    overflow = 0
    leads = []

    def ready(op, strict=True):
        if op.early > E.gap:
            return False
        for d, dist in op.deps:
            if d.idx is None or (strict and E.nst - d.st < dist):
                return False
        return True

    def put(op):
        if op.cls == "ldsr":
            finalize_read(op)
        if op.needs:
            E.lds_wait(op.needs)
        E.emit(op)
        pending.remove(op)

    def closure(op, acc):
        assert op.early <= E.gap, ("cannot meet deadline", op.text, op.tag, op.early, E.gap)
        for d, _ in op.deps:
            if d.idx is None and d not in acc:
                assert d.cls != "mfma", ("deadline before producer", op.text, E.gap)
                closure(d, acc)
        if op not in acc:
            acc.append(op)

    def drain(merge_mul=False):
        while True:
            cand = [o for o in pending if ready(o)] or [o for o in pending if ready(o, False)]
            if not cand:
                return
            o = cand[0]
            if merge_mul and o in mulpair and mulpair[o][0].idx is None and ready(mulpair[o][0], False):
                o2, o.text = mulpair[o]
                o.rd += o2.rd
                o.wr += o2.wr
                put(o)
                o2.idx, o2.st = o.idx, o.st
                pending.remove(o2)
            else:
                put(o)

    def signal(ep):
        for t in ep["tiles"]:
            assert t in dma_op and dma_op[t].idx is not None, ("tile not issued before its epoch", t, ep)
            leads.append(E.gap - dma_op[t].gap)
        stamp("b")
        E.vm_wait([dma_op[t] for t in ep["tiles"]])
        stamp("w")
        ep["rel"] = [t for t, rs in tile_reads.items() if t not in released and t in slot_of and
                     all(r.idx is not None and (not ep["bar"] or r.ldsn < E.lds_done) for r in rs)]
        released.update(ep["rel"])

    def passed(ep):
        if ep["n"] == 1:
            for s in range(q0, q0 + 16, 2):
                free_slots["K" if s < NK else "V"].append(s)
        for t in ep["rel"]:
            free_slots[t[0]].append(slot_of[t])
        if ("K", 11) in slot_of and all(s in free_slots["K"] for s in range(0, 8, 2)):
            for w in stage_w:
                w.early = min(w.early, E.gap)

    dper = [int(x) for x in a.dmaper.split(",")]
    next_dma_gap = G0 + a.dma0
    staged = None
    for g in range(-1, NMF):
        E.gap = g
        if g >= 0:
            E.emit(mf[g])
        if g in qgap:
            drain()
            q_prepare(qgap[g])
            if g == G0:
                stamp()
            E.lds_wait(mf[g + 1].needs)
            continue
        shadow = True
        budget = 8 if g < tdead + a.fstart else a.fbudget
        fixed_mem, fixed_valu = [], []
        for ep in epochs:
            if ep["bar"]:
                if g == ep["gc"]:
                    signal(ep)
                    e("s_barrier", "barrier")
                    stamp("b")
                    passed(ep)
                    shadow = False
                continue
            if g == ep["gs"] - 1:
                fixed_valu.append(Op(f"v_mov_b32 v{vFE}, {ep['n']}", "valu", wr=[f"v{vFE}"]))
            if g == ep["gs"]:
                signal(ep)
                shadow = False
                E.emit(Op(f"ds_write_b32 v{vFW}, v{vFE}", "ldsw", rd=[f"v{vFW}", f"v{vFE}"]))
                budget -= 8
            if g == ep["gr"]:
                ep["rd"] = Op(f"ds_read_b32 v{vFT}, v{vFR}", "ldsr", rd=[f"v{vFR}"], wr=[f"v{vFT}"])
                fixed_mem.append(ep["rd"])
            if g == ep["gc"] - 1:
                if E.lds_wait([ep["rd"]], a.lat):
                    shadow = False
                fixed_valu.append(Op(f"v_cmp_gt_u32 vcc, {ep['n']}, v{vFT}", "valu", rd=[f"v{vFT}"], wr=["vcc"]))
            if g == ep["gc"]:
                e(f"s_cbranch_vccnz L_spin{ep['n']}")
                E.label(f"L_ok{ep['n']}")
                passed(ep)
                shadow = False
        if a.stamps and g in [first_use["S", gs, 0] for gs in (4, 8, 12, 16, 20, 24, 28)] + [tdead]:
            stamp()
        if g > G0 and (g - G0) % a.stampper == 1:
            stamp("p")
        if g + 1 < NMF and mf[g + 1].needs and all(n.idx is not None for n in mf[g + 1].needs):
            if E.lds_wait(mf[g + 1].needs, a.lat):
                shadow = False
        quiet = not any(not ep["bar"] and g + 1 in (ep["gs"] - 1, ep["gs"], ep["gr"], ep["gc"] - 1) for ep in epochs)
        if staged is not None:
            for o in staged:
                E.emit(o)
            staged = None
            budget -= a.dmacost
        elif shadow and quiet and di < len(dma_order) and g >= next_dma_gap and slot_for(dma_order[di]) is not None:
            pre, staged = make_dma(dma_order[di])
            di += 1
            E.emit(pre)
            next_dma_gap = max(next_dma_gap, g - 4) + dper[0]
            if len(dper) > 1:
                dper.pop(0)
        budget -= 4 * (len(fixed_mem) + len(fixed_valu))
        full = budget >= 8
        picks = []
        for o in pending:
            if o.dead <= g:
                closure(o, picks)
        budget -= sum(COST[o.cls] for o in picks)
        cand = [o for o in pending[:400] if o not in picks and ready(o)]
        if full and not picks and cand:
            first = cand[0]
            small = [o for o in cand if COST[o.cls] == 4]
            tr = [o for o in cand if o.cls == "trans"]
            if COST[first.cls] == 4 and len(small) < 2 and tr:
                first = tr[0]
            picks.append(first)
            budget -= COST[first.cls]
        for o in cand:
            if o not in picks and COST[o.cls] <= budget:
                picks.append(o)
                budget -= COST[o.cls]
        mem = [o for o in picks if o.cls in ("ldsr", "ldsw", "vmem") and all(d.idx is not None for d, _ in o.deps)]
        rest = [o for o in picks if o not in mem]
        for o in fixed_mem:
            E.emit(o)
        for o in mem:
            put(o)
        for o in fixed_valu:
            E.emit(o)
        while rest:
            o = ([o for o in rest if ready(o)] or [o for o in rest if ready(o, False)])[0]
            put(o)
            rest.remove(o)
        while budget > 0:
            more = [o for o in pending[:400] if o.cls == "valu" and ready(o)]
            if not more:
                break
            put(more[0])
            budget -= 4
        if full and not picks and budget >= 8 and any(ready(o, False) for o in pending[:400]):
            e("s_nop 1", "nop")
        if a.dbgnop:
            n0, n1, ev, ln = [int(x) for x in a.dbgnop.split(",")]
            if n0 <= g < n1 and g % ev == 0:
                e(f"s_nop {ln}", "nop")
        if g > G0:
            overflow += max(0, -budget)
        if g + 1 < NMF and mf[g + 1].needs:
            E.lds_wait(mf[g + 1].needs)
    assert staged is None and di == len(dma_order) and not pro_q
    stamp()
    ntail = len(pending)
    drain(a.pk)
    assert not pending
    stamp()

    e(f"s_or_b64 s[{sBAD}:{sBAD + 1}], s[{sBAD}:{sBAD + 1}], s[{sBAD + 2}:{sBAD + 3}]")
    e(f"s_or_b64 s[{sBAD + 4}:{sBAD + 5}], s[{sBAD + 4}:{sBAD + 5}], s[{sBAD + 6}:{sBAD + 7}]")
    e(f"s_or_b64 s[{sBAD}:{sBAD + 1}], s[{sBAD}:{sBAD + 1}], s[{sBAD + 4}:{sBAD + 5}]")
    e(f"s_cselect_b32 s{sTMP}, 1, 0")
    e(f"s_lshl_b32 s{sC}, s{sW}, 2")
    e(f"s_add_u32 s{sC}, s{sC}, {FLAG_OFF}")
    va(f"v_mov_b32 v12, s{sC}")
    va(f"v_mov_b32 v13, s{sTMP}")
    va(f"v_mov_b32 v14, {FLAG_OFF}")
    e("ds_write_b32 v12, v13", "ldsw", rd=["v12", "v13"])
    E.lds_drain()
    e("s_barrier", "barrier")
    e("ds_read_b128 v[16:19], v14", "ldsr", rd=["v14"], wr=regs("v", 16, 4))
    E.lds_drain()
    v("v_or3_b32 v16, v16, v17, v18", ["v16"], regs("v", 16, 3))
    v("v_or_b32 v16, v16, v19", ["v16"], ["v16", "v19"])
    v(f"v_readfirstlane_b32 s{sTMP}, v16", [f"s{sTMP}"], ["v16"])
    e(f"s_andn2_b32 s{sTMP}, s{sTMP}, s{sMODE}", rd=[f"s{sTMP}"])
    e("s_cbranch_scc1 L_rerun")
    if a.stamps:
        e("s_waitcnt vmcnt(0)", "wait")
        stamp("x")
        E.lds_drain()
        e(f"s_mov_b32 s{sWS + 2}, 1048576")
        e(f"s_mov_b32 s{sWS + 3}, 0x20000")
        e(f"s_lshl_b32 s{sTMP}, s2, 2")
        e(f"s_add_u32 s{sTMP}, s{sTMP}, s{sW}")
        e(f"s_mul_i32 s{sTMP}, s{sTMP}, {8 * nstamp[0]}")
        va("v_mov_b32 v12, 0")
        for i in range(nstamp[0]):
            va(f"v_mov_b32 v14, s{stampreg[i]}")
            va(f"v_mov_b32 v15, s{stampreg[i] + 1}")
            e(f"buffer_store_dwordx2 v[14:15], v12, s[{sWS}:{sWS + 3}], s{sTMP} offen offset:{8 * i}", "vmem",
              rd=["v14", "v15", "v12"])
            e("s_nop 1", "nop")
    if a.spin:
        e("s_waitcnt vmcnt(0)", "wait")
        E.label("L_diag")
        e("s_memrealtime s[62:63]", "smem")
        e("s_waitcnt lgkmcnt(0)", "wait")
        e("s_sub_u32 s62, s62, s60")
        e(f"s_cmp_lt_u32 s62, {a.spin * 100}")
        e("s_cbranch_scc1 L_diag")
    E.label("L_end")
    e("s_endpgm", "end")

    for ep in epochs:
        if not ep["bar"]:
            E.label(f"L_spin{ep['n']}")
            e(f"ds_read_b32 v{vFT}, v{vFR}", "ldsr", rd=[f"v{vFR}"], wr=[f"v{vFT}"])
            e("s_waitcnt lgkmcnt(0)", "wait")
            v(f"v_cmp_gt_u32 vcc, {ep['n']}, v{vFT}", ["vcc"], [f"v{vFT}"])
            e(f"s_cbranch_vccnz L_spin{ep['n']}")
            e(f"s_branch L_ok{ep['n']}")
    E.label("L_codeend")

    E.label("L_rerun")
    e(f"s_mov_b32 s{sMODE}, 1")
    e("s_waitcnt vmcnt(0) lgkmcnt(0)", "wait")
    e("s_barrier", "barrier")
    e("s_branch L_start")

    E.label("L_maxpass")
    va(f"v_and_b32 v{vT1}, 3, v{vLN}")
    va(f"v_bfe_u32 v{vT2}, v{vLN}, 2, 2")
    va(f"v_lshl_add_u32 v{vT1}, v{vT1}, 2, v{vT2}")
    va(f"v_lshrrev_b32 v{vT2}, 4, v{vLN}")
    va(f"v_lshlrev_b32 v{vT1}, 8, v{vT1}")
    va(f"v_lshl_add_u32 v{vT1}, v{vT2}, 4, v{vT1}")
    va(f"v_add_u32 v{vT1}, {BIAS}, v{vT1}")
    e(f"s_lshl_b32 s{sTMP}, s{sW}, 11")
    va(f"v_add_u32 v{vT2}, s{sTMP}, v{vT1}")
    for x in range(4):
        for s in range(4):
            e(f"buffer_load_dwordx4 {rr('v', QT + 4 * s, 4)}, v{vT2}, s[{sQ}:{sQ + 3}], s{sX + x} offen offset:{64 * s}",
              "vmem", rd=[f"v{vT2}"], wr=regs("v", QT + 4 * s, 4))
        e("s_waitcnt vmcnt(0)", "wait")
        for s in range(4):
            q_scale(x, s)
    e(f"s_mov_b32 s{sTMP}, 0")
    E.label("L_maxloop")
    for s in range(4):
        e(f"buffer_load_dwordx4 {rr('v', QT + 4 * s, 4)}, v{vT1}, s[{sK}:{sK + 3}], s{sTMP} offen offset:{64 * s}",
          "vmem", rd=[f"v{vT1}"], wr=regs("v", QT + 4 * s, 4))
    e("s_waitcnt vmcnt(0)", "wait")
    for x in range(4):
        S = Sreg[x]
        for s in range(4):
            C, cr = ("0", []) if s == 0 else (rr("v", S, 4), regs("v", S, 4))
            E.emit(Op(f"v_mfma_f32_16x16x32_bf16 {rr('v', S, 4)}, {rr('v', QT + 4 * s, 4)}, {rr('a', Qreg[x][s], 4)}, {C}",
                      "mfma", rd=regs("v", QT + 4 * s, 4) + regs("a", Qreg[x][s], 4) + cr, wr=regs("v", S, 4), srcc=cr))
    e("s_nop 7", "nop")
    for x in range(4):
        S, n = Sreg[x], NM[x]
        v(f"v_max3_f32 v{n}, v{S}, v{S + 1}, v{n}", [f"v{n}"], [f"v{S}", f"v{S + 1}", f"v{n}"])
        v(f"v_max3_f32 v{n}, v{S + 2}, v{S + 3}, v{n}", [f"v{n}"], [f"v{S + 2}", f"v{S + 3}", f"v{n}"])
    e(f"s_add_u32 s{sTMP}, s{sTMP}, 4096")
    e(f"s_cmp_lt_u32 s{sTMP}, 131072")
    e("s_cbranch_scc1 L_maxloop")
    e("s_nop 3", "nop")
    e("s_branch L_maxdone")

    ops, nnop = fix_hazards(E.out)
    if a.pads:
        ops = insert_pads(ops)
    if a.verbose:
        print("G0", G0, "tdead", tdead)
        print([(ep["gs"], ep["gc"], [t[0] + str(t[1]) for t in ep["tiles"]]) for ep in epochs])
        print("leads", leads)
    info = dict(mfma=NMF, instrs=len(ops), nops=nnop, overflow=overflow, tail=ntail, epochs=len(epochs),
                minlead=min(leads[a.ninit:]), pslots=len(Pbases), fslots=len(Fbases), stamps=nstamp[0])
    head = [
        "; GQA attention forward, B=32 Hq=32 Hkv=8 Sq=64 Sk=512 D=128, bf16 in / bf16 out (generated schedule).",
        "; kernarg: q @0, k @8, v @16, out @24, debug @32, ws @40",
        "; One workgroup per (batch, kv head); wave w handles q head 4*hkv+w.",
        "; Softmax shift: row max of the first keys; a final check on the row sums reruns the",
        "; workgroup with the true row max (L_rerun / L_maxpass) whenever that shift is unsafe.",
        f"; @launch grid=(256,1,1) block=(256,1,1) lds={LDS_BYTES}",
        '.amdgcn_target "amdgcn-amd-amdhsa--gfx950"', ".text", f".globl {KNAME}", ".p2align 8",
        f".type {KNAME},@function", f"{KNAME}:"]
    body = [(o.text if o.cls == "label" else "    " + o.text) for o in ops]
    tail = ['.section .rodata,"a"', ".p2align 6", f".amdhsa_kernel {KNAME}",
            "  .amdhsa_next_free_vgpr 512", "  .amdhsa_next_free_sgpr 102", "  .amdhsa_accum_offset 256",
            "  .amdhsa_group_segment_fixed_size 0", "  .amdhsa_kernarg_size 48", "  .amdhsa_user_sgpr_count 2",
            "  .amdhsa_user_sgpr_kernarg_segment_ptr 1", "  .amdhsa_system_sgpr_workgroup_id_x 1",
            ".end_amdhsa_kernel"]
    return "\n".join(head + body + tail) + "\n", info


def parser():
    ap = argparse.ArgumentParser()
    ap.add_argument("out")
    for k, d in dict(groups="2,2,4,4,4,4,4,8", final="0,1,2,3", ones="0123", oacc="0", ld="nt", st="nt", sync="flag",
                     merge="12", win="10,10,16", dmaper="29", stampat="m", dbgnop="").items():
        ap.add_argument("--" + k, default=d)
    for k, d in dict(ns=5, lag=3, lat=6, skew=8, nbar=1, dmacost=8, dma0=8, rdbias=8, hoist=64, stdist=12, q0=10,
                     ninit=3, infl=8, halftop=0, prek=2, prev=1, nc0=3, nmax=1, fbudget=12, fstart=16, pk=1,
                     rot=0, stampper=60, stamps=0, spin=0, pfcode=1, pads=1, verbose=0).items():
        ap.add_argument("--" + k, type=int, default=d)
    return ap


if __name__ == "__main__":
    a = parser().parse_args()
    txt, info = build(a)
    open(a.out, "w").write(txt)
    print(a.out, info)
```

```python
import argparse, math, re, struct, sys

KNAME = "standalone__gqa_softmax__near_ridge_kernel"
TILE = 4352
GRAN = 1088
NSLOT = 36
LDS_BYTES = 163840
FLAG_OFF = NSLOT * TILE
SYNC_OFF = FLAG_OFF + 256


def f32bits(x):
    return struct.unpack("<I", struct.pack("<f", x))[0]


def regs(p, lo, n):
    return [f"{p}{lo + i}" for i in range(n)]


def rr(p, lo, n):
    return f"{p}[{lo}:{lo + n - 1}]" if n > 1 else f"{p}{lo}"


class Op:
    __slots__ = ("text", "cls", "rd", "wr", "deps", "early", "dead", "prio", "needs", "idx", "gap",
                 "ldsn", "pre", "vmn", "tag", "srcc", "st")

    def __init__(self, text, cls, rd=(), wr=(), deps=(), early=-1, dead=10 ** 9, needs=(), pre=None, tag=None,
                 srcc=()):
        self.text, self.cls = text, cls
        self.rd, self.wr = list(rd), list(wr)
        self.deps = list(deps)
        self.early, self.dead = early, dead
        self.needs = list(needs)
        self.idx = None
        self.gap = None
        self.ldsn = None
        self.vmn = None
        self.pre = pre
        self.tag = tag
        self.prio = 0
        self.srcc = list(srcc)


COST = dict(trans=8, valu=4, ldsr=4, ldsw=12, vmem=20, salu=4)


class Emitter:
    def __init__(self):
        self.out = []
        self.nlds = 0
        self.lds_done = 0
        self.lds_gap = []
        self.nvm = 0
        self.vm_done = 0
        self.gap = -1
        self.nst = 0

    def emit(self, op):
        self.nst += states(op)
        op.st = self.nst
        op.idx = len(self.out)
        op.gap = self.gap
        if op.cls in ("ldsr", "ldsw"):
            op.ldsn = self.nlds
            self.nlds += 1
            self.lds_gap.append(self.gap)
        if op.cls == "vmem":
            op.vmn = self.nvm
            self.nvm += 1
        self.out.append(op)
        return op

    def raw(self, text, cls="salu", **kw):
        return self.emit(Op(text, cls, **kw))

    def label(self, name):
        self.out.append(Op(name + ":", "label"))

    def lds_wait(self, needs, lat=None):
        need = max((n.ldsn for n in needs), default=-1) + 1
        if need <= self.lds_done:
            return False
        if lat is not None:
            k = need
            while k < self.nlds and self.lds_gap[k] <= self.gap - lat:
                k += 1
            need = k
        n = min(self.nlds - need, 15)
        self.raw(f"s_waitcnt lgkmcnt({n})", "wait")
        self.lds_done = self.nlds - n
        return True

    def lds_drain(self):
        self.raw("s_waitcnt lgkmcnt(0)", "wait")
        self.lds_done = self.nlds

    def vm_wait(self, ops):
        need = max((o.vmn for o in ops), default=-1) + 1
        if need <= self.vm_done:
            return False
        n = min(self.nvm - need, 63)
        self.raw(f"s_waitcnt vmcnt({n})", "wait")
        self.vm_done = self.nvm - n
        return True


def states(op):
    if op.cls == "label":
        return 0
    m = re.match(r"s_nop (\d+)", op.text)
    return int(m.group(1)) + 1 if m else 1


def fix_hazards(ops):
    out = []
    added = 0
    for op in ops:
        if op.cls == "label":
            out.append(op)
            continue
        need = 0
        dist = 0
        rd, wr = set(op.rd), set(op.wr)
        isv = op.cls in ("valu", "trans")
        for p in reversed(out):
            if dist >= 12:
                break
            pw = set(p.wr)
            req = 0
            if p.cls == "mfma":
                if op.cls == "mfma":
                    ab = rd - set(op.srcc)
                    if pw & ab:
                        req = 8
                    if pw & set(op.srcc) and set(op.srcc) != pw:
                        req = max(req, 6)
                    if pw & wr and set(op.srcc) != pw:
                        req = max(req, 6)
                else:
                    if pw & (rd | wr):
                        req = 8
                    if isv and set(p.srcc) & wr:
                        req = max(req, 3)
            elif p.cls in ("valu", "trans"):
                if op.cls == "mfma" and pw & rd:
                    req = 2
                if p.cls == "trans" and op.cls != "trans" and pw & rd:
                    req = max(req, 1)
                if "permlane" in op.text and pw & rd:
                    req = max(req, 2)
                if ("readfirstlane" in op.text or "readlane" in op.text) and pw & rd:
                    req = max(req, 1)
                sw = {r for r in pw if r[0] == "s" or r == "vcc"}
                if sw & rd:
                    req = max(req, 5 if op.cls == "vmem" else 2)
            elif p.cls == "salu":
                if "m0" in pw and op.cls == "vmem" and "m0" in rd:
                    req = 1
            elif p.cls == "vmem":
                if "store" in p.text and set(p.rd) & wr and op.cls != "salu":
                    req = 2
            need = max(need, req - dist)
            dist += states(p)
        if need > 0:
            out.append(Op(f"s_nop {need - 1}", "nop"))
            added += 1
        out.append(op)
    return out, added


def isize(op):
    t = op.text
    if op.cls == "label":
        return 0
    mn = t.split()[0]
    if op.cls in ("mfma", "xmfma", "ldsr", "ldsw", "vmem", "smem"):
        return 8
    if mn in ("s_movk_i32", "s_nop", "s_waitcnt", "s_barrier", "s_branch", "s_endpgm") or mn.startswith("s_cbranch"):
        return 4
    if mn.startswith("v_cmp") and " s[" in t:
        return 8
    if mn.startswith(("v_cvt_pk", "v_max3", "v_accvgpr", "v_pk_", "v_lshl_add", "v_add3", "v_bfe", "v_or3", "v_mbcnt",
                      "v_fma")):
        return 8
    for arg in [x.strip() for x in t[len(mn):].split(",")]:
        if re.fullmatch(r"-?(0x[0-9a-f]+|\d+)", arg) and not -16 <= int(arg, 0) <= 64:
            return 8
        if arg.startswith("L_"):
            return 8
    return 4


def insert_pads(ops):
    i0 = next(i for i, o in enumerate(ops) if o.text == "L_main:")
    i1 = next(i for i, o in enumerate(ops) if o.text == "L_end:")
    out, addr, page, pads = ops[:i0], 0, 1, []
    for i in range(i0, len(ops)):
        o = ops[i]
        if i <= i1 and addr >= 4096 * page:
            good = out[-1].cls == "mfma" and o.cls not in ("salu", "wait", "barrier", "nop")
            if good or addr + isize(o) > 4096 * page + 56:
                lab = Op(f"L_pad{len(pads)}:", "label")
                br = Op("", "salu")
                pads.append(br)
                out += [lab, br]
                addr += 4
                page += 1
        out.append(o)
        addr += isize(o)
    assert len(pads) >= 4
    for k, br in enumerate(pads):
        br.text = f"s_cbranch_execz L_pad{k + 4}" if k + 4 < len(pads) else "s_cbranch_execz L_main"
    return out


class Pool:
    def __init__(self, prefix, bases):
        self.prefix = prefix
        self.rel = {b: -1 for b in bases}

    def add(self, base, release):
        self.rel[base] = release

    def take(self, release):
        b = min(self.rel, key=lambda k: (self.rel[k], k))
        prev = self.rel[b]
        self.rel[b] = release
        return b, prev


def build(a):
    groups = [int(x) for x in a.groups.split(",")]
    assert sum(groups) == 32 and all(g % 2 == 0 for g in groups)
    G = len(groups)
    gstart = [sum(groups[:g]) for g in range(G + 1)]
    ones_x = [int(c) for c in a.ones if c.isdigit()]
    oacc_x = [int(c) for c in a.oacc if c.isdigit()]
    addx = [x for x in range(4) if x not in ones_x]
    ld, st = a.ld, a.st
    PK = 2 * a.prek
    flag = a.sync == "flag"
    E = Emitter()
    e = E.raw

    vK, vV = 1, [2, 3, 4, 5]
    vDK, vDV = (6, 7), (11, 0)
    vOW, vOR, vOG = 8, 9, 10
    vRL = [12, 13, 14, 15]
    vFW, vFR, vFE, vFT = 12, 13, 14, 15
    NM = [16 + 4 * x for x in range(4)]
    vnext, anext, vtop = 32, 0, 256
    Lreg = {}
    for x in ones_x:
        Lreg[x] = anext
        anext += 4
    if addx:
        for i, x in enumerate(addx):
            Lreg[x] = vnext + i
        vnext += 4
    Sreg = [vnext + 4 * i for i in range(a.ns)]
    vnext += 4 * a.ns
    Oreg = {}
    for x in range(4):
        if x in oacc_x:
            Oreg[x] = ("a", anext)
            anext += 32
        else:
            vtop -= 32
            Oreg[x] = ("v", vtop)
    Pbases = list(range(vnext, vtop, 4))
    Qreg = [[anext + 16 * x + 4 * s for s in range(4)] for x in range(4)]
    anext += 64
    aONE = anext
    anext += 4
    Fbases = list(range(anext, 256, 4))
    QT = Pbases[-7]
    UT = QT + 16
    vLN, vQA, vT1, vT2 = QT + 24, QT + 25, QT + 26, QT + 27
    assert len(Pbases) >= 7 + 4 * a.prek

    sQ, sK, sV, sO = 12, 16, 20, 24
    sW, sWG, sMODE, sC, sTHR, sQW, sTMP, sT2 = 3, 28, 29, 30, 31, 34, 35, 32
    sWS = 36
    sOFF = 64
    sX = 80
    sQO = 84
    sBAD = 88

    NK = 16
    q0 = a.q0
    vwin = [NK, NK + 16]

    qk_units = [(j, x) for x in range(4) for j in range(PK)] + [(j, x) for j in range(PK, 32) for x in range(4)]
    uidx = {u: i for i, u in enumerate(qk_units)}
    assert gstart[a.prev + 1] >= PK >= gstart[a.prev]
    pvq = []
    for g in range(G):
        if g < a.prev:
            for x in range(4):
                u = ([("sum", g, None, x)] if x in ones_x else []) + [("pv", g, b, x) for b in range(8)]
                pvq += [(PK * (x + 1) - 0.5, w) for w in u]
            continue
        if g < G - 1:
            u = [("sum", g, None, x) for x in ones_x] + [("pv", g, b, x) for b in range(8) for x in range(4)]
        else:
            u = []
            for xs in [[int(c) for c in part] for part in a.final.split(",")]:
                u += [("sum", g, None, x) for x in xs if x in ones_x]
                u += [("pv", g, b, x) for b in range(8) for x in xs]
        lo = 4 * gstart[g + 1] + a.lag
        hi = 4 * gstart[min(g + 2, G)] + a.lag
        pvq += [(lo + (hi - lo) * i / len(u) if g < G - 1 else 10 ** 6, w) for i, w in enumerate(u)]
    pvq.sort(key=lambda p: p[0])
    seq, pi = [], 0
    for ui, (j, x) in enumerate(qk_units):
        while pi < len(pvq) and pvq[pi][0] < ui:
            seq.append(pvq[pi][1])
            pi += 1
        seq.append(("qk", j, x))
    seq += [u for _, u in pvq[pi:]]

    M = []
    for u in seq:
        if u[0] == "qk":
            M += [("qk", u[1], u[2], s) for s in range(4)]
        else:
            M += [(u[0], u[1], u[2], u[3], k) for k in range(groups[u[1]] // 2)]
    NMF = len(M)
    first_use, last_use = {}, {}

    def use(key, i):
        first_use.setdefault(key, i)
        last_use[key] = i

    for i, m in enumerate(M):
        if m[0] == "qk":
            _, j, x, s = m
            use(("K", j, s), i)
            use(("S", j, x), i)
            use(("Q", x, s), i)
        else:
            kind, g, b, x, k = m
            kap = gstart[g] // 2 + k
            use(("P", kap, x), i)
            if kind == "pv":
                use(("V", kap, b), i)
                use(("O", x, b), i)
            else:
                use(("L", x), i)
    qgap = {first_use["S", 0, x] - 1: x for x in range(4)}
    G0 = first_use["S", 0, 3] - 1

    ppool = Pool("v", Pbases)
    for b in Pbases[-7:]:
        ppool.add(b, G0 + 1)
    Preg, Pfree = {}, {}
    for kap, x in sorted([(k, x) for k in range(16) for x in range(4)], key=lambda p: uidx[2 * p[0], p[1]]):
        Preg[kap, x], Pfree[kap, x] = ppool.take(last_use["P", kap, x])
    fpool = Pool("a", Fbases)
    for x in range(4):
        for s in range(4):
            fpool.add(Qreg[x][s], last_use["Q", x, s])
    frags = sorted([k for k in first_use if k[0] in "KV"], key=lambda k: first_use[k])
    Freg, Ffree = {}, {}
    for k in frags:
        Freg[k], Ffree[k] = fpool.take(last_use[k])
        assert Ffree[k] < first_use[k] - a.lat or Ffree[k] < 0, ("frag pool too small", k)

    mf = []
    started = set()
    for i, m in enumerate(M):
        if m[0] == "qk":
            _, j, x, s = m
            S = Sreg[uidx[j, x] % a.ns]
            A, B = Freg["K", j, s], Qreg[x][s]
            if s == 0:
                C, cr = ("0", []) if j < a.nc0 else (rr("v", NM[x], 4), regs("v", NM[x], 4))
            else:
                C, cr = rr("v", S, 4), regs("v", S, 4)
            mf.append(Op(f"v_mfma_f32_16x16x32_bf16 {rr('v', S, 4)}, {rr('a', A, 4)}, {rr('a', B, 4)}, {C}", "mfma",
                         rd=regs("a", A, 4) + regs("a", B, 4) + cr, wr=regs("v", S, 4), srcc=cr))
        else:
            kind, g, b, x, k = m
            kap = gstart[g] // 2 + k
            if kind == "pv":
                p, o = Oreg[x][0], Oreg[x][1] + 4 * b
                A = Freg["V", kap, b]
                key = ("O", x, b)
            else:
                p, o, A, key = "a", Lreg[x], aONE, ("L", x)
            B = Preg[kap, x]
            C, cr = (rr(p, o, 4), regs(p, o, 4)) if key in started else ("0", [])
            started.add(key)
            mf.append(Op(f"v_mfma_f32_16x16x32_bf16 {rr(p, o, 4)}, {rr('a', A, 4)}, {rr('v', B, 4)}, {C}", "mfma",
                         rd=regs("a", A, 4) + regs("v", B, 4) + cr, wr=regs(p, o, 4), srcc=cr))

    tile_first = {}
    for d in range(16):
        tile_first["K", d] = first_use["K", 2 * d, 0]
        tile_first["V", d] = min(first_use["V", d, b] for b in range(8))
    dma_order = sorted(tile_first, key=lambda t: (tile_first[t], t[1]))
    pre_tiles = [t for t in dma_order if tile_first[t] <= G0]
    merge = [int(x) for x in a.merge.split(",")]
    wins = [int(x) for x in a.win.split(",")]
    nbar = a.nbar if flag else 99
    epochs, pub = [], {t: -1 for t in pre_tiles}
    for t in dma_order[len(pre_tiles):]:
        k = len(epochs)
        gc = max(tile_first[t] - wins[min(k, len(wins) - 1)], G0 + 1)
        if epochs and gc < epochs[-1]["gc"] + merge[min(k - 1, len(merge) - 1)]:
            epochs[-1]["tiles"].append(t)
        else:
            isbar = k < nbar
            epochs.append(dict(gc=gc, gr=gc - (0 if isbar else a.lat + 1), gs=gc - (0 if isbar else a.lat + 1 + a.skew),
                               tiles=[t], bar=isbar, n=k + 1))
            assert epochs[-1]["gs"] > G0 and (k == 0 or epochs[-1]["gr"] > epochs[-2]["gc"])
            assert k == 0 or epochs[-1]["gs"] > epochs[-2]["gs"]
        pub[t] = epochs[-1]["gc"]
    free_slots = {"K": [s for s in range(0, NK, 2) if not q0 <= s < q0 + 16],
                  "V": [s for s in range(NK, NSLOT, 2) if not q0 <= s < q0 + 16]}
    slot_of, dma_op = {}, {}
    tile_reads = {t: [] for t in tile_first}
    released = set()

    def slot_for(t):
        c = [s for s in free_slots[t[0]] if not (t[0] == "K" and t[1] >= 12 and s < 8)]
        if t[0] == "K" and 8 <= t[1] < 12:
            c.sort(key=lambda s: s >= 8)
        return c[0] if c else None

    def dma_pair(srd, vo, soff):
        return [Op(f"buffer_load_dwordx4 v{vo[i]}, s[{srd}:{srd + 3}], s{soff} offen{' offset:%d' % GRAN if i else ''} {ld} lds"
                   .replace("  ", " "), "vmem", rd=["m0", f"v{vo[i]}"]) for i in range(2)]

    def make_dma(t):
        sl = slot_for(t)
        free_slots[t[0]].remove(sl)
        slot_of[t] = sl
        srd, vo = (sK, vDK) if t[0] == "K" else (sV, vDV)
        pre = Op(f"s_add_u32 m0, s{sWG}, {sl * TILE}", "salu", wr=["m0"])
        ops = dma_pair(srd, vo, sOFF + t[1])
        dma_op[t] = ops[1]
        return pre, ops

    nstamp = [0]
    stampreg = list(range(40, 64, 2)) + [4, 6, 8, 10, 96, 98, 32, 100]

    def stamp(kind="m"):
        if a.stamps and (kind in a.stampat or kind == "x") and (nstamp[0] < 18 or kind == "x"):
            for k, ins in enumerate(("s_memrealtime", "s_memtime")):
                if a.stamps >> k & 1:
                    r = stampreg[nstamp[0]]
                    nstamp[0] += 1
                    e(f"{ins} s[{r}:{r + 1}]", "smem")

    def v(text, wr, rd=(), cls="valu"):
        return e(text, cls, rd=list(rd), wr=list(wr))

    def va(text):
        return v(text, [text.split()[1].rstrip(",")])

    BIAS = GRAN - 1024
    e("s_cmp_ge_u32 s2, 256")
    e("s_cbranch_scc1 L_end")
    if a.spin:
        e("s_memrealtime s[60:61]", "smem")
    e("s_load_dwordx8 s[4:11], s[0:1], 0", "smem")
    if a.stamps:
        e(f"s_load_dwordx2 s[{sWS}:{sWS + 1}], s[0:1], 40", "smem")
    if a.pfcode:
        e("s_getpc_b64 s[96:97]")
        E.label("L_pc")
        e("s_add_u32 s96, s96, L_main-L_pc")
        e("s_addc_u32 s97, s97, 0")
        e("s_mov_b32 s98, L_codeend-L_main")
        e("s_mov_b32 s99, 0x20000")
        e(f"s_lshr_b32 s{sTHR}, s2, 3")
        e(f"s_lshl_b32 s{sTHR}, s{sTHR}, 10")
        va("v_lshlrev_b32 v15, 2, v0")
        e(f"buffer_load_dword v{UT}, v15, s[96:99], s{sTHR} offen", "vmem", rd=["v15"], wr=[f"v{UT}"])
    va("v_lshrrev_b32 v12, 6, v0")
    va(f"v_and_b32 v{vLN}, 63, v0")
    v(f"v_readfirstlane_b32 s{sW}, v12", [f"s{sW}"], ["v12"])
    va(f"v_lshrrev_b32 v13, 4, v{vLN}")
    va("v_and_b32 v14, 2, v13")
    va(f"v_xor_b32 v14, v14, v{vLN}")
    va("v_lshlrev_b32 v14, 4, v14")
    va(f"v_lshl_add_u32 v{vDK[1]}, v12, 11, v14")
    va(f"v_add_u32 v{vDK[0]}, {BIAS}, v{vDK[1]}")
    va("v_and_b32 v14, 1, v13")
    va("v_lshlrev_b32 v14, 1, v14")
    va(f"v_xor_b32 v14, v14, v{vLN}")
    va("v_lshlrev_b32 v14, 4, v14")
    va(f"v_lshl_add_u32 v{vDV[1]}, v12, 11, v14")
    va(f"v_add_u32 v{vDV[0]}, {BIAS}, v{vDV[1]}")
    e(f"s_mul_i32 s{sWG}, s{sW}, {2 * GRAN}", rd=[f"s{sW}"])
    e(f"s_mul_i32 s{sQW}, s{sW}, {4 * TILE}")
    e(f"s_add_u32 s{sQW}, s{sQW}, {q0 * TILE}")
    e(f"s_mov_b32 s{sMODE}, 0")
    e(f"s_lshl_b32 s{sTMP}, s2, 2")
    e(f"s_add_u32 s{sTMP}, s{sTMP}, s{sW}")
    e(f"s_lshl_b32 s{sTMP}, s{sTMP}, 14")
    e(f"s_lshl_b32 s{sC}, s2, 17")
    e(f"s_lshl_b32 s{sT2}, s{sW}, 11")
    e(f"s_add_u32 s{sQ + 2}, s{sT2}, {16384 + BIAS}")
    e(f"s_sub_u32 s{sT2}, s{sTMP}, s{sT2}")
    for d, size in ((sK, 131072 + BIAS), (sV, 131072 + BIAS), (sO, 16384)):
        e(f"s_mov_b32 s{d + 2}, {size}")
    for d in (sQ, sK, sV, sO):
        e(f"s_mov_b32 s{d + 3}, 0x20000")
    def set_off(j):
        if a.rot and j:
            e(f"s_xor_b32 s{sOFF + j}, s{sOFF}, {j * 8192}")
        elif a.rot:
            e(f"s_lshr_b32 s{sOFF}, s2, {a.rot - 1}")
            e(f"s_lshl_b32 s{sOFF}, s{sOFF}, 13")
            e(f"s_and_b32 s{sOFF}, s{sOFF}, 0x1ffff")
        else:
            e(f"s_mov_b32 s{sOFF + j}, {j * 8192}")

    for j in range(a.prek):
        set_off(j)
    e("s_waitcnt lgkmcnt(0)", "wait")
    for d, p, o in ((sK, 6, sC), (sQ, 4, sT2), (sV, 8, sC), (sO, 10, sTMP)):
        e(f"s_add_u32 s{d}, s{p}, s{o}")
        e(f"s_addc_u32 s{d + 1}, s{p + 1}, 0")
        if d != sO:
            e(f"s_sub_u32 s{d}, s{d}, {BIAS}")
            e(f"s_subb_u32 s{d + 1}, s{d + 1}, 0")
    stamp("x")
    E.label("L_start")
    di = 0
    qdma = {}
    pro_q = ([("t",)] * len(pre_tiles) + [("q", x, g) for x in range(4) for g in range(2)] + [("t",)] * a.ninit)

    def topup(limit):
        nonlocal di
        while pro_q and E.nvm - E.vm_done < limit:
            it = pro_q.pop(0)
            if it[0] == "t":
                pre, ops = make_dma(dma_order[di])
                di += 1
                for o in [pre] + ops:
                    E.emit(o)
            else:
                _, x, g = it
                e(f"s_add_u32 m0, s{sQW}, {x * TILE + 2 * g * GRAN}", wr=["m0"])
                so = sQO + (2 * x + g) % 4
                e(f"s_movk_i32 s{so}, {x * 4096 + g * 2048}")
                for o in dma_pair(sQ, vDK, so):
                    qdma[x, g] = E.emit(o)

    topup(a.infl)
    for j in range(a.prek, 16):
        set_off(j)
    for j in range(4):
        e(f"s_movk_i32 s{sX + j}, {j * 4096}")
    va(f"v_mbcnt_lo_u32_b32 v{vLN}, -1, 0")
    va(f"v_mbcnt_hi_u32_b32 v{vLN}, -1, v{vLN}")
    e(f"s_mov_b32 s{sC}, {f32bits(math.log2(math.e) / math.sqrt(128.0)):#x}")
    e(f"s_mov_b32 s{sTHR}, {f32bits(2.0 ** 32):#x}")
    va(f"v_and_b32 v12, 3, v{vLN}")
    va(f"v_bfe_u32 v13, v{vLN}, 2, 2")
    va(f"v_lshrrev_b32 v14, 4, v{vLN}")
    va(f"v_mul_u32_u24 v{vK}, {GRAN}, v12")
    va(f"v_lshl_add_u32 v{vK}, v13, 8, v{vK}")
    va("v_and_b32 v15, 2, v13")
    va("v_xor_b32 v15, v15, v14")
    va(f"v_lshl_add_u32 v{vK}, v15, 4, v{vK}")
    va(f"v_add_u32 v{vQA}, s{sQW}, v{vK}")
    va(f"v_mul_u32_u24 v{vV[0]}, {GRAN}, v13")
    va(f"v_lshl_add_u32 v{vV[0]}, v14, 8, v{vV[0]}")
    va(f"v_lshl_add_u32 v{vV[0]}, v12, 3, v{vV[0]}")
    va("v_and_b32 v15, 1, v14")
    va(f"v_lshl_add_u32 v{vV[0]}, v15, 5, v{vV[0]}")
    va(f"v_xor_b32 v{vV[1]}, 32, v{vV[0]}")
    va(f"v_add_u32 v{vV[2]}, {vwin[1] * TILE}, v{vV[0]}")
    va(f"v_add_u32 v{vV[3]}, {vwin[1] * TILE}, v{vV[1]}")
    va(f"v_add_u32 v{vV[0]}, {vwin[0] * TILE}, v{vV[0]}")
    va(f"v_add_u32 v{vV[1]}, {vwin[0] * TILE}, v{vV[1]}")
    e(f"s_mul_i32 s{sTMP}, s{sW}, {2 * TILE}")
    va(f"v_and_b32 v15, 15, v{vLN}")
    va(f"v_mul_u32_u24 v{vOW}, 272, v15")
    va(f"v_lshl_add_u32 v{vOW}, v14, 3, v{vOW}")
    va(f"v_add_u32 v{vOW}, s{sTMP}, v{vOW}")
    va("v_lshlrev_b32 v13, 2, v14")
    va("v_sub_u32 v15, v15, v13")
    va("v_and_b32 v15, 15, v15")
    va("v_lshlrev_b32 v15, 4, v15")
    va(f"v_lshl_add_u32 v{vOG}, v14, 8, v15")
    va(f"v_mul_u32_u24 v{vOR}, {GRAN}, v14")
    va(f"v_add3_u32 v{vOR}, v{vOR}, v15, s{sTMP}")
    va("v_mov_b32 v15, 0x3f803f80")
    for i in range(4):
        v(f"v_accvgpr_write_b32 a{aONE + i}, v15", [f"a{aONE + i}"], ["v15"])
    for x in range(4):
        va(f"v_mov_b32 v{NM[x]}, 0xff800000")
    for x in addx:
        va(f"v_mov_b32 v{Lreg[x]}, 0")
    if flag:
        e(f"s_lshl_b32 s{sTMP}, s{sW}, 8")
        e(f"s_add_u32 s{sTMP}, s{sTMP}, {SYNC_OFF}")
        va(f"v_lshlrev_b32 v{vFE}, 2, v{vLN}")
        va(f"v_lshl_add_u32 v{vFR}, v12, 8, v{vFE}")
        va(f"v_add_u32 v{vFR}, {SYNC_OFF}, v{vFR}")
        va(f"v_add_u32 v{vFW}, s{sTMP}, v{vFE}")
        va(f"v_mov_b32 v{vFE}, 0")
        e(f"ds_write_b32 v{vFW}, v{vFE}", "ldsw", rd=[f"v{vFW}", f"v{vFE}"])
        E.lds_drain()
    if a.pads:
        e("s_mov_b64 exec, 0")
        for w in range(3):
            e(f"s_cmp_eq_u32 s{sW}, {w}")
            e(f"s_cbranch_scc1 L_pad{w}")
        e("s_branch L_pad3")
        E.out.append(Op(".p2align 12", "label"))
    E.label("L_main")
    if a.pads:
        e("s_mov_b64 exec, -1")

    def finalize_read(op):
        if op.text is not None:
            return
        if op.tag[0] == "K":
            _, j, s = op.tag
            off = (slot_of["K", j // 2] + j % 2) * TILE + 64 * s
            assert off < 65536
            op.text = f"ds_read_b128 {rr('a', Freg['K', j, s], 4)}, v{vK} offset:{off}"
        else:
            _, kap, b, tau = op.tag
            sl = slot_of["V", kap] + tau
            w = 0 if sl < vwin[1] else 1
            off = (sl - vwin[w]) * TILE + 64 * (b >> 1)
            assert off < 65536
            av = vV[2 * w + (b & 1)]
            op.rd = [f"v{av}"]
            op.text = f"ds_read_b64_tr_b16 {rr('a', Freg['V', kap, b] + 2 * tau, 2)}, v{av} offset:{off}"

    kr = {(j, s): Op(None, "ldsr", rd=[f"v{vK}"], wr=regs("a", Freg["K", j, s], 4), tag=("K", j, s))
          for j in range(32) for s in range(4)}
    vr = {(kap, b, t): Op(None, "ldsr", wr=regs("a", Freg["V", kap, b] + 2 * t, 2), tag=("V", kap, b, t))
          for kap in range(16) for b in range(8) for t in range(2)}
    for (j, s), op in kr.items():
        tile_reads["K", j // 2].append(op)
    for (kap, b, t), op in vr.items():
        tile_reads["V", kap].append(op)

    for t in pre_tiles:
        E.vm_wait([dma_op[t]])
        topup(a.infl)
    e("s_barrier", "barrier")
    for t in pre_tiles:
        for op in tile_reads[t]:
            finalize_read(op)
            E.emit(op)
    e(f"s_cmp_lg_u32 s{sMODE}, 0")
    e("s_cbranch_scc1 L_maxpass")
    E.label("L_maxdone")

    def q_scale(x, s):
        for i in range(4):
            src, t = QT + 4 * s + i, UT + 2 * i
            v(f"v_lshlrev_b32 v{t}, 16, v{src}", [f"v{t}"], [f"v{src}"])
            v(f"v_and_b32 v{t + 1}, 0xffff0000, v{src}", [f"v{t + 1}"], [f"v{src}"])
        for i in range(4):
            t = UT + 2 * i
            v(f"v_pk_mul_f32 {rr('v', t, 2)}, {rr('v', t, 2)}, s[{sC}:{sC + 1}] op_sel_hi:[1,0]", regs("v", t, 2),
              regs("v", t, 2))
        for i in range(4):
            v(f"v_cvt_pk_bf16_f32 v{UT + 2 * i}, v{UT + 2 * i}, v{UT + 2 * i + 1}", [f"v{UT + 2 * i}"],
              [f"v{UT + 2 * i}", f"v{UT + 2 * i + 1}"])
        for i in range(4):
            v(f"v_accvgpr_write_b32 a{Qreg[x][s] + i}, v{UT + 2 * i}", [f"a{Qreg[x][s] + i}"], [f"v{UT + 2 * i}"])

    def q_prepare(x):
        if a.dbgload:
            E.lds_drain()
            o = UT
            for i in range([int(z) for z in a.dbgload.split(",")][x]):
                A, B = Freg["K", i % 4, (i // 4) % 4], Freg["K", (i + 1) % 4, i % 4]
                E.emit(Op(f"v_mfma_f32_16x16x32_bf16 {rr('v', o + 4 * (i % 2), 4)}, {rr('a', A, 4)}, {rr('a', B, 4)}, 0", "xmfma"))
            e("s_nop 7", "nop")
        if a.halftop:
            E.vm_wait([qdma[x, 0]])
            topup(a.infl)
        E.vm_wait([qdma[x, 1]])
        stamp("q")
        rds = [e(f"ds_read_b128 {rr('v', QT + 4 * s, 4)}, v{vQA} offset:{x * TILE + 64 * s}", "ldsr",
                 rd=[f"v{vQA}"], wr=regs("v", QT + 4 * s, 4)) for s in range(4)]
        topup(a.infl if x < 3 else 99)
        for s in range(4):
            E.lds_wait([rds[s]])
            q_scale(x, s)

    def first_max_ops(x):
        n = NM[x]
        ops = []

        def add(text, wr, rd, dist=0, deps=()):
            ops.append(Op(text, "valu", rd=rd, wr=wr, deps=([(ops[-1], dist)] if ops else []) + list(deps)))

        for j in range(a.nmax):
            S = Sreg[uidx[j, x] % a.ns]
            for r in (S, S + 2):
                add(f"v_max3_f32 v{n}, v{r}, v{r + 1}, v{n}", [f"v{n}"], [f"v{r}", f"v{r + 1}", f"v{n}"],
                    deps=[(mf[last_use["S", j, x]], 8)])
        for sw in ("v_permlane32_swap_b32", "v_permlane16_swap_b32"):
            add(f"v_mov_b32 v{n + 1}, v{n}", [f"v{n + 1}"], [f"v{n}"])
            add(f"{sw} v{n + 1}, v{n}", [f"v{n}", f"v{n + 1}"], [f"v{n}", f"v{n + 1}"], 2)
            add(f"v_max_f32 v{n}, v{n}, v{n + 1}", [f"v{n}"], [f"v{n}", f"v{n + 1}"])
        for i in (1, 2, 3, 0):
            add(f"v_mul_f32 v{n + i}, -1.0, v{n}", [f"v{n + i}"], [f"v{n}"])
        return ops

    F = []
    ladds = {x: [] for x in range(4)}
    nmdone = {}
    for u, (j, x) in enumerate(qk_units):
        S = Sreg[u % a.ns]
        prod = mf[last_use["S", j, x]]
        sdead = first_use[("S",) + qk_units[u + a.ns]] - 1 if u + a.ns < 128 else 10 ** 9
        kap = j // 2
        pdead = max(min(sdead, first_use["P", kap, x] - 2), last_use["S", j, x])
        assert pdead < first_use["P", kap, x]
        if j == 0:
            mops = first_max_ops(x)
            for k, o in enumerate(mops):
                o.dead = max(min(pdead, first_use["S", a.nc0, x] - 2), last_use["S", a.nmax - 1, x])
                assert o.dead < first_use["S", a.nc0, x]
                o.prio = (-1, u, k)
            nmdone[x] = mops[-4]
            F += mops
        ex = []
        for i in range(4):
            op = Op(f"v_exp_f32 v{S + i}, v{S + i}", "trans", rd=[f"v{S + i}"], wr=[f"v{S + i}"],
                    deps=[(prod, 8)], dead=pdead)
            op.prio = (pdead - 4 + i, u, 3 * i)
            if j < a.nc0:
                n = NM[x] + 1
                sub = Op(f"v_add_f32 v{S + i}, v{S + i}, v{n}", "valu", rd=[f"v{S + i}", f"v{n}"], wr=[f"v{S + i}"],
                         deps=[(nmdone[x], 0), (prod, 8)], dead=pdead)
                sub.prio = (pdead - 5 + i, u, 3 * i)
                F.append(sub)
                op.deps.append((sub, 0))
            ex.append(op)
            F.append(op)
            if x in addx:
                ad = Op(f"v_add_f32 v{Lreg[x]}, v{Lreg[x]}, v{S + i}", "valu", rd=[f"v{S + i}", f"v{Lreg[x]}"],
                        wr=[f"v{Lreg[x]}"], deps=[(op, 1)], dead=min(sdead, pdead + 8))
                ad.prio = (pdead - 4 + i, u, 3 * i + 2)
                F.append(ad)
                ladds[x].append(ad)
            if i % 2:
                P = Preg[kap, x] + 2 * (j % 2) + i // 2
                cv = Op(f"v_cvt_pk_bf16_f32 v{P}, v{S + i - 1}, v{S + i}", "valu",
                        rd=[f"v{S + i - 1}", f"v{S + i}"], wr=[f"v{P}"], deps=[(ex[i - 1], 1), (op, 1)],
                        early=Pfree[kap, x], dead=pdead)
                assert Pfree[kap, x] <= pdead, ("P pool too small", kap, x)
                cv.prio = (pdead - 4 + i, u, 3 * i + 1)
                F.append(cv)
    lastsm = F[-12 * a.ns:]
    for key, op in [(("K",) + k, o) for k, o in kr.items()] + [(("V",) + k[:2], o) for k, o in vr.items()]:
        fu = first_use[key]
        mf[fu].needs.append(op)
        if op.idx is None:
            op.early = max(Ffree[key], pub[key[0], key[1] // 2 if key[0] == "K" else key[1]], fu - a.hoist)
            op.dead = max(fu - a.lat, op.early)
            assert op.dead < fu
            op.prio = (op.dead - a.rdbias, -1, fu)
            F.append(op)

    tq = Sreg + NM
    tfree = {b: None for b in tq}
    tdead = max(last_use["S", 31, x] for x in range(4))
    lastsync = epochs[-1]["gc"] + 1
    epi_order = [int(c) for c in a.final if c.isdigit()]
    seqn = [0]
    stage_w, stage_r, mulpair = [], {}, {}

    def epi(text, cls, **kw):
        op = Op(text, cls, **kw)
        seqn[0] += 1
        op.prio = (10 ** 8, seqn[0], 0)
        F.append(op)
        return op

    for xi, x in enumerate(epi_order):
        rl, L = vRL[x], Lreg[x]
        if x in ones_x:
            prev = epi(f"v_accvgpr_read_b32 v{rl}, a{L}", "valu", rd=[f"a{L}"], wr=[f"v{rl}"],
                       deps=[(mf[last_use["L", x]], 8)], early=lastsync)
            L = rl
        else:
            prev = None
            for sw in ("v_permlane32_swap_b32", "v_permlane16_swap_b32"):
                m1 = epi(f"v_mov_b32 v{rl}, v{L}", "valu", rd=[f"v{L}"], wr=[f"v{rl}"], early=lastsync,
                         deps=[(prev, 0)] if prev else [(o, 0) for o in ladds[x][-16:]])
                m2 = epi(f"{sw} v{rl}, v{L}", "valu", rd=[f"v{L}", f"v{rl}"], wr=[f"v{L}", f"v{rl}"], deps=[(m1, 2)])
                prev = epi(f"v_add_f32 v{L}, v{L}, v{rl}", "valu", rd=[f"v{L}", f"v{rl}"], wr=[f"v{L}"], deps=[(m2, 0)])
        cm = epi(f"v_cmp_nge_f32 s[{sBAD + 2 * x}:{sBAD + 2 * x + 1}], s{sTHR}, v{L}", "valu", rd=[f"v{L}"],
                 wr=[f"s{sBAD + 2 * x}"], deps=[(prev, 0)])
        rc = epi(f"v_rcp_f32 v{rl}, v{L}", "trans", rd=[f"v{L}"], wr=[f"v{rl}"], deps=[(cm, 0)])
        p, ob = Oreg[x]
        so = (xi % 2) * TILE
        wrs = []
        for b in range(8):
            prod = mf[last_use["O", x, b]]
            o = ob + 4 * b
            if p == "a":
                t = tq.pop(0)
                tq.append(t)
                dep0 = [(d, 0) for d in (tfree[t] or lastsm)]
                src4 = [[(epi(f"v_accvgpr_read_b32 v{t + i}, a{o + i}", "valu", rd=[f"a{o + i}"], wr=[f"v{t + i}"],
                              deps=[(prod, 8)] + dep0, early=tdead + 1), 0)] for i in range(4)]
            else:
                t = o
                src4 = [[(prod, 8)] for i in range(4)]
            mu = [epi(f"v_mul_f32 v{t + i}, v{rl}, v{t + i}", "valu", rd=[f"v{rl}", f"v{t + i}"], wr=[f"v{t + i}"],
                      deps=src4[i] + [(rc, 1)]) for i in range(4)]
            for i in (0, 2):
                sel = "op_sel:[0,1] op_sel_hi:[1,1]" if rl % 2 else "op_sel_hi:[1,0]"
                mulpair[mu[i]] = (mu[i + 1], f"v_pk_mul_f32 {rr('v', t + i, 2)}, {rr('v', t + i, 2)}, "
                                             f"{rr('v', rl & ~1, 2)} {sel}")
            c0 = epi(f"v_cvt_pk_bf16_f32 v{t}, v{t}, v{t + 1}", "valu", rd=[f"v{t}", f"v{t + 1}"], wr=[f"v{t}"],
                     deps=[(mu[0], 0), (mu[1], 0)])
            c1 = epi(f"v_cvt_pk_bf16_f32 v{t + 1}, v{t + 2}, v{t + 3}", "valu", rd=[f"v{t + 2}", f"v{t + 3}"],
                     wr=[f"v{t + 1}"], deps=[(mu[2], 0), (mu[3], 0), (c0, 0)])
            w = epi(f"ds_write_b64 v{vOW}, {rr('v', t, 2)} offset:{so + 32 * b}", "ldsw",
                    rd=[f"v{vOW}", f"v{t}", f"v{t + 1}"], early=10 ** 9,
                    deps=[(c0, 0), (c1, 0)] + [(r, 0) for r in stage_r.get(xi - 2, [])])
            wrs.append(w)
            stage_w.append(w)
            if p == "a":
                tfree[t] = [w]
        stage_r[xi] = [epi(f"ds_read_b128 {rr(p, ob + 4 * i, 4)}, v{vOR} offset:{so + 272 * i}", "ldsr",
                           rd=[f"v{vOR}"], wr=regs(p, ob + 4 * i, 4), deps=[(w, 0) for w in wrs]) for i in range(4)]
        for i, r in enumerate(stage_r[xi]):
            off = f" offset:{i * 1024}" if i else ""
            epi(f"buffer_store_dwordx4 {rr(p, ob + 4 * i, 4)}, v{vOG}, s[{sO}:{sO + 3}], s{sX + x} offen{off} {st}".rstrip(),
                "vmem", rd=regs(p, ob + 4 * i, 4) + [f"v{vOG}"], deps=[(r, a.stdist)], needs=[r])

    pending = sorted(F, key=lambda o: o.prio)
    overflow = 0
    leads = []

    def ready(op, strict=True):
        if op.early > E.gap:
            return False
        for d, dist in op.deps:
            if d.idx is None or (strict and E.nst - d.st < dist):
                return False
        return True

    def put(op):
        if op.cls == "ldsr":
            finalize_read(op)
        if op.needs:
            E.lds_wait(op.needs)
        E.emit(op)
        pending.remove(op)

    def closure(op, acc):
        assert op.early <= E.gap, ("cannot meet deadline", op.text, op.tag, op.early, E.gap)
        for d, _ in op.deps:
            if d.idx is None and d not in acc:
                assert d.cls != "mfma", ("deadline before producer", op.text, E.gap)
                closure(d, acc)
        if op not in acc:
            acc.append(op)

    def drain(merge_mul=False):
        while True:
            cand = [o for o in pending if ready(o)] or [o for o in pending if ready(o, False)]
            if not cand:
                return
            o = cand[0]
            if merge_mul and o in mulpair and mulpair[o][0].idx is None and ready(mulpair[o][0], False):
                o2, o.text = mulpair[o]
                o.rd += o2.rd
                o.wr += o2.wr
                put(o)
                o2.idx, o2.st = o.idx, o.st
                pending.remove(o2)
            else:
                put(o)

    def signal(ep):
        for t in ep["tiles"]:
            assert t in dma_op and dma_op[t].idx is not None, ("tile not issued before its epoch", t, ep)
            leads.append(E.gap - dma_op[t].gap)
        stamp("b")
        E.vm_wait([dma_op[t] for t in ep["tiles"]])
        stamp("w")
        ep["rel"] = [t for t, rs in tile_reads.items() if t not in released and t in slot_of and
                     all(r.idx is not None and (not ep["bar"] or r.ldsn < E.lds_done) for r in rs)]
        released.update(ep["rel"])

    def passed(ep):
        if ep["n"] == 1:
            for s in range(q0, q0 + 16, 2):
                free_slots["K" if s < NK else "V"].append(s)
        for t in ep["rel"]:
            free_slots[t[0]].append(slot_of[t])
        if ("K", 11) in slot_of and all(s in free_slots["K"] for s in range(0, 8, 2)):
            for w in stage_w:
                w.early = min(w.early, E.gap)

    dper = [int(x) for x in a.dmaper.split(",")]
    next_dma_gap = G0 + a.dma0
    staged = None
    for g in range(-1, NMF):
        E.gap = g
        if g >= 0:
            E.emit(mf[g])
        if g in qgap:
            drain()
            q_prepare(qgap[g])
            if g == G0:
                stamp()
            E.lds_wait(mf[g + 1].needs)
            continue
        shadow = True
        budget = 8 if g < tdead + a.fstart else a.fbudget
        fixed_mem, fixed_valu = [], []
        for ep in epochs:
            if ep["bar"]:
                if g == ep["gc"]:
                    signal(ep)
                    e("s_barrier", "barrier")
                    stamp("b")
                    passed(ep)
                    shadow = False
                continue
            if g == ep["gs"] - 1:
                fixed_valu.append(Op(f"v_mov_b32 v{vFE}, {ep['n']}", "valu", wr=[f"v{vFE}"]))
            if g == ep["gs"]:
                signal(ep)
                shadow = False
                E.emit(Op(f"ds_write_b32 v{vFW}, v{vFE}", "ldsw", rd=[f"v{vFW}", f"v{vFE}"]))
                budget -= 8
            if g == ep["gr"]:
                ep["rd"] = Op(f"ds_read_b32 v{vFT}, v{vFR}", "ldsr", rd=[f"v{vFR}"], wr=[f"v{vFT}"])
                fixed_mem.append(ep["rd"])
            if g == ep["gc"] - 1:
                if E.lds_wait([ep["rd"]], a.lat):
                    shadow = False
                fixed_valu.append(Op(f"v_cmp_gt_u32 vcc, {ep['n']}, v{vFT}", "valu", rd=[f"v{vFT}"], wr=["vcc"]))
            if g == ep["gc"]:
                e(f"s_cbranch_vccnz L_spin{ep['n']}")
                E.label(f"L_ok{ep['n']}")
                passed(ep)
                shadow = False
        if a.stamps and g in [first_use["S", gs, 0] for gs in (4, 8, 12, 16, 20, 24, 28)] + [tdead]:
            stamp()
        if g > G0 and (g - G0) % a.stampper == 1:
            stamp("p")
        if g + 1 < NMF and mf[g + 1].needs and all(n.idx is not None for n in mf[g + 1].needs):
            if E.lds_wait(mf[g + 1].needs, a.lat):
                shadow = False
        quiet = not any(not ep["bar"] and g + 1 in (ep["gs"] - 1, ep["gs"], ep["gr"], ep["gc"] - 1) for ep in epochs)
        if staged is not None:
            for o in staged:
                E.emit(o)
            staged = None
            budget -= a.dmacost
        elif shadow and quiet and di < len(dma_order) and g >= next_dma_gap and slot_for(dma_order[di]) is not None:
            pre, staged = make_dma(dma_order[di])
            di += 1
            E.emit(pre)
            next_dma_gap = max(next_dma_gap, g - 4) + dper[0]
            if len(dper) > 1:
                dper.pop(0)
        budget -= 4 * (len(fixed_mem) + len(fixed_valu))
        full = budget >= 8
        picks = []
        for o in pending:
            if o.dead <= g:
                closure(o, picks)
        budget -= sum(COST[o.cls] for o in picks)
        cand = [o for o in pending[:400] if o not in picks and ready(o)]
        if full and not picks and cand:
            first = cand[0]
            small = [o for o in cand if COST[o.cls] == 4]
            tr = [o for o in cand if o.cls == "trans"]
            if COST[first.cls] == 4 and len(small) < 2 and tr:
                first = tr[0]
            picks.append(first)
            budget -= COST[first.cls]
        for o in cand:
            if o not in picks and COST[o.cls] <= budget:
                picks.append(o)
                budget -= COST[o.cls]
        mem = [o for o in picks if o.cls in ("ldsr", "ldsw", "vmem") and all(d.idx is not None for d, _ in o.deps)]
        rest = [o for o in picks if o not in mem]
        for o in fixed_mem:
            E.emit(o)
        for o in mem:
            put(o)
        for o in fixed_valu:
            E.emit(o)
        while rest:
            o = ([o for o in rest if ready(o)] or [o for o in rest if ready(o, False)])[0]
            put(o)
            rest.remove(o)
        while budget > 0:
            more = [o for o in pending[:400] if o.cls == "valu" and ready(o)]
            if not more:
                break
            put(more[0])
            budget -= 4
        if full and not picks and budget >= 8 and any(ready(o, False) for o in pending[:400]):
            e("s_nop 1", "nop")
        if a.dbgnop:
            n0, n1, ev, ln = [int(x) for x in a.dbgnop.split(",")]
            if n0 <= g < n1 and g % ev == 0:
                e(f"s_nop {ln}", "nop")
        if g > G0:
            overflow += max(0, -budget)
        if g + 1 < NMF and mf[g + 1].needs:
            E.lds_wait(mf[g + 1].needs)
    assert staged is None and di == len(dma_order) and not pro_q
    stamp()
    ntail = len(pending)
    drain(a.pk)
    assert not pending
    stamp()

    e(f"s_or_b64 s[{sBAD}:{sBAD + 1}], s[{sBAD}:{sBAD + 1}], s[{sBAD + 2}:{sBAD + 3}]")
    e(f"s_or_b64 s[{sBAD + 4}:{sBAD + 5}], s[{sBAD + 4}:{sBAD + 5}], s[{sBAD + 6}:{sBAD + 7}]")
    e(f"s_or_b64 s[{sBAD}:{sBAD + 1}], s[{sBAD}:{sBAD + 1}], s[{sBAD + 4}:{sBAD + 5}]")
    e(f"s_cselect_b32 s{sTMP}, 1, 0")
    e(f"s_lshl_b32 s{sC}, s{sW}, 2")
    e(f"s_add_u32 s{sC}, s{sC}, {FLAG_OFF}")
    va(f"v_mov_b32 v12, s{sC}")
    va(f"v_mov_b32 v13, s{sTMP}")
    va(f"v_mov_b32 v14, {FLAG_OFF}")
    e("ds_write_b32 v12, v13", "ldsw", rd=["v12", "v13"])
    E.lds_drain()
    e("s_barrier", "barrier")
    e("ds_read_b128 v[16:19], v14", "ldsr", rd=["v14"], wr=regs("v", 16, 4))
    E.lds_drain()
    v("v_or3_b32 v16, v16, v17, v18", ["v16"], regs("v", 16, 3))
    v("v_or_b32 v16, v16, v19", ["v16"], ["v16", "v19"])
    v(f"v_readfirstlane_b32 s{sTMP}, v16", [f"s{sTMP}"], ["v16"])
    e(f"s_andn2_b32 s{sTMP}, s{sTMP}, s{sMODE}", rd=[f"s{sTMP}"])
    e("s_cbranch_scc1 L_rerun")
    if a.stamps:
        e("s_waitcnt vmcnt(0)", "wait")
        stamp("x")
        E.lds_drain()
        e(f"s_mov_b32 s{sWS + 2}, 1048576")
        e(f"s_mov_b32 s{sWS + 3}, 0x20000")
        e(f"s_lshl_b32 s{sTMP}, s2, 2")
        e(f"s_add_u32 s{sTMP}, s{sTMP}, s{sW}")
        e(f"s_mul_i32 s{sTMP}, s{sTMP}, {8 * nstamp[0]}")
        va("v_mov_b32 v12, 0")
        for i in range(nstamp[0]):
            va(f"v_mov_b32 v14, s{stampreg[i]}")
            va(f"v_mov_b32 v15, s{stampreg[i] + 1}")
            e(f"buffer_store_dwordx2 v[14:15], v12, s[{sWS}:{sWS + 3}], s{sTMP} offen offset:{8 * i}", "vmem",
              rd=["v14", "v15", "v12"])
            e("s_nop 1", "nop")
    if a.spin:
        e("s_waitcnt vmcnt(0)", "wait")
        E.label("L_diag")
        e("s_memrealtime s[62:63]", "smem")
        e("s_waitcnt lgkmcnt(0)", "wait")
        e("s_sub_u32 s62, s62, s60")
        e(f"s_cmp_lt_u32 s62, {a.spin * 100}")
        e("s_cbranch_scc1 L_diag")
    E.label("L_end")
    e("s_endpgm", "end")

    for ep in epochs:
        if not ep["bar"]:
            E.label(f"L_spin{ep['n']}")
            e(f"ds_read_b32 v{vFT}, v{vFR}", "ldsr", rd=[f"v{vFR}"], wr=[f"v{vFT}"])
            e("s_waitcnt lgkmcnt(0)", "wait")
            v(f"v_cmp_gt_u32 vcc, {ep['n']}, v{vFT}", ["vcc"], [f"v{vFT}"])
            e(f"s_cbranch_vccnz L_spin{ep['n']}")
            e(f"s_branch L_ok{ep['n']}")
    E.label("L_codeend")

    E.label("L_rerun")
    e(f"s_mov_b32 s{sMODE}, 1")
    e("s_waitcnt vmcnt(0) lgkmcnt(0)", "wait")
    e("s_barrier", "barrier")
    e("s_branch L_start")

    E.label("L_maxpass")
    va(f"v_and_b32 v{vT1}, 3, v{vLN}")
    va(f"v_bfe_u32 v{vT2}, v{vLN}, 2, 2")
    va(f"v_lshl_add_u32 v{vT1}, v{vT1}, 2, v{vT2}")
    va(f"v_lshrrev_b32 v{vT2}, 4, v{vLN}")
    va(f"v_lshlrev_b32 v{vT1}, 8, v{vT1}")
    va(f"v_lshl_add_u32 v{vT1}, v{vT2}, 4, v{vT1}")
    va(f"v_add_u32 v{vT1}, {BIAS}, v{vT1}")
    e(f"s_lshl_b32 s{sTMP}, s{sW}, 11")
    va(f"v_add_u32 v{vT2}, s{sTMP}, v{vT1}")
    for x in range(4):
        for s in range(4):
            e(f"buffer_load_dwordx4 {rr('v', QT + 4 * s, 4)}, v{vT2}, s[{sQ}:{sQ + 3}], s{sX + x} offen offset:{64 * s}",
              "vmem", rd=[f"v{vT2}"], wr=regs("v", QT + 4 * s, 4))
        e("s_waitcnt vmcnt(0)", "wait")
        for s in range(4):
            q_scale(x, s)
    e(f"s_mov_b32 s{sTMP}, 0")
    E.label("L_maxloop")
    for s in range(4):
        e(f"buffer_load_dwordx4 {rr('v', QT + 4 * s, 4)}, v{vT1}, s[{sK}:{sK + 3}], s{sTMP} offen offset:{64 * s}",
          "vmem", rd=[f"v{vT1}"], wr=regs("v", QT + 4 * s, 4))
    e("s_waitcnt vmcnt(0)", "wait")
    for x in range(4):
        S = Sreg[x]
        for s in range(4):
            C, cr = ("0", []) if s == 0 else (rr("v", S, 4), regs("v", S, 4))
            E.emit(Op(f"v_mfma_f32_16x16x32_bf16 {rr('v', S, 4)}, {rr('v', QT + 4 * s, 4)}, {rr('a', Qreg[x][s], 4)}, {C}",
                      "mfma", rd=regs("v", QT + 4 * s, 4) + regs("a", Qreg[x][s], 4) + cr, wr=regs("v", S, 4), srcc=cr))
    e("s_nop 7", "nop")
    for x in range(4):
        S, n = Sreg[x], NM[x]
        v(f"v_max3_f32 v{n}, v{S}, v{S + 1}, v{n}", [f"v{n}"], [f"v{S}", f"v{S + 1}", f"v{n}"])
        v(f"v_max3_f32 v{n}, v{S + 2}, v{S + 3}, v{n}", [f"v{n}"], [f"v{S + 2}", f"v{S + 3}", f"v{n}"])
    e(f"s_add_u32 s{sTMP}, s{sTMP}, 4096")
    e(f"s_cmp_lt_u32 s{sTMP}, 131072")
    e("s_cbranch_scc1 L_maxloop")
    e("s_nop 3", "nop")
    e("s_branch L_maxdone")

    ops, nnop = fix_hazards(E.out)
    if a.pads:
        ops = insert_pads(ops)
    if a.verbose:
        print("G0", G0, "tdead", tdead)
        print([(ep["gs"], ep["gc"], [t[0] + str(t[1]) for t in ep["tiles"]]) for ep in epochs])
        print("leads", leads)
    info = dict(mfma=NMF, instrs=len(ops), nops=nnop, overflow=overflow, tail=ntail, epochs=len(epochs),
                minlead=min(leads[a.ninit:]), pslots=len(Pbases), fslots=len(Fbases), stamps=nstamp[0])
    head = [
        "; GQA attention forward, B=32 Hq=32 Hkv=8 Sq=64 Sk=512 D=128, bf16 in / bf16 out (generated schedule).",
        "; kernarg: q @0, k @8, v @16, out @24, debug @32, ws @40",
        "; One workgroup per (batch, kv head); wave w handles q head 4*hkv+w.",
        "; Softmax shift: row max of the first keys; a final check on the row sums reruns the",
        "; workgroup with the true row max (L_rerun / L_maxpass) whenever that shift is unsafe.",
        f"; @launch grid=(256,1,1) block=(256,1,1) lds={LDS_BYTES}",
        '.amdgcn_target "amdgcn-amd-amdhsa--gfx950"', ".text", f".globl {KNAME}", ".p2align 8",
        f".type {KNAME},@function", f"{KNAME}:"]
    body = [(o.text if o.cls == "label" else "    " + o.text) for o in ops]
    tail = ['.section .rodata,"a"', ".p2align 6", f".amdhsa_kernel {KNAME}",
            "  .amdhsa_next_free_vgpr 512", "  .amdhsa_next_free_sgpr 102", "  .amdhsa_accum_offset 256",
            "  .amdhsa_group_segment_fixed_size 0", "  .amdhsa_kernarg_size 48", "  .amdhsa_user_sgpr_count 2",
            "  .amdhsa_user_sgpr_kernarg_segment_ptr 1", "  .amdhsa_system_sgpr_workgroup_id_x 1",
            ".end_amdhsa_kernel"]
    return "\n".join(head + body + tail) + "\n", info


def parser():
    ap = argparse.ArgumentParser()
    ap.add_argument("out")
    for k, d in dict(groups="2,2,4,4,4,4,4,8", final="0,1,2,3", ones="0123", oacc="0", ld="nt", st="nt", sync="flag",
                     merge="12", win="10,10,16", dmaper="29", stampat="m", dbgnop="", dbgload="").items():
        ap.add_argument("--" + k, default=d)
    for k, d in dict(ns=5, lag=3, lat=6, skew=8, nbar=1, dmacost=8, dma0=8, rdbias=8, hoist=64, stdist=12, q0=10,
                     ninit=3, infl=8, halftop=0, prek=2, prev=1, nc0=3, nmax=1, fbudget=12, fstart=16, pk=1,
                     rot=0, stampper=60, stamps=0, spin=0, pfcode=1, pads=1, verbose=0).items():
        ap.add_argument("--" + k, type=int, default=d)
    return ap


if __name__ == "__main__":
    a = parser().parse_args()
    txt, info = build(a)
    open(a.out, "w").write(txt)
    print(a.out, info)
```

```python
import argparse, math, re, struct, sys

KNAME = "standalone__gqa_softmax__near_ridge_kernel"
TILE = 4352
GRAN = 1088
NSLOT = 36
LDS_BYTES = 163840
FLAG_OFF = NSLOT * TILE
SYNC_OFF = FLAG_OFF + 256


def f32bits(x):
    return struct.unpack("<I", struct.pack("<f", x))[0]


def regs(p, lo, n):
    return [f"{p}{lo + i}" for i in range(n)]


def rr(p, lo, n):
    return f"{p}[{lo}:{lo + n - 1}]" if n > 1 else f"{p}{lo}"


class Op:
    __slots__ = ("text", "cls", "rd", "wr", "deps", "early", "dead", "prio", "needs", "idx", "gap",
                 "ldsn", "pre", "vmn", "tag", "srcc", "st")

    def __init__(self, text, cls, rd=(), wr=(), deps=(), early=-1, dead=10 ** 9, needs=(), pre=None, tag=None,
                 srcc=()):
        self.text, self.cls = text, cls
        self.rd, self.wr = list(rd), list(wr)
        self.deps = list(deps)
        self.early, self.dead = early, dead
        self.needs = list(needs)
        self.idx = None
        self.gap = None
        self.ldsn = None
        self.vmn = None
        self.pre = pre
        self.tag = tag
        self.prio = 0
        self.srcc = list(srcc)


COST = dict(trans=8, valu=4, ldsr=4, ldsw=12, vmem=20, salu=4)


class Emitter:
    def __init__(self):
        self.out = []
        self.nlds = 0
        self.lds_done = 0
        self.lds_gap = []
        self.nvm = 0
        self.vm_done = 0
        self.gap = -1
        self.nst = 0

    def emit(self, op):
        self.nst += states(op)
        op.st = self.nst
        op.idx = len(self.out)
        op.gap = self.gap
        if op.cls in ("ldsr", "ldsw"):
            op.ldsn = self.nlds
            self.nlds += 1
            self.lds_gap.append(self.gap)
        if op.cls == "vmem":
            op.vmn = self.nvm
            self.nvm += 1
        self.out.append(op)
        return op

    def raw(self, text, cls="salu", **kw):
        return self.emit(Op(text, cls, **kw))

    def label(self, name):
        self.out.append(Op(name + ":", "label"))

    def lds_wait(self, needs, lat=None):
        need = max((n.ldsn for n in needs), default=-1) + 1
        if need <= self.lds_done:
            return False
        if lat is not None:
            k = need
            while k < self.nlds and self.lds_gap[k] <= self.gap - lat:
                k += 1
            need = k
        n = min(self.nlds - need, 15)
        self.raw(f"s_waitcnt lgkmcnt({n})", "wait")
        self.lds_done = self.nlds - n
        return True

    def lds_drain(self):
        self.raw("s_waitcnt lgkmcnt(0)", "wait")
        self.lds_done = self.nlds

    def vm_wait(self, ops):
        need = max((o.vmn for o in ops), default=-1) + 1
        if need <= self.vm_done:
            return False
        n = min(self.nvm - need, 63)
        self.raw(f"s_waitcnt vmcnt({n})", "wait")
        self.vm_done = self.nvm - n
        return True


def states(op):
    if op.cls == "label":
        return 0
    m = re.match(r"s_nop (\d+)", op.text)
    return int(m.group(1)) + 1 if m else 1


def fix_hazards(ops):
    out = []
    added = 0
    for op in ops:
        if op.cls == "label":
            out.append(op)
            continue
        need = 0
        dist = 0
        rd, wr = set(op.rd), set(op.wr)
        isv = op.cls in ("valu", "trans")
        for p in reversed(out):
            if dist >= 12:
                break
            pw = set(p.wr)
            req = 0
            if p.cls == "mfma":
                if op.cls == "mfma":
                    ab = rd - set(op.srcc)
                    if pw & ab:
                        req = 8
                    if pw & set(op.srcc) and set(op.srcc) != pw:
                        req = max(req, 6)
                    if pw & wr and set(op.srcc) != pw:
                        req = max(req, 6)
                else:
                    if pw & (rd | wr):
                        req = 8
                    if isv and set(p.srcc) & wr:
                        req = max(req, 3)
            elif p.cls in ("valu", "trans"):
                if op.cls == "mfma" and pw & rd:
                    req = 2
                if p.cls == "trans" and op.cls != "trans" and pw & rd:
                    req = max(req, 1)
                if "permlane" in op.text and pw & rd:
                    req = max(req, 2)
                if ("readfirstlane" in op.text or "readlane" in op.text) and pw & rd:
                    req = max(req, 1)
                sw = {r for r in pw if r[0] == "s" or r == "vcc"}
                if sw & rd:
                    req = max(req, 5 if op.cls == "vmem" else 2)
            elif p.cls == "salu":
                if "m0" in pw and op.cls == "vmem" and "m0" in rd:
                    req = 1
            elif p.cls == "vmem":
                if "store" in p.text and set(p.rd) & wr and op.cls != "salu":
                    req = 2
            need = max(need, req - dist)
            dist += states(p)
        if need > 0:
            out.append(Op(f"s_nop {need - 1}", "nop"))
            added += 1
        out.append(op)
    return out, added


def isize(op):
    t = op.text
    if op.cls == "label":
        return 0
    mn = t.split()[0]
    if op.cls in ("mfma", "xmfma", "ldsr", "ldsw", "vmem", "smem"):
        return 8
    if mn in ("s_movk_i32", "s_nop", "s_waitcnt", "s_barrier", "s_branch", "s_endpgm") or mn.startswith("s_cbranch"):
        return 4
    if mn.startswith("v_cmp") and " s[" in t:
        return 8
    if mn.startswith(("v_cvt_pk", "v_max3", "v_accvgpr", "v_pk_", "v_lshl_add", "v_add3", "v_bfe", "v_or3", "v_mbcnt",
                      "v_fma")):
        return 8
    for arg in [x.strip() for x in t[len(mn):].split(",")]:
        if re.fullmatch(r"-?(0x[0-9a-f]+|\d+)", arg) and not -16 <= int(arg, 0) <= 64:
            return 8
        if arg.startswith("L_"):
            return 8
    return 4


def insert_pads(ops):
    i0 = next(i for i, o in enumerate(ops) if o.text == "L_main:")
    i1 = next(i for i, o in enumerate(ops) if o.text == "L_end:")
    out, addr, page, pads = ops[:i0], 0, 1, []
    for i in range(i0, len(ops)):
        o = ops[i]
        if i <= i1 and addr >= 4096 * page:
            good = out[-1].cls == "mfma" and o.cls not in ("salu", "wait", "barrier", "nop")
            if good or addr + isize(o) > 4096 * page + 56:
                lab = Op(f"L_pad{len(pads)}:", "label")
                br = Op("", "salu")
                pads.append(br)
                out += [lab, br]
                addr += 4
                page += 1
        out.append(o)
        addr += isize(o)
    assert len(pads) >= 4
    for k, br in enumerate(pads):
        br.text = f"s_cbranch_execz L_pad{k + 4}" if k + 4 < len(pads) else "s_cbranch_execz L_main"
    return out


class Pool:
    def __init__(self, prefix, bases):
        self.prefix = prefix
        self.rel = {b: -1 for b in bases}

    def add(self, base, release):
        self.rel[base] = release

    def take(self, release):
        b = min(self.rel, key=lambda k: (self.rel[k], k))
        prev = self.rel[b]
        self.rel[b] = release
        return b, prev


def build(a):
    groups = [int(x) for x in a.groups.split(",")]
    assert sum(groups) == 32 and all(g % 2 == 0 for g in groups)
    G = len(groups)
    gstart = [sum(groups[:g]) for g in range(G + 1)]
    ones_x = [int(c) for c in a.ones if c.isdigit()]
    oacc_x = [int(c) for c in a.oacc if c.isdigit()]
    addx = [x for x in range(4) if x not in ones_x]
    ld, st = a.ld, a.st
    PK = 2 * a.prek
    flag = a.sync == "flag"
    E = Emitter()
    e = E.raw

    vK, vV = 1, [2, 3, 4, 5]
    vDK, vDV = (6, 7), (11, 0)
    vOW, vOR, vOG = 8, 9, 10
    vRL = [12, 13, 14, 15]
    vFW, vFR, vFE, vFT = 12, 13, 14, 15
    NM = [16 + 4 * x for x in range(4)]
    vnext, anext, vtop = 32, 0, 256
    Lreg = {}
    for x in ones_x:
        Lreg[x] = anext
        anext += 4
    if addx:
        for i, x in enumerate(addx):
            Lreg[x] = vnext + i
        vnext += 4
    Sreg = [vnext + 4 * i for i in range(a.ns)]
    vnext += 4 * a.ns
    Oreg = {}
    for x in range(4):
        if x in oacc_x:
            Oreg[x] = ("a", anext)
            anext += 32
        else:
            vtop -= 32
            Oreg[x] = ("v", vtop)
    Pbases = list(range(vnext, vtop, 4))
    Qreg = [[anext + 16 * x + 4 * s for s in range(4)] for x in range(4)]
    anext += 64
    aONE = anext
    anext += 4
    Fbases = list(range(anext, 256, 4))
    QT = Pbases[-7]
    UT = QT + 16
    vLN, vQA, vT1, vT2 = QT + 24, QT + 25, QT + 26, QT + 27
    assert len(Pbases) >= 7 + 4 * a.prek

    sQ, sK, sV, sO = 12, 16, 20, 24
    sW, sWG, sMODE, sC, sTHR, sQW, sTMP, sT2 = 3, 28, 29, 30, 31, 34, 35, 32
    sWS = 36
    sOFF = 64
    sX = 80
    sQO = 84
    sBAD = 88

    NK = 16
    q0 = a.q0
    vwin = [NK, NK + 16]

    qk_units = [(j, x) for x in range(4) for j in range(PK)] + [(j, x) for j in range(PK, 32) for x in range(4)]
    uidx = {u: i for i, u in enumerate(qk_units)}
    assert gstart[a.prev + 1] >= PK >= gstart[a.prev]
    pvq = []
    for g in range(G):
        if g < a.prev:
            for x in range(4):
                u = ([("sum", g, None, x)] if x in ones_x else []) + [("pv", g, b, x) for b in range(8)]
                pvq += [(PK * (x + 1) - 0.5, w) for w in u]
            continue
        if g < G - 1:
            u = [("sum", g, None, x) for x in ones_x] + [("pv", g, b, x) for b in range(8) for x in range(4)]
        else:
            u = []
            for xs in [[int(c) for c in part] for part in a.final.split(",")]:
                u += [("sum", g, None, x) for x in xs if x in ones_x]
                u += [("pv", g, b, x) for b in range(8) for x in xs]
        lo = 4 * gstart[g + 1] + a.lag
        hi = 4 * gstart[min(g + 2, G)] + a.lag
        if a.pvend and g < G - 1:
            u0, span = 4 * gstart[a.prev + 1] + a.lag, gstart[G - 1] - gstart[a.prev]
            at = lambda t: u0 + (a.pvend - u0) * ((t - gstart[a.prev]) / span) ** (a.pvgam / 100)
            lo = max(lo, at(gstart[g]))
            hi = max(hi, at(gstart[g + 1])) if g < G - 2 else a.pvend
        pvq += [(lo + (hi - lo) * i / len(u) if g < G - 1 else 10 ** 6, w) for i, w in enumerate(u)]
    pvq.sort(key=lambda p: p[0])
    seq, pi = [], 0
    for ui, (j, x) in enumerate(qk_units):
        while pi < len(pvq) and pvq[pi][0] < ui and (ui <= 4 * PK or ui % a.qrun == 0):
            seq.append(pvq[pi][1])
            pi += 1
        seq.append(("qk", j, x))
    seq += [u for _, u in pvq[pi:]]

    M = []
    flip = False
    for n, u in enumerate(seq):
        same = n > 0 and seq[n - 1][0] == u[0] and (u[0] == "qk" or seq[n - 1][1] == u[1])
        flip = a.snake and same and not flip
        ks = list(range(4 if u[0] == "qk" else groups[u[1]] // 2))
        for i, k in enumerate(ks[::-1] if flip else ks):
            M.append(("qk", u[1], u[2], k, i == 0) if u[0] == "qk" else (u[0], u[1], u[2], u[3], k))
    NMF = len(M)
    first_use, last_use = {}, {}

    def use(key, i):
        first_use.setdefault(key, i)
        last_use[key] = i

    for i, m in enumerate(M):
        if m[0] == "qk":
            _, j, x, s, _ = m
            use(("K", j, s), i)
            use(("S", j, x), i)
            use(("Q", x, s), i)
        else:
            kind, g, b, x, k = m
            kap = gstart[g] // 2 + k
            use(("P", kap, x), i)
            if kind == "pv":
                use(("V", kap, b), i)
                use(("O", x, b), i)
            else:
                use(("L", x), i)
    qgap = {first_use["S", 0, x] - 1: x for x in range(4)}
    G0 = first_use["S", 0, 3] - 1

    ppool = Pool("v", Pbases)
    for b in Pbases[-7:]:
        ppool.add(b, G0 + 1)
    Preg, Pfree = {}, {}
    for kap, x in sorted([(k, x) for k in range(16) for x in range(4)], key=lambda p: uidx[2 * p[0], p[1]]):
        Preg[kap, x], Pfree[kap, x] = ppool.take(last_use["P", kap, x])
    fpool = Pool("a", Fbases)
    for x in range(4):
        for s in range(4):
            fpool.add(Qreg[x][s], last_use["Q", x, s])
    frags = sorted([k for k in first_use if k[0] in "KV"], key=lambda k: first_use[k])
    Freg, Ffree = {}, {}
    for k in frags:
        Freg[k], Ffree[k] = fpool.take(last_use[k])
        assert Ffree[k] < first_use[k] - a.lat or Ffree[k] < 0, ("frag pool too small", k)

    mf = []
    started = set()
    for i, m in enumerate(M):
        if m[0] == "qk":
            _, j, x, s, head = m
            S = Sreg[uidx[j, x] % a.ns]
            A, B = Freg["K", j, s], Qreg[x][s]
            if head:
                C, cr = ("0", []) if j < a.nc0 else (rr("v", NM[x], 4), regs("v", NM[x], 4))
            else:
                C, cr = rr("v", S, 4), regs("v", S, 4)
            mf.append(Op(f"v_mfma_f32_16x16x32_bf16 {rr('v', S, 4)}, {rr('a', A, 4)}, {rr('a', B, 4)}, {C}", "mfma",
                         rd=regs("a", A, 4) + regs("a", B, 4) + cr, wr=regs("v", S, 4), srcc=cr))
        else:
            kind, g, b, x, k = m
            kap = gstart[g] // 2 + k
            if kind == "pv":
                p, o = Oreg[x][0], Oreg[x][1] + 4 * b
                A = Freg["V", kap, b]
                key = ("O", x, b)
            else:
                p, o, A, key = "a", Lreg[x], aONE, ("L", x)
            B = Preg[kap, x]
            C, cr = (rr(p, o, 4), regs(p, o, 4)) if key in started else ("0", [])
            started.add(key)
            ab = [rr('a', A, 4), rr('v', B, 4)]
            if a.dbgswap and kind == "pv":
                ab.reverse()
            mf.append(Op(f"v_mfma_f32_16x16x32_bf16 {rr(p, o, 4)}, {ab[0]}, {ab[1]}, {C}", "mfma",
                         rd=regs("a", A, 4) + regs("v", B, 4) + cr, wr=regs(p, o, 4), srcc=cr))

    tile_first = {}
    for d in range(16):
        tile_first["K", d] = min(first_use["K", 2 * d, s] for s in range(4))
        tile_first["V", d] = min(first_use["V", d, b] for b in range(8))
    dma_order = sorted(tile_first, key=lambda t: (tile_first[t], t[1]))
    pre_tiles = [t for t in dma_order if tile_first[t] <= G0]
    merge = [int(x) for x in a.merge.split(",")]
    wins = [int(x) for x in a.win.split(",")]
    nbar = a.nbar if flag else 99
    epochs, pub = [], {t: -1 for t in pre_tiles}
    for t in dma_order[len(pre_tiles):]:
        k = len(epochs)
        gc = max(tile_first[t] - wins[min(k, len(wins) - 1)], G0 + 1)
        if epochs and gc < epochs[-1]["gc"] + merge[min(k - 1, len(merge) - 1)]:
            epochs[-1]["tiles"].append(t)
        else:
            isbar = k < nbar
            epochs.append(dict(gc=gc, gr=gc - (0 if isbar else a.lat + 1), gs=gc - (0 if isbar else a.lat + 1 + a.skew),
                               tiles=[t], bar=isbar, n=k + 1))
            assert epochs[-1]["gs"] > G0 and (k == 0 or epochs[-1]["gr"] > epochs[-2]["gc"])
            assert k == 0 or epochs[-1]["gs"] > epochs[-2]["gs"]
        pub[t] = epochs[-1]["gc"]
    free_slots = {"K": [s for s in range(0, NK, 2) if not q0 <= s < q0 + 16],
                  "V": [s for s in range(NK, NSLOT, 2) if not q0 <= s < q0 + 16]}
    slot_of, dma_op = {}, {}
    tile_reads = {t: [] for t in tile_first}
    released = set()

    def slot_for(t):
        c = [s for s in free_slots[t[0]] if not (t[0] == "K" and t[1] >= 12 and s < 8)]
        if t[0] == "K" and 8 <= t[1] < 12:
            c.sort(key=lambda s: s >= 8)
        return c[0] if c else None

    def dma_pair(srd, vo, soff):
        return [Op(f"buffer_load_dwordx4 v{vo[i]}, s[{srd}:{srd + 3}], s{soff} offen{' offset:%d' % GRAN if i else ''} {ld} lds"
                   .replace("  ", " "), "vmem", rd=["m0", f"v{vo[i]}"]) for i in range(2)]

    def make_dma(t):
        sl = slot_for(t)
        free_slots[t[0]].remove(sl)
        slot_of[t] = sl
        srd, vo = (sK, vDK) if t[0] == "K" else (sV, vDV)
        pre = Op(f"s_add_u32 m0, s{sWG}, {sl * TILE}", "salu", wr=["m0"])
        ops = dma_pair(srd, vo, sOFF + t[1])
        dma_op[t] = ops[1]
        return pre, ops

    nstamp = [0]
    stampreg = list(range(40, 64, 2)) + [4, 6, 8, 10, 96, 98, 32, 100]

    def stamp(kind="m"):
        if a.stamps and (kind in a.stampat or kind == "x") and (nstamp[0] < 18 or kind == "x"):
            for k, ins in enumerate(("s_memrealtime", "s_memtime")):
                if a.stamps >> k & 1:
                    r = stampreg[nstamp[0]]
                    nstamp[0] += 1
                    e(f"{ins} s[{r}:{r + 1}]", "smem")

    def v(text, wr, rd=(), cls="valu"):
        return e(text, cls, rd=list(rd), wr=list(wr))

    def va(text):
        return v(text, [text.split()[1].rstrip(",")])

    BIAS = GRAN - 1024
    e("s_cmp_ge_u32 s2, 256")
    e("s_cbranch_scc1 L_end")
    if a.spin:
        e("s_memrealtime s[60:61]", "smem")
    e("s_load_dwordx8 s[4:11], s[0:1], 0", "smem")
    if a.stamps:
        e(f"s_load_dwordx2 s[{sWS}:{sWS + 1}], s[0:1], 40", "smem")
    if a.pfcode:
        e("s_getpc_b64 s[96:97]")
        E.label("L_pc")
        e("s_add_u32 s96, s96, L_main-L_pc")
        e("s_addc_u32 s97, s97, 0")
        e("s_mov_b32 s98, L_codeend-L_main")
        e("s_mov_b32 s99, 0x20000")
        e(f"s_lshr_b32 s{sTHR}, s2, 3")
        e(f"s_lshl_b32 s{sTHR}, s{sTHR}, 10")
        va("v_lshlrev_b32 v15, 2, v0")
        e(f"buffer_load_dword v{UT}, v15, s[96:99], s{sTHR} offen", "vmem", rd=["v15"], wr=[f"v{UT}"])
    va("v_lshrrev_b32 v12, 6, v0")
    va(f"v_and_b32 v{vLN}, 63, v0")
    v(f"v_readfirstlane_b32 s{sW}, v12", [f"s{sW}"], ["v12"])
    va(f"v_lshrrev_b32 v13, 4, v{vLN}")
    va("v_and_b32 v14, 2, v13")
    va(f"v_xor_b32 v14, v14, v{vLN}")
    va("v_lshlrev_b32 v14, 4, v14")
    va(f"v_lshl_add_u32 v{vDK[1]}, v12, 11, v14")
    va(f"v_add_u32 v{vDK[0]}, {BIAS}, v{vDK[1]}")
    va("v_and_b32 v14, 1, v13")
    va("v_lshlrev_b32 v14, 1, v14")
    va(f"v_xor_b32 v14, v14, v{vLN}")
    va("v_lshlrev_b32 v14, 4, v14")
    va(f"v_lshl_add_u32 v{vDV[1]}, v12, 11, v14")
    va(f"v_add_u32 v{vDV[0]}, {BIAS}, v{vDV[1]}")
    e(f"s_mul_i32 s{sWG}, s{sW}, {2 * GRAN}", rd=[f"s{sW}"])
    e(f"s_mul_i32 s{sQW}, s{sW}, {4 * TILE}")
    e(f"s_add_u32 s{sQW}, s{sQW}, {q0 * TILE}")
    e(f"s_mov_b32 s{sMODE}, 0")
    e(f"s_lshl_b32 s{sTMP}, s2, 2")
    e(f"s_add_u32 s{sTMP}, s{sTMP}, s{sW}")
    e(f"s_lshl_b32 s{sTMP}, s{sTMP}, 14")
    e(f"s_lshl_b32 s{sC}, s2, 17")
    e(f"s_lshl_b32 s{sT2}, s{sW}, 11")
    e(f"s_add_u32 s{sQ + 2}, s{sT2}, {16384 + BIAS}")
    e(f"s_sub_u32 s{sT2}, s{sTMP}, s{sT2}")
    for d, size in ((sK, 131072 + BIAS), (sV, 131072 + BIAS), (sO, 16384)):
        e(f"s_mov_b32 s{d + 2}, {size}")
    for d in (sQ, sK, sV, sO):
        e(f"s_mov_b32 s{d + 3}, 0x20000")
    def set_off(j):
        if a.rot and j:
            e(f"s_xor_b32 s{sOFF + j}, s{sOFF}, {j * 8192}")
        elif a.rot:
            e(f"s_lshr_b32 s{sOFF}, s2, {a.rot - 1}")
            e(f"s_lshl_b32 s{sOFF}, s{sOFF}, 13")
            e(f"s_and_b32 s{sOFF}, s{sOFF}, 0x1ffff")
        else:
            e(f"s_mov_b32 s{sOFF + j}, {j * 8192}")

    for j in range(a.prek):
        set_off(j)
    e("s_waitcnt lgkmcnt(0)", "wait")
    for d, p, o in ((sK, 6, sC), (sQ, 4, sT2), (sV, 8, sC), (sO, 10, sTMP)):
        e(f"s_add_u32 s{d}, s{p}, s{o}")
        e(f"s_addc_u32 s{d + 1}, s{p + 1}, 0")
        if d != sO:
            e(f"s_sub_u32 s{d}, s{d}, {BIAS}")
            e(f"s_subb_u32 s{d + 1}, s{d + 1}, 0")
    stamp("x")
    E.label("L_start")
    di = 0
    qdma = {}
    pro_q = ([("t",)] * len(pre_tiles) + [("q", x, g) for x in range(4) for g in range(2)] + [("t",)] * a.ninit)

    def topup(limit):
        nonlocal di
        while pro_q and E.nvm - E.vm_done < limit:
            it = pro_q.pop(0)
            if it[0] == "t":
                pre, ops = make_dma(dma_order[di])
                di += 1
                for o in [pre] + ops:
                    E.emit(o)
            else:
                _, x, g = it
                e(f"s_add_u32 m0, s{sQW}, {x * TILE + 2 * g * GRAN}", wr=["m0"])
                so = sQO + (2 * x + g) % 4
                e(f"s_movk_i32 s{so}, {x * 4096 + g * 2048}")
                for o in dma_pair(sQ, vDK, so):
                    qdma[x, g] = E.emit(o)

    topup(a.infl0 or a.infl)
    for j in range(a.prek, 16):
        set_off(j)
    for j in range(4):
        e(f"s_movk_i32 s{sX + j}, {j * 4096}")
    va(f"v_mbcnt_lo_u32_b32 v{vLN}, -1, 0")
    va(f"v_mbcnt_hi_u32_b32 v{vLN}, -1, v{vLN}")
    e(f"s_mov_b32 s{sC}, {f32bits(math.log2(math.e) / math.sqrt(128.0)):#x}")
    e(f"s_mov_b32 s{sTHR}, {f32bits(2.0 ** 32):#x}")
    va(f"v_and_b32 v12, 3, v{vLN}")
    va(f"v_bfe_u32 v13, v{vLN}, 2, 2")
    va(f"v_lshrrev_b32 v14, 4, v{vLN}")
    va(f"v_mul_u32_u24 v{vK}, {GRAN}, v12")
    va(f"v_lshl_add_u32 v{vK}, v13, 8, v{vK}")
    va("v_and_b32 v15, 2, v13")
    va("v_xor_b32 v15, v15, v14")
    va(f"v_lshl_add_u32 v{vK}, v15, 4, v{vK}")
    va(f"v_add_u32 v{vQA}, s{sQW}, v{vK}")
    va(f"v_mul_u32_u24 v{vV[0]}, {GRAN}, v13")
    va(f"v_lshl_add_u32 v{vV[0]}, v14, 8, v{vV[0]}")
    va(f"v_lshl_add_u32 v{vV[0]}, v12, 3, v{vV[0]}")
    va("v_and_b32 v15, 1, v14")
    va(f"v_lshl_add_u32 v{vV[0]}, v15, 5, v{vV[0]}")
    va(f"v_xor_b32 v{vV[1]}, 32, v{vV[0]}")
    va(f"v_add_u32 v{vV[2]}, {vwin[1] * TILE}, v{vV[0]}")
    va(f"v_add_u32 v{vV[3]}, {vwin[1] * TILE}, v{vV[1]}")
    va(f"v_add_u32 v{vV[0]}, {vwin[0] * TILE}, v{vV[0]}")
    va(f"v_add_u32 v{vV[1]}, {vwin[0] * TILE}, v{vV[1]}")
    e(f"s_mul_i32 s{sTMP}, s{sW}, {2 * TILE}")
    va(f"v_and_b32 v15, 15, v{vLN}")
    va(f"v_mul_u32_u24 v{vOW}, 272, v15")
    va(f"v_lshl_add_u32 v{vOW}, v14, 3, v{vOW}")
    va(f"v_add_u32 v{vOW}, s{sTMP}, v{vOW}")
    va("v_lshlrev_b32 v13, 2, v14")
    va("v_sub_u32 v15, v15, v13")
    va("v_and_b32 v15, 15, v15")
    va("v_lshlrev_b32 v15, 4, v15")
    va(f"v_lshl_add_u32 v{vOG}, v14, 8, v15")
    va(f"v_mul_u32_u24 v{vOR}, {GRAN}, v14")
    va(f"v_add3_u32 v{vOR}, v{vOR}, v15, s{sTMP}")
    va("v_mov_b32 v15, 0x3f803f80")
    for i in range(4):
        v(f"v_accvgpr_write_b32 a{aONE + i}, v15", [f"a{aONE + i}"], ["v15"])
    for x in range(4):
        va(f"v_mov_b32 v{NM[x]}, 0xff800000")
    for x in addx:
        va(f"v_mov_b32 v{Lreg[x]}, 0")
    if flag:
        e(f"s_lshl_b32 s{sTMP}, s{sW}, 8")
        e(f"s_add_u32 s{sTMP}, s{sTMP}, {SYNC_OFF}")
        va(f"v_lshlrev_b32 v{vFE}, 2, v{vLN}")
        va(f"v_lshl_add_u32 v{vFR}, v12, 8, v{vFE}")
        va(f"v_add_u32 v{vFR}, {SYNC_OFF}, v{vFR}")
        va(f"v_add_u32 v{vFW}, s{sTMP}, v{vFE}")
        va(f"v_mov_b32 v{vFE}, 0")
        e(f"ds_write_b32 v{vFW}, v{vFE}", "ldsw", rd=[f"v{vFW}", f"v{vFE}"])
        E.lds_drain()
    if a.pads:
        e("s_mov_b64 exec, 0")
        for w in range(3):
            e(f"s_cmp_eq_u32 s{sW}, {w}")
            e(f"s_cbranch_scc1 L_pad{w}")
        e("s_branch L_pad3")
        E.out.append(Op(".p2align 12", "label"))
    E.label("L_main")
    if a.pads:
        e("s_mov_b64 exec, -1")

    def finalize_read(op):
        if op.text is not None:
            return
        if op.tag[0] == "K":
            _, j, s = op.tag
            off = (slot_of["K", j // 2] + j % 2) * TILE + 64 * s
            assert off < 65536
            op.text = f"ds_read_b128 {rr('a', Freg['K', j, s], 4)}, v{vK} offset:{off}"
        else:
            _, kap, b, tau = op.tag
            sl = slot_of["V", kap] + tau
            w = 0 if sl < vwin[1] else 1
            off = (sl - vwin[w]) * TILE + 64 * (b >> 1)
            assert off < 65536
            av = vV[2 * w + (b & 1)]
            op.rd = [f"v{av}"]
            op.text = f"ds_read_b64_tr_b16 {rr('a', Freg['V', kap, b] + 2 * tau, 2)}, v{av} offset:{off}"

    kr = {(j, s): Op(None, "ldsr", rd=[f"v{vK}"], wr=regs("a", Freg["K", j, s], 4), tag=("K", j, s))
          for j in range(32) for s in range(4)}
    vr = {(kap, b, t): Op(None, "ldsr", wr=regs("a", Freg["V", kap, b] + 2 * t, 2), tag=("V", kap, b, t))
          for kap in range(16) for b in range(8) for t in range(2)}
    for (j, s), op in kr.items():
        tile_reads["K", j // 2].append(op)
    for (kap, b, t), op in vr.items():
        tile_reads["V", kap].append(op)

    topup(a.infl1)
    for t in pre_tiles:
        E.vm_wait([dma_op[t]])
        topup(a.infl)
    e("s_barrier", "barrier")
    for t in pre_tiles:
        for op in tile_reads[t]:
            finalize_read(op)
            E.emit(op)
    e(f"s_cmp_lg_u32 s{sMODE}, 0")
    e("s_cbranch_scc1 L_maxpass")
    E.label("L_maxdone")

    def q_scale(x, s):
        for i in range(4):
            src, t = QT + 4 * s + i, UT + 2 * i
            v(f"v_lshlrev_b32 v{t}, 16, v{src}", [f"v{t}"], [f"v{src}"])
            v(f"v_and_b32 v{t + 1}, 0xffff0000, v{src}", [f"v{t + 1}"], [f"v{src}"])
        for i in range(4):
            t = UT + 2 * i
            v(f"v_pk_mul_f32 {rr('v', t, 2)}, {rr('v', t, 2)}, s[{sC}:{sC + 1}] op_sel_hi:[1,0]", regs("v", t, 2),
              regs("v", t, 2))
        for i in range(4):
            v(f"v_cvt_pk_bf16_f32 v{UT + 2 * i}, v{UT + 2 * i}, v{UT + 2 * i + 1}", [f"v{UT + 2 * i}"],
              [f"v{UT + 2 * i}", f"v{UT + 2 * i + 1}"])
        for i in range(4):
            v(f"v_accvgpr_write_b32 a{Qreg[x][s] + i}, v{UT + 2 * i}", [f"a{Qreg[x][s] + i}"], [f"v{UT + 2 * i}"])

    def q_prepare(x):
        if a.dbgload:
            E.lds_drain()
            o = UT
            for i in range([int(z) for z in a.dbgload.split(",")][x]):
                A, B = Freg["K", i % 4, (i // 4) % 4], Freg["K", (i + 1) % 4, i % 4]
                E.emit(Op(f"v_mfma_f32_16x16x32_bf16 {rr('v', o + 4 * (i % 2), 4)}, {rr('a', A, 4)}, {rr('a', B, 4)}, 0", "xmfma"))
            e("s_nop 7", "nop")
        if a.halftop:
            E.vm_wait([qdma[x, 0]])
            topup(a.infl)
        E.vm_wait([qdma[x, 1]])
        stamp("q")
        rds = [e(f"ds_read_b128 {rr('v', QT + 4 * s, 4)}, v{vQA} offset:{x * TILE + 64 * s}", "ldsr",
                 rd=[f"v{vQA}"], wr=regs("v", QT + 4 * s, 4)) for s in range(4)]
        topup(a.infl if x < 3 else 99)
        for s in range(4):
            E.lds_wait([rds[s]])
            q_scale(x, s)

    def first_max_ops(x):
        n = NM[x]
        ops = []

        def add(text, wr, rd, dist=0, deps=()):
            ops.append(Op(text, "valu", rd=rd, wr=wr, deps=([(ops[-1], dist)] if ops else []) + list(deps)))

        for j in range(a.nmax):
            S = Sreg[uidx[j, x] % a.ns]
            for r in (S, S + 2):
                add(f"v_max3_f32 v{n}, v{r}, v{r + 1}, v{n}", [f"v{n}"], [f"v{r}", f"v{r + 1}", f"v{n}"],
                    deps=[(mf[last_use["S", j, x]], 8)])
        for sw in ("v_permlane32_swap_b32", "v_permlane16_swap_b32"):
            add(f"v_mov_b32 v{n + 1}, v{n}", [f"v{n + 1}"], [f"v{n}"])
            add(f"{sw} v{n + 1}, v{n}", [f"v{n}", f"v{n + 1}"], [f"v{n}", f"v{n + 1}"], 2)
            add(f"v_max_f32 v{n}, v{n}, v{n + 1}", [f"v{n}"], [f"v{n}", f"v{n + 1}"])
        for i in (1, 2, 3, 0):
            add(f"v_mul_f32 v{n + i}, -1.0, v{n}", [f"v{n + i}"], [f"v{n}"])
        return ops

    F = []
    ladds = {x: [] for x in range(4)}
    nmdone = {}
    for u, (j, x) in enumerate(qk_units):
        S = Sreg[u % a.ns]
        prod = mf[last_use["S", j, x]]
        sdead = first_use[("S",) + qk_units[u + a.ns]] - 1 if u + a.ns < 128 else 10 ** 9
        kap = j // 2
        pdead = max(min(sdead, first_use["P", kap, x] - 2), last_use["S", j, x])
        assert pdead < first_use["P", kap, x]
        if j == 0:
            mops = first_max_ops(x)
            for k, o in enumerate(mops):
                o.dead = max(min(pdead, first_use["S", a.nc0, x] - 2), last_use["S", a.nmax - 1, x])
                assert o.dead < first_use["S", a.nc0, x]
                o.prio = (-1, u, k)
            nmdone[x] = mops[-4]
            F += mops
        ex = []
        for i in range(4):
            op = Op(f"v_exp_f32 v{S + i}, v{S + i}", "trans", rd=[f"v{S + i}"], wr=[f"v{S + i}"],
                    deps=[(prod, 8)], dead=pdead)
            op.prio = (pdead - 4 + i, u, 3 * i)
            if j < a.nc0:
                n = NM[x] + 1
                sub = Op(f"v_add_f32 v{S + i}, v{S + i}, v{n}", "valu", rd=[f"v{S + i}", f"v{n}"], wr=[f"v{S + i}"],
                         deps=[(nmdone[x], 0), (prod, 8)], dead=pdead)
                sub.prio = (pdead - 5 + i, u, 3 * i)
                F.append(sub)
                op.deps.append((sub, 0))
            ex.append(op)
            F.append(op)
            if x in addx:
                ad = Op(f"v_add_f32 v{Lreg[x]}, v{Lreg[x]}, v{S + i}", "valu", rd=[f"v{S + i}", f"v{Lreg[x]}"],
                        wr=[f"v{Lreg[x]}"], deps=[(op, 1)], dead=min(sdead, pdead + 8))
                ad.prio = (pdead - 4 + i, u, 3 * i + 2)
                F.append(ad)
                ladds[x].append(ad)
            if i % 2:
                P = Preg[kap, x] + 2 * (j % 2) + i // 2
                cv = Op(f"v_cvt_pk_bf16_f32 v{P}, v{S + i - 1}, v{S + i}", "valu",
                        rd=[f"v{S + i - 1}", f"v{S + i}"], wr=[f"v{P}"], deps=[(ex[i - 1], 1), (op, 1)],
                        early=Pfree[kap, x], dead=pdead)
                assert Pfree[kap, x] <= pdead, ("P pool too small", kap, x)
                cv.prio = (pdead - 4 + i, u, 3 * i + 1)
                F.append(cv)
    lastsm = F[-12 * a.ns:]
    for key, op in [(("K",) + k, o) for k, o in kr.items()] + [(("V",) + k[:2], o) for k, o in vr.items()]:
        fu = first_use[key]
        mf[fu].needs.append(op)
        if op.idx is None:
            op.early = max(Ffree[key], pub[key[0], key[1] // 2 if key[0] == "K" else key[1]], fu - a.hoist)
            op.dead = max(fu - a.lat, op.early)
            assert op.dead < fu
            op.prio = (op.dead - a.rdbias, -1, fu)
            F.append(op)

    tq = Sreg + NM
    tfree = {b: None for b in tq}
    tdead = max(last_use["S", 31, x] for x in range(4))
    lastsync = epochs[-1]["gc"] + 1
    epi_order = [int(c) for c in a.final if c.isdigit()]
    seqn = [0]
    stage_w, stage_r, mulpair = [], {}, {}

    def epi(text, cls, **kw):
        op = Op(text, cls, **kw)
        seqn[0] += 1
        op.prio = (10 ** 8, seqn[0], 0)
        F.append(op)
        return op

    for xi, x in enumerate(epi_order):
        rl, L = vRL[x], Lreg[x]
        if x in ones_x:
            prev = epi(f"v_accvgpr_read_b32 v{rl}, a{L}", "valu", rd=[f"a{L}"], wr=[f"v{rl}"],
                       deps=[(mf[last_use["L", x]], 8)], early=lastsync)
            L = rl
        else:
            prev = None
            for sw in ("v_permlane32_swap_b32", "v_permlane16_swap_b32"):
                m1 = epi(f"v_mov_b32 v{rl}, v{L}", "valu", rd=[f"v{L}"], wr=[f"v{rl}"], early=lastsync,
                         deps=[(prev, 0)] if prev else [(o, 0) for o in ladds[x][-16:]])
                m2 = epi(f"{sw} v{rl}, v{L}", "valu", rd=[f"v{L}", f"v{rl}"], wr=[f"v{L}", f"v{rl}"], deps=[(m1, 2)])
                prev = epi(f"v_add_f32 v{L}, v{L}, v{rl}", "valu", rd=[f"v{L}", f"v{rl}"], wr=[f"v{L}"], deps=[(m2, 0)])
        cm = epi(f"v_cmp_nge_f32 s[{sBAD + 2 * x}:{sBAD + 2 * x + 1}], s{sTHR}, v{L}", "valu", rd=[f"v{L}"],
                 wr=[f"s{sBAD + 2 * x}"], deps=[(prev, 0)])
        rc = epi(f"v_rcp_f32 v{rl}, v{L}", "trans", rd=[f"v{L}"], wr=[f"v{rl}"], deps=[(cm, 0)])
        p, ob = Oreg[x]
        so = (xi % 2) * TILE
        wrs = []
        for b in range(8):
            prod = mf[last_use["O", x, b]]
            o = ob + 4 * b
            if p == "a":
                t = tq.pop(0)
                tq.append(t)
                dep0 = [(d, 0) for d in (tfree[t] or lastsm)]
                src4 = [[(epi(f"v_accvgpr_read_b32 v{t + i}, a{o + i}", "valu", rd=[f"a{o + i}"], wr=[f"v{t + i}"],
                              deps=[(prod, 8)] + dep0, early=tdead + 1), 0)] for i in range(4)]
            else:
                t = o
                src4 = [[(prod, 8)] for i in range(4)]
            mu = [epi(f"v_mul_f32 v{t + i}, v{rl}, v{t + i}", "valu", rd=[f"v{rl}", f"v{t + i}"], wr=[f"v{t + i}"],
                      deps=src4[i] + [(rc, 1)]) for i in range(4)]
            for i in (0, 2):
                sel = "op_sel:[0,1] op_sel_hi:[1,1]" if rl % 2 else "op_sel_hi:[1,0]"
                mulpair[mu[i]] = (mu[i + 1], f"v_pk_mul_f32 {rr('v', t + i, 2)}, {rr('v', t + i, 2)}, "
                                             f"{rr('v', rl & ~1, 2)} {sel}")
            c0 = epi(f"v_cvt_pk_bf16_f32 v{t}, v{t}, v{t + 1}", "valu", rd=[f"v{t}", f"v{t + 1}"], wr=[f"v{t}"],
                     deps=[(mu[0], 0), (mu[1], 0)])
            c1 = epi(f"v_cvt_pk_bf16_f32 v{t + 1}, v{t + 2}, v{t + 3}", "valu", rd=[f"v{t + 2}", f"v{t + 3}"],
                     wr=[f"v{t + 1}"], deps=[(mu[2], 0), (mu[3], 0), (c0, 0)])
            w = epi(f"ds_write_b64 v{vOW}, {rr('v', t, 2)} offset:{so + 32 * b}", "ldsw",
                    rd=[f"v{vOW}", f"v{t}", f"v{t + 1}"], early=10 ** 9,
                    deps=[(c0, 0), (c1, 0)] + [(r, 0) for r in stage_r.get(xi - 2, [])])
            wrs.append(w)
            stage_w.append(w)
            if p == "a":
                tfree[t] = [w]
        stage_r[xi] = [epi(f"ds_read_b128 {rr(p, ob + 4 * i, 4)}, v{vOR} offset:{so + 272 * i}", "ldsr",
                           rd=[f"v{vOR}"], wr=regs(p, ob + 4 * i, 4), deps=[(w, 0) for w in wrs]) for i in range(4)]
        for i, r in enumerate(stage_r[xi]):
            off = f" offset:{i * 1024}" if i else ""
            epi(f"buffer_store_dwordx4 {rr(p, ob + 4 * i, 4)}, v{vOG}, s[{sO}:{sO + 3}], s{sX + x} offen{off} {st}".rstrip(),
                "vmem", rd=regs(p, ob + 4 * i, 4) + [f"v{vOG}"], deps=[(r, a.stdist)], needs=[r])

    pending = sorted(F, key=lambda o: o.prio)
    overflow = 0
    leads = []

    def ready(op, strict=True):
        if op.early > E.gap:
            return False
        for d, dist in op.deps:
            if d.idx is None or (strict and E.nst - d.st < dist):
                return False
        return True

    def put(op):
        if op.cls == "ldsr":
            finalize_read(op)
        if op.needs:
            E.lds_wait(op.needs)
        E.emit(op)
        pending.remove(op)

    def closure(op, acc):
        assert op.early <= E.gap, ("cannot meet deadline", op.text, op.tag, op.early, E.gap)
        for d, _ in op.deps:
            if d.idx is None and d not in acc:
                assert d.cls != "mfma", ("deadline before producer", op.text, E.gap)
                closure(d, acc)
        if op not in acc:
            acc.append(op)

    def drain(merge_mul=False):
        while True:
            cand = [o for o in pending if ready(o)] or [o for o in pending if ready(o, False)]
            if not cand:
                return
            o = cand[0]
            if merge_mul and o in mulpair and mulpair[o][0].idx is None and ready(mulpair[o][0], False):
                o2, o.text = mulpair[o]
                o.rd += o2.rd
                o.wr += o2.wr
                put(o)
                o2.idx, o2.st = o.idx, o.st
                pending.remove(o2)
            else:
                put(o)

    def signal(ep):
        for t in ep["tiles"]:
            assert t in dma_op and dma_op[t].idx is not None, ("tile not issued before its epoch", t, ep)
            leads.append(E.gap - dma_op[t].gap)
        stamp("b")
        E.vm_wait([dma_op[t] for t in ep["tiles"]])
        stamp("w")
        ep["rel"] = [t for t, rs in tile_reads.items() if t not in released and t in slot_of and
                     all(r.idx is not None and (not ep["bar"] or r.ldsn < E.lds_done) for r in rs)]
        released.update(ep["rel"])

    def passed(ep):
        if ep["n"] == 1:
            for s in range(q0, q0 + 16, 2):
                free_slots["K" if s < NK else "V"].append(s)
        for t in ep["rel"]:
            free_slots[t[0]].append(slot_of[t])
        if ("K", 11) in slot_of and all(s in free_slots["K"] for s in range(0, 8, 2)):
            for w in stage_w:
                w.early = min(w.early, E.gap)

    dper = [int(x) for x in a.dmaper.split(",")]
    next_dma_gap = G0 + a.dma0
    staged = None
    for g in range(-1, NMF):
        E.gap = g
        if g >= 0:
            E.emit(mf[g])
        if g in qgap:
            drain()
            q_prepare(qgap[g])
            if g == G0:
                stamp()
            E.lds_wait(mf[g + 1].needs)
            continue
        shadow = True
        budget = 8 if g < tdead + a.fstart else (a.fbudget * (g + 1) // 4 - a.fbudget * g // 4) * 4
        budget0 = budget
        fixed_mem, fixed_valu = [], []
        for ep in epochs:
            if ep["bar"]:
                if g == ep["gc"]:
                    signal(ep)
                    e("s_barrier", "barrier")
                    stamp("b")
                    passed(ep)
                    shadow = False
                continue
            if g == ep["gs"] - 1:
                fixed_valu.append(Op(f"v_mov_b32 v{vFE}, {ep['n']}", "valu", wr=[f"v{vFE}"]))
            if g == ep["gs"]:
                signal(ep)
                shadow = False
                E.emit(Op(f"ds_write_b32 v{vFW}, v{vFE}", "ldsw", rd=[f"v{vFW}", f"v{vFE}"]))
                budget -= 8
            if g == ep["gr"]:
                ep["rd"] = Op(f"ds_read_b32 v{vFT}, v{vFR}", "ldsr", rd=[f"v{vFR}"], wr=[f"v{vFT}"])
                fixed_mem.append(ep["rd"])
            if g == ep["gc"] - 1:
                if E.lds_wait([ep["rd"]], a.lat):
                    shadow = False
                fixed_valu.append(Op(f"v_cmp_gt_u32 vcc, {ep['n']}, v{vFT}", "valu", rd=[f"v{vFT}"], wr=["vcc"]))
            if g == ep["gc"]:
                e(f"s_cbranch_vccnz L_spin{ep['n']}")
                E.label(f"L_ok{ep['n']}")
                passed(ep)
                shadow = False
        if a.stamps and g in [first_use["S", gs, 0] for gs in (4, 8, 12, 16, 20, 24, 28)] + [tdead]:
            stamp()
        if g > G0 and (g - G0) % a.stampper == 1:
            stamp("p")
        if g + 1 < NMF and mf[g + 1].needs and all(n.idx is not None for n in mf[g + 1].needs):
            if E.lds_wait(mf[g + 1].needs, a.lat):
                shadow = False
        quiet = not any(not ep["bar"] and g + 1 in (ep["gs"] - 1, ep["gs"], ep["gr"], ep["gc"] - 1) for ep in epochs)
        if staged is not None:
            for o in staged:
                E.emit(o)
            staged = None
            budget -= a.dmacost
        elif shadow and quiet and di < len(dma_order) and g >= next_dma_gap and slot_for(dma_order[di]) is not None:
            pre, staged = make_dma(dma_order[di])
            di += 1
            E.emit(pre)
            next_dma_gap = max(next_dma_gap, g - 4) + dper[0]
            if len(dper) > 1:
                dper.pop(0)
        budget -= 4 * (len(fixed_mem) + len(fixed_valu))
        full = budget >= 8
        picks = []
        for o in pending:
            if o.dead <= g:
                closure(o, picks)
        budget -= sum(COST[o.cls] for o in picks)
        cand = [o for o in pending[:400] if o not in picks and ready(o)]
        if full and not picks and cand:
            first = cand[0]
            small = [o for o in cand if COST[o.cls] == 4]
            tr = [o for o in cand if o.cls == "trans"]
            if COST[first.cls] == 4 and len(small) < 2 and tr:
                first = tr[0]
            picks.append(first)
            budget -= COST[first.cls]
        for o in cand:
            if o not in picks and COST[o.cls] <= budget:
                picks.append(o)
                budget -= COST[o.cls]
        mem = [o for o in picks if o.cls in ("ldsr", "ldsw", "vmem") and all(d.idx is not None for d, _ in o.deps)]
        rest = [o for o in picks if o not in mem]
        for o in fixed_mem:
            E.emit(o)
        for o in mem:
            put(o)
        for o in fixed_valu:
            E.emit(o)
        while rest:
            o = ([o for o in rest if ready(o)] or [o for o in rest if ready(o, False)])[0]
            put(o)
            rest.remove(o)
        while budget > 0:
            more = [o for o in pending[:400] if o.cls == "valu" and ready(o)]
            if not more:
                break
            put(more[0])
            budget -= 4
        if full and not picks and budget >= 8 and any(ready(o, False) for o in pending[:400]):
            e("s_nop 1", "nop")
        if a.dbgnop:
            n0, n1, ev, ln = [int(x) for x in a.dbgnop.split(",")]
            if n0 <= g < n1 and g % ev == 0:
                e(f"s_nop {ln}", "nop")
        if g > G0:
            overflow += max(0, budget0 - budget - 8)
        if g + 1 < NMF and mf[g + 1].needs:
            E.lds_wait(mf[g + 1].needs)
    assert staged is None and di == len(dma_order) and not pro_q
    stamp()
    ntail = len(pending)
    n0 = len(E.out)
    drain(a.pk)
    overflow += sum(COST.get(o.cls, 4) for o in E.out[n0:])
    assert not pending
    stamp()

    e(f"s_or_b64 s[{sBAD}:{sBAD + 1}], s[{sBAD}:{sBAD + 1}], s[{sBAD + 2}:{sBAD + 3}]")
    e(f"s_or_b64 s[{sBAD + 4}:{sBAD + 5}], s[{sBAD + 4}:{sBAD + 5}], s[{sBAD + 6}:{sBAD + 7}]")
    e(f"s_or_b64 s[{sBAD}:{sBAD + 1}], s[{sBAD}:{sBAD + 1}], s[{sBAD + 4}:{sBAD + 5}]")
    e(f"s_cselect_b32 s{sTMP}, 1, 0")
    e(f"s_lshl_b32 s{sC}, s{sW}, 2")
    e(f"s_add_u32 s{sC}, s{sC}, {FLAG_OFF}")
    va(f"v_mov_b32 v12, s{sC}")
    va(f"v_mov_b32 v13, s{sTMP}")
    va(f"v_mov_b32 v14, {FLAG_OFF}")
    e("ds_write_b32 v12, v13", "ldsw", rd=["v12", "v13"])
    E.lds_drain()
    e("s_barrier", "barrier")
    e("ds_read_b128 v[16:19], v14", "ldsr", rd=["v14"], wr=regs("v", 16, 4))
    E.lds_drain()
    v("v_or3_b32 v16, v16, v17, v18", ["v16"], regs("v", 16, 3))
    v("v_or_b32 v16, v16, v19", ["v16"], ["v16", "v19"])
    v(f"v_readfirstlane_b32 s{sTMP}, v16", [f"s{sTMP}"], ["v16"])
    e(f"s_andn2_b32 s{sTMP}, s{sTMP}, s{sMODE}", rd=[f"s{sTMP}"])
    e("s_cbranch_scc1 L_rerun")
    if a.stamps:
        e("s_waitcnt vmcnt(0)", "wait")
        stamp("x")
        E.lds_drain()
        e(f"s_mov_b32 s{sWS + 2}, 1048576")
        e(f"s_mov_b32 s{sWS + 3}, 0x20000")
        e(f"s_lshl_b32 s{sTMP}, s2, 2")
        e(f"s_add_u32 s{sTMP}, s{sTMP}, s{sW}")
        e(f"s_mul_i32 s{sTMP}, s{sTMP}, {8 * nstamp[0]}")
        va("v_mov_b32 v12, 0")
        for i in range(nstamp[0]):
            va(f"v_mov_b32 v14, s{stampreg[i]}")
            va(f"v_mov_b32 v15, s{stampreg[i] + 1}")
            e(f"buffer_store_dwordx2 v[14:15], v12, s[{sWS}:{sWS + 3}], s{sTMP} offen offset:{8 * i}", "vmem",
              rd=["v14", "v15", "v12"])
            e("s_nop 1", "nop")
    if a.spin:
        e("s_waitcnt vmcnt(0)", "wait")
        E.label("L_diag")
        e("s_memrealtime s[62:63]", "smem")
        e("s_waitcnt lgkmcnt(0)", "wait")
        e("s_sub_u32 s62, s62, s60")
        e(f"s_cmp_lt_u32 s62, {a.spin * 100}")
        e("s_cbranch_scc1 L_diag")
    E.label("L_end")
    e("s_endpgm", "end")

    for ep in epochs:
        if not ep["bar"]:
            E.label(f"L_spin{ep['n']}")
            e(f"ds_read_b32 v{vFT}, v{vFR}", "ldsr", rd=[f"v{vFR}"], wr=[f"v{vFT}"])
            e("s_waitcnt lgkmcnt(0)", "wait")
            v(f"v_cmp_gt_u32 vcc, {ep['n']}, v{vFT}", ["vcc"], [f"v{vFT}"])
            e(f"s_cbranch_vccnz L_spin{ep['n']}")
            e(f"s_branch L_ok{ep['n']}")
    E.label("L_codeend")

    E.label("L_rerun")
    e(f"s_mov_b32 s{sMODE}, 1")
    e("s_waitcnt vmcnt(0) lgkmcnt(0)", "wait")
    e("s_barrier", "barrier")
    e("s_branch L_start")

    E.label("L_maxpass")
    va(f"v_and_b32 v{vT1}, 3, v{vLN}")
    va(f"v_bfe_u32 v{vT2}, v{vLN}, 2, 2")
    va(f"v_lshl_add_u32 v{vT1}, v{vT1}, 2, v{vT2}")
    va(f"v_lshrrev_b32 v{vT2}, 4, v{vLN}")
    va(f"v_lshlrev_b32 v{vT1}, 8, v{vT1}")
    va(f"v_lshl_add_u32 v{vT1}, v{vT2}, 4, v{vT1}")
    va(f"v_add_u32 v{vT1}, {BIAS}, v{vT1}")
    e(f"s_lshl_b32 s{sTMP}, s{sW}, 11")
    va(f"v_add_u32 v{vT2}, s{sTMP}, v{vT1}")
    for x in range(4):
        for s in range(4):
            e(f"buffer_load_dwordx4 {rr('v', QT + 4 * s, 4)}, v{vT2}, s[{sQ}:{sQ + 3}], s{sX + x} offen offset:{64 * s}",
              "vmem", rd=[f"v{vT2}"], wr=regs("v", QT + 4 * s, 4))
        e("s_waitcnt vmcnt(0)", "wait")
        for s in range(4):
            q_scale(x, s)
    e(f"s_mov_b32 s{sTMP}, 0")
    E.label("L_maxloop")
    for s in range(4):
        e(f"buffer_load_dwordx4 {rr('v', QT + 4 * s, 4)}, v{vT1}, s[{sK}:{sK + 3}], s{sTMP} offen offset:{64 * s}",
          "vmem", rd=[f"v{vT1}"], wr=regs("v", QT + 4 * s, 4))
    e("s_waitcnt vmcnt(0)", "wait")
    for x in range(4):
        S = Sreg[x]
        for s in range(4):
            C, cr = ("0", []) if s == 0 else (rr("v", S, 4), regs("v", S, 4))
            E.emit(Op(f"v_mfma_f32_16x16x32_bf16 {rr('v', S, 4)}, {rr('v', QT + 4 * s, 4)}, {rr('a', Qreg[x][s], 4)}, {C}",
                      "mfma", rd=regs("v", QT + 4 * s, 4) + regs("a", Qreg[x][s], 4) + cr, wr=regs("v", S, 4), srcc=cr))
    e("s_nop 7", "nop")
    for x in range(4):
        S, n = Sreg[x], NM[x]
        v(f"v_max3_f32 v{n}, v{S}, v{S + 1}, v{n}", [f"v{n}"], [f"v{S}", f"v{S + 1}", f"v{n}"])
        v(f"v_max3_f32 v{n}, v{S + 2}, v{S + 3}, v{n}", [f"v{n}"], [f"v{S + 2}", f"v{S + 3}", f"v{n}"])
    e(f"s_add_u32 s{sTMP}, s{sTMP}, 4096")
    e(f"s_cmp_lt_u32 s{sTMP}, 131072")
    e("s_cbranch_scc1 L_maxloop")
    e("s_nop 3", "nop")
    e("s_branch L_maxdone")

    ops, nnop = fix_hazards(E.out)
    if a.pads:
        ops = insert_pads(ops)
    if a.verbose:
        print("G0", G0, "tdead", tdead)
        print([(ep["gs"], ep["gc"], [t[0] + str(t[1]) for t in ep["tiles"]]) for ep in epochs])
        print("leads", leads)
    info = dict(mfma=NMF, instrs=len(ops), nops=nnop, overflow=overflow, tail=ntail, epochs=len(epochs),
                minlead=min(leads[a.ninit:]), pslots=len(Pbases), fslots=len(Fbases), stamps=nstamp[0])
    head = [
        "; GQA attention forward, B=32 Hq=32 Hkv=8 Sq=64 Sk=512 D=128, bf16 in / bf16 out (generated schedule).",
        "; kernarg: q @0, k @8, v @16, out @24, debug @32, ws @40",
        "; One workgroup per (batch, kv head); wave w handles q head 4*hkv+w.",
        "; Softmax shift: row max of the first keys; a final check on the row sums reruns the",
        "; workgroup with the true row max (L_rerun / L_maxpass) whenever that shift is unsafe.",
        f"; @launch grid=(256,1,1) block=(256,1,1) lds={LDS_BYTES}",
        '.amdgcn_target "amdgcn-amd-amdhsa--gfx950"', ".text", f".globl {KNAME}", ".p2align 8",
        f".type {KNAME},@function", f"{KNAME}:"]
    body = [(o.text if o.cls == "label" else "    " + o.text) for o in ops]
    tail = ['.section .rodata,"a"', ".p2align 6", f".amdhsa_kernel {KNAME}",
            "  .amdhsa_next_free_vgpr 512", "  .amdhsa_next_free_sgpr 102", "  .amdhsa_accum_offset 256",
            "  .amdhsa_group_segment_fixed_size 0", "  .amdhsa_kernarg_size 48", "  .amdhsa_user_sgpr_count 2",
            "  .amdhsa_user_sgpr_kernarg_segment_ptr 1", "  .amdhsa_system_sgpr_workgroup_id_x 1",
            ".end_amdhsa_kernel"]
    return "\n".join(head + body + tail) + "\n", info


def parser():
    ap = argparse.ArgumentParser()
    ap.add_argument("out")
    for k, d in dict(groups="2,2,4,4,4,4,4,8", final="0,1,2,3", ones="0123", oacc="0", ld="nt", st="nt", sync="bar",
                     merge="12,12,40", win="10,10,16", dmaper="29", stampat="m", dbgnop="", dbgload="").items():
        ap.add_argument("--" + k, default=d)
    for k, d in dict(ns=5, lag=3, lat=6, skew=8, nbar=1, dmacost=8, dma0=8, rdbias=8, hoist=64, stdist=12, q0=10,
                     ninit=3, infl=8, halftop=0, prek=2, prev=1, nc0=3, nmax=1, fbudget=12, fstart=16, pk=1,
                     rot=0, dbgswap=0, infl0=0, infl1=0, pvend=0, pvgam=100, qrun=1, snake=0, stampper=60, stamps=0, spin=0, pfcode=1, pads=1, verbose=0).items():
        ap.add_argument("--" + k, type=int, default=d)
    return ap


if __name__ == "__main__":
    a = parser().parse_args()
    txt, info = build(a)
    open(a.out, "w").write(txt)
    print(a.out, info)
```

```python
import argparse, math, re, struct, sys

KNAME = "standalone__gqa_softmax__near_ridge_kernel"
TILE = 4352
GRAN = 1088
NSLOT = 36
LDS_BYTES = 163840
FLAG_OFF = NSLOT * TILE
SYNC_OFF = FLAG_OFF + 256


def f32bits(x):
    return struct.unpack("<I", struct.pack("<f", x))[0]


def regs(p, lo, n):
    return [f"{p}{lo + i}" for i in range(n)]


def rr(p, lo, n):
    return f"{p}[{lo}:{lo + n - 1}]" if n > 1 else f"{p}{lo}"


class Op:
    __slots__ = ("text", "cls", "rd", "wr", "deps", "early", "dead", "prio", "needs", "idx", "gap",
                 "ldsn", "pre", "vmn", "tag", "srcc", "st")

    def __init__(self, text, cls, rd=(), wr=(), deps=(), early=-1, dead=10 ** 9, needs=(), pre=None, tag=None,
                 srcc=()):
        self.text, self.cls = text, cls
        self.rd, self.wr = list(rd), list(wr)
        self.deps = list(deps)
        self.early, self.dead = early, dead
        self.needs = list(needs)
        self.idx = None
        self.gap = None
        self.ldsn = None
        self.vmn = None
        self.pre = pre
        self.tag = tag
        self.prio = 0
        self.srcc = list(srcc)


COST = dict(trans=8, valu=4, ldsr=4, ldsw=12, vmem=20, salu=4)


class Emitter:
    def __init__(self):
        self.out = []
        self.nlds = 0
        self.lds_done = 0
        self.lds_gap = []
        self.nvm = 0
        self.vm_done = 0
        self.gap = -1
        self.nst = 0

    def emit(self, op):
        self.nst += states(op)
        op.st = self.nst
        op.idx = len(self.out)
        op.gap = self.gap
        if op.cls in ("ldsr", "ldsw"):
            op.ldsn = self.nlds
            self.nlds += 1
            self.lds_gap.append(self.gap)
        if op.cls == "vmem":
            op.vmn = self.nvm
            self.nvm += 1
        self.out.append(op)
        return op

    def raw(self, text, cls="salu", **kw):
        return self.emit(Op(text, cls, **kw))

    def label(self, name):
        self.out.append(Op(name + ":", "label"))

    def lds_wait(self, needs, lat=None):
        need = max((n.ldsn for n in needs), default=-1) + 1
        if need <= self.lds_done:
            return False
        if lat is not None:
            k = need
            while k < self.nlds and self.lds_gap[k] <= self.gap - lat:
                k += 1
            need = k
        n = min(self.nlds - need, 15)
        self.raw(f"s_waitcnt lgkmcnt({n})", "wait")
        self.lds_done = self.nlds - n
        return True

    def lds_drain(self):
        self.raw("s_waitcnt lgkmcnt(0)", "wait")
        self.lds_done = self.nlds

    def vm_wait(self, ops):
        need = max((o.vmn for o in ops), default=-1) + 1
        if need <= self.vm_done:
            return False
        n = min(self.nvm - need, 63)
        self.raw(f"s_waitcnt vmcnt({n})", "wait")
        self.vm_done = self.nvm - n
        return True


def states(op):
    if op.cls == "label":
        return 0
    m = re.match(r"s_nop (\d+)", op.text)
    return int(m.group(1)) + 1 if m else 1


def fix_hazards(ops):
    out = []
    added = 0
    for op in ops:
        if op.cls == "label":
            out.append(op)
            continue
        need = 0
        dist = 0
        rd, wr = set(op.rd), set(op.wr)
        isv = op.cls in ("valu", "trans")
        for p in reversed(out):
            if dist >= 12:
                break
            pw = set(p.wr)
            req = 0
            if p.cls == "mfma":
                if op.cls == "mfma":
                    ab = rd - set(op.srcc)
                    if pw & ab:
                        req = 8
                    if pw & set(op.srcc) and set(op.srcc) != pw:
                        req = max(req, 6)
                    if pw & wr and set(op.srcc) != pw:
                        req = max(req, 6)
                else:
                    if pw & (rd | wr):
                        req = 8
                    if isv and set(p.srcc) & wr:
                        req = max(req, 3)
            elif p.cls in ("valu", "trans"):
                if op.cls == "mfma" and pw & rd:
                    req = 2
                if p.cls == "trans" and op.cls != "trans" and pw & rd:
                    req = max(req, 1)
                if "permlane" in op.text and pw & rd:
                    req = max(req, 2)
                if ("readfirstlane" in op.text or "readlane" in op.text) and pw & rd:
                    req = max(req, 1)
                sw = {r for r in pw if r[0] == "s" or r == "vcc"}
                if sw & rd:
                    req = max(req, 5 if op.cls == "vmem" else 2)
            elif p.cls == "salu":
                if "m0" in pw and op.cls == "vmem" and "m0" in rd:
                    req = 1
            elif p.cls == "vmem":
                if "store" in p.text and set(p.rd) & wr and op.cls != "salu":
                    req = 2
            need = max(need, req - dist)
            dist += states(p)
        if need > 0:
            out.append(Op(f"s_nop {need - 1}", "nop"))
            added += 1
        out.append(op)
    return out, added


def isize(op):
    t = op.text
    if op.cls == "label":
        return 0
    mn = t.split()[0]
    if op.cls in ("mfma", "xmfma", "ldsr", "ldsw", "vmem", "smem"):
        return 8
    if mn in ("s_movk_i32", "s_nop", "s_waitcnt", "s_barrier", "s_branch", "s_endpgm") or mn.startswith("s_cbranch"):
        return 4
    if mn.startswith("v_cmp") and " s[" in t:
        return 8
    if mn.startswith(("v_cvt_pk", "v_max3", "v_accvgpr", "v_pk_", "v_lshl_add", "v_add3", "v_bfe", "v_or3", "v_mbcnt",
                      "v_fma")):
        return 8
    for arg in [x.strip() for x in t[len(mn):].split(",")]:
        if re.fullmatch(r"-?(0x[0-9a-f]+|\d+)", arg) and not -16 <= int(arg, 0) <= 64:
            return 8
        if arg.startswith("L_"):
            return 8
    return 4


def insert_pads(ops):
    i0 = next(i for i, o in enumerate(ops) if o.text == "L_main:")
    i1 = next(i for i, o in enumerate(ops) if o.text == "L_end:")
    out, addr, page, pads = ops[:i0], 0, 1, []
    for i in range(i0, len(ops)):
        o = ops[i]
        if i <= i1 and addr >= 4096 * page:
            good = out[-1].cls == "mfma" and o.cls not in ("salu", "wait", "barrier", "nop")
            if good or addr + isize(o) > 4096 * page + 56:
                lab = Op(f"L_pad{len(pads)}:", "label")
                br = Op("", "salu")
                pads.append(br)
                out += [lab, br]
                addr += 4
                page += 1
        out.append(o)
        addr += isize(o)
    assert len(pads) >= 4
    for k, br in enumerate(pads):
        br.text = f"s_cbranch_execz L_pad{k + 4}" if k + 4 < len(pads) else "s_cbranch_execz L_main"
    return out


class Pool:
    def __init__(self, prefix, bases):
        self.prefix = prefix
        self.rel = {b: -1 for b in bases}

    def add(self, base, release):
        self.rel[base] = release

    def take(self, release):
        b = min(self.rel, key=lambda k: (self.rel[k], k))
        prev = self.rel[b]
        self.rel[b] = release
        return b, prev


def build(a):
    groups = [int(x) for x in a.groups.split(",")]
    assert sum(groups) == 32 and all(g % 2 == 0 for g in groups)
    G = len(groups)
    gstart = [sum(groups[:g]) for g in range(G + 1)]
    ones_x = [int(c) for c in a.ones if c.isdigit()]
    oacc_x = [int(c) for c in a.oacc if c.isdigit()]
    addx = [x for x in range(4) if x not in ones_x]
    ld, st = a.ld, a.st
    PK = 2 * a.prek
    flag = a.sync == "flag"
    E = Emitter()
    e = E.raw

    vK, vV = 1, [2, 3, 4, 5]
    vDK, vDV = (6, 7), (11, 0)
    vOW, vOR, vOG = 8, 9, 10
    vRL = [12, 13, 14, 15]
    vFW, vFR, vFE, vFT = 12, 13, 14, 15
    NM = [16 + 4 * x for x in range(4)]
    vnext, anext, vtop = 32, 0, 256
    Lreg = {}
    for x in ones_x:
        Lreg[x] = anext
        anext += 4
    if addx:
        for i, x in enumerate(addx):
            Lreg[x] = vnext + i
        vnext += 4
    Sreg = [vnext + 4 * i for i in range(a.ns)]
    vnext += 4 * a.ns
    Oreg = {}
    for x in range(4):
        if x in oacc_x:
            Oreg[x] = ("a", anext)
            anext += 32
        else:
            vtop -= 32
            Oreg[x] = ("v", vtop)
    Pbases = list(range(vnext, vtop, 4))
    Qreg = [[anext + 16 * x + 4 * s for s in range(4)] for x in range(4)]
    anext += 64
    aONE = anext
    anext += 4
    Fbases = list(range(anext, 256, 4))
    QT = Pbases[-8]
    UT = QT + 16
    vLN, vQA, vT1, vT2 = QT + 24, QT + 25, QT + 26, QT + 27
    vDQ = (QT + 28, QT + 29)
    assert len(Pbases) >= 8 + 4 * a.prek
    kvS = [(256, 512, 1024, 2048, 8192), (256, 512, 1024, 32768, 2048), (256, 512, 16384, 32768, 1024),
           (4096, 8192, 16384, 32768, 256), (256, 8192, 16384, 32768, 512)][a.kvs]
    qS = [(256, 512, 1024, 2048, 4096), (256, 512, 4096, 8192, 1024), (256, 512, 1024, 8192, 2048)][a.qs]
    lg = lambda n: n.bit_length() - 1

    sQ, sK, sV, sO = 12, 16, 20, 24
    sW, sWG, sMODE, sC, sTHR, sQW, sTMP, sT2 = 3, 28, 29, 30, 31, 34, 35, 32
    sWS = 36
    sOFF = 64
    sX = 40
    sBAD = 88

    NK = 16
    q0 = a.q0
    vwin = [NK, NK + 16]

    qk_units = [(j, x) for x in range(4) for j in range(PK)] + [(j, x) for j in range(PK, 32) for x in range(4)]
    uidx = {u: i for i, u in enumerate(qk_units)}
    assert gstart[a.prev + 1] >= PK >= gstart[a.prev]
    pvq = []
    for g in range(G):
        if g < a.prev:
            for x in range(4):
                u = ([("sum", g, None, x)] if x in ones_x else []) + [("pv", g, b, x) for b in range(8)]
                pvq += [(PK * (x + 1) - 0.5, w) for w in u]
            continue
        if g < G - 1:
            u = [("sum", g, None, x) for x in ones_x] + [("pv", g, b, x) for b in range(8) for x in range(4)]
        else:
            u = []
            for xs in [[int(c) for c in part] for part in a.final.split(",")]:
                u += [("sum", g, None, x) for x in xs if x in ones_x]
                u += [("pv", g, b, x) for b in range(8) for x in xs]
        lo = 4 * gstart[g + 1] + a.lag
        hi = 4 * gstart[min(g + 2, G)] + a.lag
        if a.pvend and g < G - 1:
            u0, span = 4 * gstart[a.prev + 1] + a.lag, gstart[G - 1] - gstart[a.prev]
            at = lambda t: u0 + (a.pvend - u0) * ((t - gstart[a.prev]) / span) ** (a.pvgam / 100)
            lo = max(lo, at(gstart[g]))
            hi = max(hi, at(gstart[g + 1])) if g < G - 2 else a.pvend
        pvq += [(lo + (hi - lo) * i / len(u) if g < G - 1 else 10 ** 6, w) for i, w in enumerate(u)]
    pvq.sort(key=lambda p: p[0])
    seq, pi = [], 0
    for ui, (j, x) in enumerate(qk_units):
        while pi < len(pvq) and pvq[pi][0] < ui and (ui <= 4 * PK or ui % a.qrun == 0):
            seq.append(pvq[pi][1])
            pi += 1
        seq.append(("qk", j, x))
    seq += [u for _, u in pvq[pi:]]

    M = []
    flip = False
    for n, u in enumerate(seq):
        same = n > 0 and seq[n - 1][0] == u[0] and (u[0] == "qk" or seq[n - 1][1] == u[1])
        flip = a.snake and same and not flip
        ks = list(range(4 if u[0] == "qk" else groups[u[1]] // 2))
        for i, k in enumerate(ks[::-1] if flip else ks):
            M.append(("qk", u[1], u[2], k, i == 0) if u[0] == "qk" else (u[0], u[1], u[2], u[3], k))
    NMF = len(M)
    first_use, last_use = {}, {}

    def use(key, i):
        first_use.setdefault(key, i)
        last_use[key] = i

    for i, m in enumerate(M):
        if m[0] == "qk":
            _, j, x, s, _ = m
            use(("K", j, s), i)
            use(("S", j, x), i)
            use(("Q", x, s), i)
        else:
            kind, g, b, x, k = m
            kap = gstart[g] // 2 + k
            use(("P", kap, x), i)
            if kind == "pv":
                use(("V", kap, b), i)
                use(("O", x, b), i)
            else:
                use(("L", x), i)
    qgap = {first_use["S", 0, x] - 1: x for x in range(4)}
    G0 = first_use["S", 0, 3] - 1

    ppool = Pool("v", Pbases)
    for b in Pbases[-8:]:
        ppool.add(b, G0 + 1)
    Preg, Pfree = {}, {}
    for kap, x in sorted([(k, x) for k in range(16) for x in range(4)], key=lambda p: uidx[2 * p[0], p[1]]):
        Preg[kap, x], Pfree[kap, x] = ppool.take(last_use["P", kap, x])
    fpool = Pool("a", Fbases)
    for x in range(4):
        for s in range(4):
            fpool.add(Qreg[x][s], last_use["Q", x, s])
    frags = sorted([k for k in first_use if k[0] in "KV"], key=lambda k: first_use[k])
    Freg, Ffree = {}, {}
    for k in frags:
        Freg[k], Ffree[k] = fpool.take(last_use[k])
        assert Ffree[k] < first_use[k] - a.lat or Ffree[k] < 0, ("frag pool too small", k)

    mf = []
    started = set()
    for i, m in enumerate(M):
        if m[0] == "qk":
            _, j, x, s, head = m
            S = Sreg[uidx[j, x] % a.ns]
            A, B = Freg["K", j, s], Qreg[x][s]
            if head:
                C, cr = ("0", []) if j < a.nc0 else (rr("v", NM[x], 4), regs("v", NM[x], 4))
            else:
                C, cr = rr("v", S, 4), regs("v", S, 4)
            mf.append(Op(f"v_mfma_f32_16x16x32_bf16 {rr('v', S, 4)}, {rr('a', A, 4)}, {rr('a', B, 4)}, {C}", "mfma",
                         rd=regs("a", A, 4) + regs("a", B, 4) + cr, wr=regs("v", S, 4), srcc=cr))
        else:
            kind, g, b, x, k = m
            kap = gstart[g] // 2 + k
            if kind == "pv":
                p, o = Oreg[x][0], Oreg[x][1] + 4 * b
                A = Freg["V", kap, b]
                key = ("O", x, b)
            else:
                p, o, A, key = "a", Lreg[x], aONE, ("L", x)
            B = Preg[kap, x]
            C, cr = (rr(p, o, 4), regs(p, o, 4)) if key in started else ("0", [])
            started.add(key)
            ab = [rr('a', A, 4), rr('v', B, 4)]
            if a.dbgswap and kind == "pv":
                ab.reverse()
            mf.append(Op(f"v_mfma_f32_16x16x32_bf16 {rr(p, o, 4)}, {ab[0]}, {ab[1]}, {C}", "mfma",
                         rd=regs("a", A, 4) + regs("v", B, 4) + cr, wr=regs(p, o, 4), srcc=cr))

    tile_first = {}
    for d in range(16):
        tile_first["K", d] = min(first_use["K", 2 * d, s] for s in range(4))
        tile_first["V", d] = min(first_use["V", d, b] for b in range(8))
    dma_order = sorted(tile_first, key=lambda t: (tile_first[t], t[1]))
    pre_tiles = [t for t in dma_order if tile_first[t] <= G0]
    merge = [int(x) for x in a.merge.split(",")]
    wins = [int(x) for x in a.win.split(",")]
    nbar = a.nbar if flag else 99
    epochs, pub = [], {t: -1 for t in pre_tiles}
    for t in dma_order[len(pre_tiles):]:
        k = len(epochs)
        gc = max(tile_first[t] - wins[min(k, len(wins) - 1)], G0 + 1)
        if epochs and gc < epochs[-1]["gc"] + merge[min(k - 1, len(merge) - 1)]:
            epochs[-1]["tiles"].append(t)
        else:
            isbar = k < nbar
            epochs.append(dict(gc=gc, gr=gc - (0 if isbar else a.lat + 1), gs=gc - (0 if isbar else a.lat + 1 + a.skew),
                               tiles=[t], bar=isbar, n=k + 1))
            assert epochs[-1]["gs"] > G0 and (k == 0 or epochs[-1]["gr"] > epochs[-2]["gc"])
            assert k == 0 or epochs[-1]["gs"] > epochs[-2]["gs"]
        pub[t] = epochs[-1]["gc"]
    free_slots = {"K": [s for s in range(0, NK, 2) if not q0 <= s < q0 + 16],
                  "V": [s for s in range(NK, NSLOT, 2) if not q0 <= s < q0 + 16]}
    slot_of, dma_op = {}, {}
    tile_reads = {t: [] for t in tile_first}
    released = set()

    def slot_for(t):
        c = [s for s in free_slots[t[0]] if not (t[0] == "K" and t[1] >= 12 and s < 8)]
        if t[0] == "K" and 8 <= t[1] < 12:
            c.sort(key=lambda s: s >= 8)
        return c[0] if c else None

    def dma_pair(srd, vo, soff):
        return [Op(f"buffer_load_dwordx4 v{vo[i]}, s[{srd}:{srd + 3}], s{soff} offen{' offset:%d' % GRAN if i else ''} {ld} lds"
                   .replace("  ", " "), "vmem", rd=["m0", f"v{vo[i]}"]) for i in range(2)]

    def make_dma(t):
        sl = slot_for(t)
        free_slots[t[0]].remove(sl)
        slot_of[t] = sl
        srd, vo = (sK, vDK) if t[0] == "K" else (sV, vDV)
        pre = Op(f"s_add_u32 m0, s{sWG}, {sl * TILE}", "salu", wr=["m0"])
        ops = dma_pair(srd, vo, sOFF + t[1])
        dma_op[t] = ops[1]
        return pre, ops

    nstamp = [0]
    stampreg = list(range(56, 64, 2)) + list(range(80, 88, 2)) + [4, 6, 8, 10, 0, 96, 98, 32, 100]

    def stamp(kind="m"):
        if a.stamps and (kind in a.stampat or kind == "x") and (nstamp[0] < 14 or kind == "x"):
            for k, ins in enumerate(("s_memrealtime", "s_memtime")):
                if a.stamps >> k & 1:
                    r = stampreg[nstamp[0]]
                    nstamp[0] += 1
                    e(f"{ins} s[{r}:{r + 1}]", "smem")

    def v(text, wr, rd=(), cls="valu"):
        return e(text, cls, rd=list(rd), wr=list(wr))

    def va(text):
        return v(text, [text.split()[1].rstrip(",")])

    BIAS = GRAN - 1024
    e("s_cmp_ge_u32 s2, 256")
    e("s_cbranch_scc1 L_end")
    if a.spin:
        e("s_memrealtime s[60:61]", "smem")
    e("s_load_dwordx8 s[4:11], s[0:1], 0", "smem")
    if a.stamps:
        e(f"s_load_dwordx2 s[{sWS}:{sWS + 1}], s[0:1], 40", "smem")
    if a.pfcode:
        e("s_getpc_b64 s[96:97]")
        E.label("L_pc")
        e("s_add_u32 s96, s96, L_main-L_pc")
        e("s_addc_u32 s97, s97, 0")
        e("s_mov_b32 s98, L_codeend-L_main")
        e("s_mov_b32 s99, 0x20000")
        e("s_lshr_b32 s95, s2, 3")
        e("s_lshl_b32 s95, s95, 10")
        va("v_lshlrev_b32 v16, 2, v0")
        e(f"buffer_load_dword v{UT}, v16, s[96:99], s95 offen", "vmem", rd=["v16"], wr=[f"v{UT}"])
    if a.remap:
        e(f"s_and_b32 s{sTMP}, s2, 7")
        e(f"s_lshl_b32 s{sTMP}, s{sTMP}, 5")
        e("s_lshr_b32 s2, s2, 3")
        e(f"s_or_b32 s2, s2, s{sTMP}")
    e(f"s_mov_b32 s{sMODE}, 0")
    E.label("L_start")
    va("v_lshrrev_b32 v12, 6, v0")
    va(f"v_and_b32 v{vLN}, 63, v0")
    v(f"v_readfirstlane_b32 s{sW}, v12", [f"s{sW}"], ["v12"])
    va(f"v_lshrrev_b32 v13, 4, v{vLN}")
    va("v_and_b32 v14, 2, v13")
    va(f"v_xor_b32 v14, v14, v{vLN}")
    va(f"v_lshl_add_u32 v{vDQ[0]}, v14, 4, {BIAS}")
    va(f"v_add_u32 v{vDQ[1]}, {(qS[2] - GRAN) & 0xffffffff}, v{vDQ[0]}")
    va(f"v_lshlrev_b32 v12, {lg(kvS[3])}, v12")
    if kvS[:2] != (256, 512):
        va("v_and_b32 v15, 1, v13")
        va(f"v_mul_u32_u24 v15, {kvS[0] - 256}, v15")
        va("v_add_u32 v12, v12, v15")
        va("v_lshrrev_b32 v15, 1, v13")
        va(f"v_mul_u32_u24 v15, {kvS[1] - 512}, v15")
        va("v_add_u32 v12, v12, v15")
    va(f"v_add_u32 v{vDK[0]}, v12, v{vDQ[0]}")
    va(f"v_add_u32 v{vDK[1]}, {(kvS[2] - GRAN) & 0xffffffff}, v{vDK[0]}")
    va("v_and_b32 v14, 1, v13")
    va("v_lshlrev_b32 v14, 1, v14")
    va(f"v_xor_b32 v14, v14, v{vLN}")
    va(f"v_lshl_add_u32 v14, v14, 4, {BIAS}")
    va(f"v_add_u32 v{vDV[0]}, v12, v14")
    va(f"v_add_u32 v{vDV[1]}, {(kvS[2] - GRAN) & 0xffffffff}, v{vDV[0]}")
    e(f"s_mul_i32 s{sWG}, s{sW}, {2 * GRAN}", rd=[f"s{sW}"])
    e(f"s_mul_i32 s{sQW}, s{sW}, {4 * TILE}")
    e(f"s_add_u32 s{sQW}, s{sQW}, {q0 * TILE}")
    e(f"s_lshl_b32 s{sTMP}, s2, 2")
    e(f"s_add_u32 s{sTMP}, s{sTMP}, s{sW}")
    if a.qrot:
        e(f"s_lshr_b32 s{sX}, s{sTMP}, {a.qrot - 1}")
        e(f"s_and_b32 s{sX}, s{sX}, 3")
        e(f"s_lshl_b32 s{sX}, s{sX}, {lg(qS[4])}")
    else:
        e(f"s_mov_b32 s{sX}, 0")
    e(f"s_lshl_b32 s{sTMP}, s{sTMP}, 14")
    e(f"s_lshl_b32 s{sC}, s2, 17")
    e(f"s_sub_u32 s{sC}, s{sC}, {BIAS}")
    e(f"s_subb_u32 s{sTHR}, 0, 0")
    e(f"s_sub_u32 s{sT2}, s{sTMP}, {BIAS}")
    e(f"s_subb_u32 s{sT2 + 1}, 0, 0")
    for d, size in ((sK, 131072 + BIAS), (sV, 131072 + BIAS), (sQ, 16384 + BIAS), (sO, 16384)):
        e(f"s_mov_b32 s{d + 2}, {size}")
        e(f"s_mov_b32 s{d + 3}, 0x20000")

    def set_off(j):
        if a.rot and j:
            e(f"s_xor_b32 s{sOFF + j}, s{sOFF}, {j * kvS[4]}")
        elif a.rot:
            e(f"s_lshr_b32 s{sOFF}, s2, {a.rot - 1}")
            e(f"s_and_b32 s{sOFF}, s{sOFF}, {a.rotmask}")
            if a.rotrev:
                e(f"s_brev_b32 s{sOFF}, s{sOFF}")
                e(f"s_lshr_b32 s{sOFF}, s{sOFF}, {32 - a.rotrev}")
            e(f"s_lshl_b32 s{sOFF}, s{sOFF}, {lg(kvS[4])}")
        else:
            e(f"s_mov_b32 s{sOFF + j}, {j * kvS[4]}")

    def set_x(x, g):
        if x or g:
            e(f"s_xor_b32 s{sX + 4 * x + g}, s{sX}, {x * qS[4] + (g >> 1) * qS[3] + (g & 1) * qS[2]}")

    for j in range(a.prek):
        set_off(j)
    e("s_waitcnt lgkmcnt(0)", "wait")
    srd_todo = {sK: (6, sC, f"s{sTHR}"), sQ: (4, sT2, f"s{sT2 + 1}"), sV: (8, sC, f"s{sTHR}"), sO: (10, sTMP, "0")}

    def need_srd(d):
        if d in srd_todo:
            p, lo, hi = srd_todo.pop(d)
            e(f"s_add_u32 s{d}, s{p}, s{lo}")
            e(f"s_addc_u32 s{d + 1}, s{p + 1}, {hi}")

    stamp("x")
    di = 0
    xdone = False
    qdma = {}
    pro_q = ([("t",)] * len(pre_tiles) + [("q", x, g) for x in range(4) for g in range(2)] + [("t",)] * a.ninit)

    def topup(limit):
        nonlocal di
        while pro_q and E.nvm - E.vm_done < limit:
            it = pro_q.pop(0)
            if it[0] == "t":
                pre, ops = make_dma(dma_order[di])
                E.emit(pre)
                need_srd(sK if dma_order[di][0] == "K" else sV)
                di += 1
                for o in ops:
                    E.emit(o)
            else:
                _, x, g = it
                e(f"s_add_u32 m0, s{sQW}, {x * TILE + 2 * g * GRAN}", wr=["m0"])
                need_srd(sQ)
                if not xdone:
                    set_x(x, 2 * g)
                for o in dma_pair(sQ, vDQ, sX + 4 * x + 2 * g):
                    qdma[x, g] = E.emit(o)

    topup(a.infl0 or a.infl)
    for j in range(a.prek, 16):
        set_off(j)
    for d in (sK, sQ, sV, sO):
        need_srd(d)
    for x in range(4):
        for g in range(4):
            if g % 2 or ("q", x, g // 2) in pro_q:
                set_x(x, g)
    xdone = True
    e(f"s_mov_b32 s{sC}, {f32bits(math.log2(math.e) / math.sqrt(128.0)):#x}")
    e(f"s_mov_b32 s{sTHR}, {f32bits(2.0 ** 32):#x}")
    va(f"v_and_b32 v12, 3, v{vLN}")
    va(f"v_bfe_u32 v13, v{vLN}, 2, 2")
    va(f"v_lshrrev_b32 v14, 4, v{vLN}")
    va(f"v_mul_u32_u24 v{vK}, {GRAN}, v12")
    va(f"v_lshl_add_u32 v{vK}, v13, 8, v{vK}")
    va("v_and_b32 v15, 2, v13")
    va("v_xor_b32 v15, v15, v14")
    va(f"v_lshl_add_u32 v{vK}, v15, 4, v{vK}")
    va(f"v_add_u32 v{vQA}, s{sQW}, v{vK}")
    va(f"v_mul_u32_u24 v{vV[0]}, {GRAN}, v13")
    va(f"v_lshl_add_u32 v{vV[0]}, v14, 8, v{vV[0]}")
    va(f"v_lshl_add_u32 v{vV[0]}, v12, 3, v{vV[0]}")
    va("v_and_b32 v15, 1, v14")
    va(f"v_lshl_add_u32 v{vV[0]}, v15, 5, v{vV[0]}")
    va(f"v_xor_b32 v{vV[1]}, 32, v{vV[0]}")
    va(f"v_add_u32 v{vV[2]}, {vwin[1] * TILE}, v{vV[0]}")
    va(f"v_add_u32 v{vV[3]}, {vwin[1] * TILE}, v{vV[1]}")
    va(f"v_add_u32 v{vV[0]}, {vwin[0] * TILE}, v{vV[0]}")
    va(f"v_add_u32 v{vV[1]}, {vwin[0] * TILE}, v{vV[1]}")
    e(f"s_mul_i32 s{sTMP}, s{sW}, {2 * TILE}")
    va(f"v_and_b32 v15, 15, v{vLN}")
    va(f"v_mul_u32_u24 v{vOW}, 272, v15")
    va(f"v_lshl_add_u32 v{vOW}, v14, 3, v{vOW}")
    va(f"v_add_u32 v{vOW}, s{sTMP}, v{vOW}")
    va("v_lshlrev_b32 v13, 2, v14")
    va("v_sub_u32 v15, v15, v13")
    va("v_and_b32 v15, 15, v15")
    va("v_lshlrev_b32 v15, 4, v15")
    va(f"v_lshl_add_u32 v{vOG}, v14, 8, v15")
    va(f"v_mul_u32_u24 v{vOR}, {GRAN}, v14")
    va(f"v_add3_u32 v{vOR}, v{vOR}, v15, s{sTMP}")
    va("v_mov_b32 v15, 0x3f803f80")
    for i in range(4):
        v(f"v_accvgpr_write_b32 a{aONE + i}, v15", [f"a{aONE + i}"], ["v15"])
    for x in range(4):
        va(f"v_mov_b32 v{NM[x]}, 0xff800000")
    for x in addx:
        va(f"v_mov_b32 v{Lreg[x]}, 0")
    if flag:
        e(f"s_lshl_b32 s{sTMP}, s{sW}, 8")
        e(f"s_add_u32 s{sTMP}, s{sTMP}, {SYNC_OFF}")
        va(f"v_lshlrev_b32 v{vFE}, 2, v{vLN}")
        va(f"v_lshl_add_u32 v{vFR}, v12, 8, v{vFE}")
        va(f"v_add_u32 v{vFR}, {SYNC_OFF}, v{vFR}")
        va(f"v_add_u32 v{vFW}, s{sTMP}, v{vFE}")
        va(f"v_mov_b32 v{vFE}, 0")
        e(f"ds_write_b32 v{vFW}, v{vFE}", "ldsw", rd=[f"v{vFW}", f"v{vFE}"])
        E.lds_drain()
    if a.pads:
        e("s_mov_b64 exec, 0")
        for w in range(3):
            e(f"s_cmp_eq_u32 s{sW}, {w}")
            e(f"s_cbranch_scc1 L_pad{w}")
        e("s_branch L_pad3")
        E.out.append(Op(".p2align 12", "label"))
    E.label("L_main")
    if a.pads:
        e("s_mov_b64 exec, -1")

    def finalize_read(op):
        if op.text is not None:
            return
        if op.tag[0] == "K":
            _, j, s = op.tag
            off = (slot_of["K", j // 2] + j % 2) * TILE + 64 * s
            assert off < 65536
            op.text = f"ds_read_b128 {rr('a', Freg['K', j, s], 4)}, v{vK} offset:{off}"
        else:
            _, kap, b, tau = op.tag
            sl = slot_of["V", kap] + tau
            w = 0 if sl < vwin[1] else 1
            off = (sl - vwin[w]) * TILE + 64 * (b >> 1)
            assert off < 65536
            av = vV[2 * w + (b & 1)]
            op.rd = [f"v{av}"]
            op.text = f"ds_read_b64_tr_b16 {rr('a', Freg['V', kap, b] + 2 * tau, 2)}, v{av} offset:{off}"

    kr = {(j, s): Op(None, "ldsr", rd=[f"v{vK}"], wr=regs("a", Freg["K", j, s], 4), tag=("K", j, s))
          for j in range(32) for s in range(4)}
    vr = {(kap, b, t): Op(None, "ldsr", wr=regs("a", Freg["V", kap, b] + 2 * t, 2), tag=("V", kap, b, t))
          for kap in range(16) for b in range(8) for t in range(2)}
    for (j, s), op in kr.items():
        tile_reads["K", j // 2].append(op)
    for (kap, b, t), op in vr.items():
        tile_reads["V", kap].append(op)

    topup(a.infl1)
    for t in pre_tiles:
        E.vm_wait([dma_op[t]])
        topup(a.infl)
    e("s_barrier", "barrier")
    for t in pre_tiles:
        for op in tile_reads[t]:
            finalize_read(op)
            E.emit(op)
    e(f"s_cmp_lg_u32 s{sMODE}, 0")
    e("s_cbranch_scc1 L_maxpass")
    E.label("L_maxdone")

    def q_scale(x, s):
        for i in range(4):
            src, t = QT + 4 * s + i, UT + 2 * i
            v(f"v_lshlrev_b32 v{t}, 16, v{src}", [f"v{t}"], [f"v{src}"])
            v(f"v_and_b32 v{t + 1}, 0xffff0000, v{src}", [f"v{t + 1}"], [f"v{src}"])
        for i in range(4):
            t = UT + 2 * i
            v(f"v_pk_mul_f32 {rr('v', t, 2)}, {rr('v', t, 2)}, s[{sC}:{sC + 1}] op_sel_hi:[1,0]", regs("v", t, 2),
              regs("v", t, 2))
        for i in range(4):
            v(f"v_cvt_pk_bf16_f32 v{UT + 2 * i}, v{UT + 2 * i}, v{UT + 2 * i + 1}", [f"v{UT + 2 * i}"],
              [f"v{UT + 2 * i}", f"v{UT + 2 * i + 1}"])
        for i in range(4):
            v(f"v_accvgpr_write_b32 a{Qreg[x][s] + i}, v{UT + 2 * i}", [f"a{Qreg[x][s] + i}"], [f"v{UT + 2 * i}"])

    def q_prepare(x):
        if a.dbgload:
            E.lds_drain()
            o = UT
            for i in range([int(z) for z in a.dbgload.split(",")][x]):
                A, B = Freg["K", i % 4, (i // 4) % 4], Freg["K", (i + 1) % 4, i % 4]
                E.emit(Op(f"v_mfma_f32_16x16x32_bf16 {rr('v', o + 4 * (i % 2), 4)}, {rr('a', A, 4)}, {rr('a', B, 4)}, 0", "xmfma"))
            e("s_nop 7", "nop")
        if a.halftop:
            E.vm_wait([qdma[x, 0]])
            topup(a.infl)
        E.vm_wait([qdma[x, 1]])
        stamp("q")
        rds = [e(f"ds_read_b128 {rr('v', QT + 4 * s, 4)}, v{vQA} offset:{x * TILE + 64 * s}", "ldsr",
                 rd=[f"v{vQA}"], wr=regs("v", QT + 4 * s, 4)) for s in range(4)]
        topup(a.infl if x < 3 else 99)
        for s in range(4):
            E.lds_wait([rds[s]])
            q_scale(x, s)

    def first_max_ops(x):
        n = NM[x]
        ops = []

        def add(text, wr, rd, dist=0, deps=()):
            ops.append(Op(text, "valu", rd=rd, wr=wr, deps=([(ops[-1], dist)] if ops else []) + list(deps)))

        for j in range(a.nmax):
            S = Sreg[uidx[j, x] % a.ns]
            for r in (S, S + 2):
                add(f"v_max3_f32 v{n}, v{r}, v{r + 1}, v{n}", [f"v{n}"], [f"v{r}", f"v{r + 1}", f"v{n}"],
                    deps=[(mf[last_use["S", j, x]], 8)])
        for sw in ("v_permlane32_swap_b32", "v_permlane16_swap_b32"):
            add(f"v_mov_b32 v{n + 1}, v{n}", [f"v{n + 1}"], [f"v{n}"])
            add(f"{sw} v{n + 1}, v{n}", [f"v{n}", f"v{n + 1}"], [f"v{n}", f"v{n + 1}"], 2)
            add(f"v_max_f32 v{n}, v{n}, v{n + 1}", [f"v{n}"], [f"v{n}", f"v{n + 1}"])
        for i in (1, 2, 3, 0):
            add(f"v_mul_f32 v{n + i}, -1.0, v{n}", [f"v{n + i}"], [f"v{n}"])
        return ops

    F = []
    ladds = {x: [] for x in range(4)}
    nmdone = {}
    for u, (j, x) in enumerate(qk_units):
        S = Sreg[u % a.ns]
        prod = mf[last_use["S", j, x]]
        sdead = first_use[("S",) + qk_units[u + a.ns]] - 1 if u + a.ns < 128 else 10 ** 9
        kap = j // 2
        pdead = max(min(sdead, first_use["P", kap, x] - 2), last_use["S", j, x])
        assert pdead < first_use["P", kap, x]
        if j == 0:
            mops = first_max_ops(x)
            for k, o in enumerate(mops):
                o.dead = max(min(pdead, first_use["S", a.nc0, x] - 2), last_use["S", a.nmax - 1, x])
                assert o.dead < first_use["S", a.nc0, x]
                o.prio = (-1, u, k)
            nmdone[x] = mops[-4]
            F += mops
        ex = []
        for i in range(4):
            op = Op(f"v_exp_f32 v{S + i}, v{S + i}", "trans", rd=[f"v{S + i}"], wr=[f"v{S + i}"],
                    deps=[(prod, 8)], dead=pdead)
            op.prio = (pdead - 4 + i, u, 3 * i)
            if j < a.nc0:
                n = NM[x] + 1
                sub = Op(f"v_add_f32 v{S + i}, v{S + i}, v{n}", "valu", rd=[f"v{S + i}", f"v{n}"], wr=[f"v{S + i}"],
                         deps=[(nmdone[x], 0), (prod, 8)], dead=pdead)
                sub.prio = (pdead - 5 + i, u, 3 * i)
                F.append(sub)
                op.deps.append((sub, 0))
            ex.append(op)
            F.append(op)
            if x in addx:
                ad = Op(f"v_add_f32 v{Lreg[x]}, v{Lreg[x]}, v{S + i}", "valu", rd=[f"v{S + i}", f"v{Lreg[x]}"],
                        wr=[f"v{Lreg[x]}"], deps=[(op, 1)], dead=min(sdead, pdead + 8))
                ad.prio = (pdead - 4 + i, u, 3 * i + 2)
                F.append(ad)
                ladds[x].append(ad)
            if i % 2:
                P = Preg[kap, x] + 2 * (j % 2) + i // 2
                cv = Op(f"v_cvt_pk_bf16_f32 v{P}, v{S + i - 1}, v{S + i}", "valu",
                        rd=[f"v{S + i - 1}", f"v{S + i}"], wr=[f"v{P}"], deps=[(ex[i - 1], 1), (op, 1)],
                        early=Pfree[kap, x], dead=pdead)
                assert Pfree[kap, x] <= pdead, ("P pool too small", kap, x)
                cv.prio = (pdead - 4 + i, u, 3 * i + 1)
                F.append(cv)
    lastsm = F[-12 * a.ns:]
    for key, op in [(("K",) + k, o) for k, o in kr.items()] + [(("V",) + k[:2], o) for k, o in vr.items()]:
        fu = first_use[key]
        mf[fu].needs.append(op)
        if op.idx is None:
            op.early = max(Ffree[key], pub[key[0], key[1] // 2 if key[0] == "K" else key[1]], fu - a.hoist)
            op.dead = max(fu - a.lat, op.early)
            assert op.dead < fu
            op.prio = (op.dead - a.rdbias, -1, fu)
            F.append(op)

    tq = Sreg + NM
    tfree = {b: None for b in tq}
    tdead = max(last_use["S", 31, x] for x in range(4))
    lastsync = epochs[-1]["gc"] + 1
    epi_order = [int(c) for c in a.final if c.isdigit()]
    seqn = [0]
    stage_w, stage_r, mulpair = [], {}, {}

    def epi(text, cls, **kw):
        op = Op(text, cls, **kw)
        seqn[0] += 1
        op.prio = (10 ** 8, seqn[0], 0)
        F.append(op)
        return op

    for xi, x in enumerate(epi_order):
        rl, L = vRL[x], Lreg[x]
        if x in ones_x:
            prev = epi(f"v_accvgpr_read_b32 v{rl}, a{L}", "valu", rd=[f"a{L}"], wr=[f"v{rl}"],
                       deps=[(mf[last_use["L", x]], 8)], early=lastsync)
            L = rl
        else:
            prev = None
            for sw in ("v_permlane32_swap_b32", "v_permlane16_swap_b32"):
                m1 = epi(f"v_mov_b32 v{rl}, v{L}", "valu", rd=[f"v{L}"], wr=[f"v{rl}"], early=lastsync,
                         deps=[(prev, 0)] if prev else [(o, 0) for o in ladds[x][-16:]])
                m2 = epi(f"{sw} v{rl}, v{L}", "valu", rd=[f"v{L}", f"v{rl}"], wr=[f"v{L}", f"v{rl}"], deps=[(m1, 2)])
                prev = epi(f"v_add_f32 v{L}, v{L}, v{rl}", "valu", rd=[f"v{L}", f"v{rl}"], wr=[f"v{L}"], deps=[(m2, 0)])
        cm = epi(f"v_cmp_nge_f32 s[{sBAD + 2 * x}:{sBAD + 2 * x + 1}], s{sTHR}, v{L}", "valu", rd=[f"v{L}"],
                 wr=[f"s{sBAD + 2 * x}"], deps=[(prev, 0)])
        rc = epi(f"v_rcp_f32 v{rl}, v{L}", "trans", rd=[f"v{L}"], wr=[f"v{rl}"], deps=[(cm, 0)])
        p, ob = Oreg[x]
        so = (xi % 2) * TILE
        wrs = []
        for b in range(8):
            prod = mf[last_use["O", x, b]]
            o = ob + 4 * b
            if p == "a":
                t = tq.pop(0)
                tq.append(t)
                dep0 = [(d, 0) for d in (tfree[t] or lastsm)]
                src4 = [[(epi(f"v_accvgpr_read_b32 v{t + i}, a{o + i}", "valu", rd=[f"a{o + i}"], wr=[f"v{t + i}"],
                              deps=[(prod, 8)] + dep0, early=tdead + 1), 0)] for i in range(4)]
            else:
                t = o
                src4 = [[(prod, 8)] for i in range(4)]
            mu = [epi(f"v_mul_f32 v{t + i}, v{rl}, v{t + i}", "valu", rd=[f"v{rl}", f"v{t + i}"], wr=[f"v{t + i}"],
                      deps=src4[i] + [(rc, 1)]) for i in range(4)]
            for i in (0, 2):
                sel = "op_sel:[0,1] op_sel_hi:[1,1]" if rl % 2 else "op_sel_hi:[1,0]"
                mulpair[mu[i]] = (mu[i + 1], f"v_pk_mul_f32 {rr('v', t + i, 2)}, {rr('v', t + i, 2)}, "
                                             f"{rr('v', rl & ~1, 2)} {sel}")
            c0 = epi(f"v_cvt_pk_bf16_f32 v{t}, v{t}, v{t + 1}", "valu", rd=[f"v{t}", f"v{t + 1}"], wr=[f"v{t}"],
                     deps=[(mu[0], 0), (mu[1], 0)])
            c1 = epi(f"v_cvt_pk_bf16_f32 v{t + 1}, v{t + 2}, v{t + 3}", "valu", rd=[f"v{t + 2}", f"v{t + 3}"],
                     wr=[f"v{t + 1}"], deps=[(mu[2], 0), (mu[3], 0), (c0, 0)])
            w = epi(f"ds_write_b64 v{vOW}, {rr('v', t, 2)} offset:{so + 32 * b}", "ldsw",
                    rd=[f"v{vOW}", f"v{t}", f"v{t + 1}"], early=10 ** 9,
                    deps=[(c0, 0), (c1, 0)] + [(r, 0) for r in stage_r.get(xi - 2, [])])
            wrs.append(w)
            stage_w.append(w)
            if p == "a":
                tfree[t] = [w]
        stage_r[xi] = [epi(f"ds_read_b128 {rr(p, ob + 4 * i, 4)}, v{vOR} offset:{so + 272 * i}", "ldsr",
                           rd=[f"v{vOR}"], wr=regs(p, ob + 4 * i, 4), deps=[(w, 0) for w in wrs]) for i in range(4)]
        for i, r in enumerate(stage_r[xi]):
            if str(x) in a.dbgnost:
                continue
            stx = (st.split("/") * 4)[xi]
            epi(f"buffer_store_dwordx4 {rr(p, ob + 4 * i, 4)}, v{vOG}, s[{sO}:{sO + 3}], s{sX + 4 * x + i} offen {stx}".rstrip(),
                "vmem", rd=regs(p, ob + 4 * i, 4) + [f"v{vOG}"], deps=[(r, a.stdist)], needs=[r])

    pending = sorted(F, key=lambda o: o.prio)
    overflow = 0
    leads = []

    def ready(op, strict=True):
        if op.early > E.gap:
            return False
        for d, dist in op.deps:
            if d.idx is None or (strict and E.nst - d.st < dist):
                return False
        return True

    def put(op):
        if op.cls == "ldsr":
            finalize_read(op)
        if op.needs:
            E.lds_wait(op.needs)
        E.emit(op)
        pending.remove(op)

    def closure(op, acc):
        assert op.early <= E.gap, ("cannot meet deadline", op.text, op.tag, op.early, E.gap)
        for d, _ in op.deps:
            if d.idx is None and d not in acc:
                assert d.cls != "mfma", ("deadline before producer", op.text, E.gap)
                closure(d, acc)
        if op not in acc:
            acc.append(op)

    def drain(merge_mul=False):
        while True:
            cand = [o for o in pending if ready(o)] or [o for o in pending if ready(o, False)]
            if not cand:
                return
            o = cand[0]
            if merge_mul and o in mulpair and mulpair[o][0].idx is None and ready(mulpair[o][0], False):
                o2, o.text = mulpair[o]
                o.rd += o2.rd
                o.wr += o2.wr
                put(o)
                o2.idx, o2.st = o.idx, o.st
                pending.remove(o2)
            else:
                put(o)

    def signal(ep):
        for t in ep["tiles"]:
            assert t in dma_op and dma_op[t].idx is not None, ("tile not issued before its epoch", t, ep)
            leads.append(E.gap - dma_op[t].gap)
        stamp("b")
        E.vm_wait([dma_op[t] for t in ep["tiles"]])
        stamp("w")
        ep["rel"] = [t for t, rs in tile_reads.items() if t not in released and t in slot_of and
                     all(r.idx is not None and (not ep["bar"] or r.ldsn < E.lds_done) for r in rs)]
        released.update(ep["rel"])

    def passed(ep):
        if ep["n"] == 1:
            for s in range(q0, q0 + 16, 2):
                free_slots["K" if s < NK else "V"].append(s)
        for t in ep["rel"]:
            free_slots[t[0]].append(slot_of[t])
        if ("K", 11) in slot_of and all(s in free_slots["K"] for s in range(0, 8, 2)):
            for w in stage_w:
                w.early = min(w.early, E.gap)

    dper = [int(x) for x in a.dmaper.split(",")]
    next_dma_gap = G0 + a.dma0
    staged = None
    for g in range(-1, NMF):
        E.gap = g
        if g >= 0:
            E.emit(mf[g])
        if g in qgap:
            drain()
            q_prepare(qgap[g])
            if g == G0:
                stamp()
            E.lds_wait(mf[g + 1].needs)
            continue
        shadow = True
        budget = 8 if g < tdead + a.fstart else (a.fbudget * (g + 1) // 4 - a.fbudget * g // 4) * 4
        budget0 = budget
        fixed_mem, fixed_valu = [], []
        for ep in epochs:
            if ep["bar"]:
                if g == ep["gc"]:
                    signal(ep)
                    e("s_barrier", "barrier")
                    stamp("b")
                    passed(ep)
                    shadow = False
                continue
            if g == ep["gs"] - 1:
                fixed_valu.append(Op(f"v_mov_b32 v{vFE}, {ep['n']}", "valu", wr=[f"v{vFE}"]))
            if g == ep["gs"]:
                signal(ep)
                shadow = False
                E.emit(Op(f"ds_write_b32 v{vFW}, v{vFE}", "ldsw", rd=[f"v{vFW}", f"v{vFE}"]))
                budget -= 8
            if g == ep["gr"]:
                ep["rd"] = Op(f"ds_read_b32 v{vFT}, v{vFR}", "ldsr", rd=[f"v{vFR}"], wr=[f"v{vFT}"])
                fixed_mem.append(ep["rd"])
            if g == ep["gc"] - 1:
                if E.lds_wait([ep["rd"]], a.lat):
                    shadow = False
                fixed_valu.append(Op(f"v_cmp_gt_u32 vcc, {ep['n']}, v{vFT}", "valu", rd=[f"v{vFT}"], wr=["vcc"]))
            if g == ep["gc"]:
                e(f"s_cbranch_vccnz L_spin{ep['n']}")
                E.label(f"L_ok{ep['n']}")
                passed(ep)
                shadow = False
        if a.stamps and g in [first_use["S", gs, 0] for gs in (4, 8, 12, 16, 20, 24, 28)] + [tdead]:
            stamp()
        if g > G0 and (g - G0) % a.stampper == 1:
            stamp("p")
        if g + 1 < NMF and mf[g + 1].needs and all(n.idx is not None for n in mf[g + 1].needs):
            if E.lds_wait(mf[g + 1].needs, a.lat):
                shadow = False
        quiet = not any(not ep["bar"] and g + 1 in (ep["gs"] - 1, ep["gs"], ep["gr"], ep["gc"] - 1) for ep in epochs)
        if staged is not None:
            for o in staged:
                E.emit(o)
            staged = None
            budget -= a.dmacost
        elif shadow and quiet and di < len(dma_order) and g >= next_dma_gap and slot_for(dma_order[di]) is not None:
            pre, staged = make_dma(dma_order[di])
            di += 1
            E.emit(pre)
            next_dma_gap = max(next_dma_gap, g - 4) + dper[0]
            if len(dper) > 1:
                dper.pop(0)
        budget -= 4 * (len(fixed_mem) + len(fixed_valu))
        full = budget >= 8
        picks = []
        for o in pending:
            if o.dead <= g:
                closure(o, picks)
        budget -= sum(COST[o.cls] for o in picks)
        cand = [o for o in pending[:400] if o not in picks and ready(o)]
        if full and not picks and cand:
            first = cand[0]
            small = [o for o in cand if COST[o.cls] == 4]
            tr = [o for o in cand if o.cls == "trans"]
            if COST[first.cls] == 4 and len(small) < 2 and tr:
                first = tr[0]
            picks.append(first)
            budget -= COST[first.cls]
        for o in cand:
            if o not in picks and COST[o.cls] <= budget:
                picks.append(o)
                budget -= COST[o.cls]
        mem = [o for o in picks if o.cls in ("ldsr", "ldsw", "vmem") and all(d.idx is not None for d, _ in o.deps)]
        rest = [o for o in picks if o not in mem]
        for o in fixed_mem:
            E.emit(o)
        for o in mem:
            put(o)
        for o in fixed_valu:
            E.emit(o)
        while rest:
            o = ([o for o in rest if ready(o)] or [o for o in rest if ready(o, False)])[0]
            put(o)
            rest.remove(o)
        while budget > 0:
            more = [o for o in pending[:400] if o.cls == "valu" and ready(o)]
            if not more:
                break
            put(more[0])
            budget -= 4
        if full and not picks and budget >= 8 and any(ready(o, False) for o in pending[:400]):
            e("s_nop 1", "nop")
        if a.dbgnop:
            n0, n1, ev, ln = [int(x) for x in a.dbgnop.split(",")]
            if n0 <= g < n1 and g % ev == 0:
                e(f"s_nop {ln}", "nop")
        if g > G0:
            overflow += max(0, budget0 - budget - 8)
        if g + 1 < NMF and mf[g + 1].needs:
            E.lds_wait(mf[g + 1].needs)
    assert staged is None and di == len(dma_order) and not pro_q
    stamp()
    ntail = len(pending)
    n0 = len(E.out)
    drain(a.pk)
    overflow += sum(COST.get(o.cls, 4) for o in E.out[n0:])
    assert not pending
    stamp("x")

    e(f"s_or_b64 s[{sBAD}:{sBAD + 1}], s[{sBAD}:{sBAD + 1}], s[{sBAD + 2}:{sBAD + 3}]")
    e(f"s_or_b64 s[{sBAD + 4}:{sBAD + 5}], s[{sBAD + 4}:{sBAD + 5}], s[{sBAD + 6}:{sBAD + 7}]")
    e(f"s_or_b64 s[{sBAD}:{sBAD + 1}], s[{sBAD}:{sBAD + 1}], s[{sBAD + 4}:{sBAD + 5}]")
    e(f"s_cselect_b32 s{sTMP}, 1, 0")
    e(f"s_lshl_b32 s{sC}, s{sW}, 2")
    e(f"s_add_u32 s{sC}, s{sC}, {FLAG_OFF}")
    va(f"v_mov_b32 v12, s{sC}")
    va(f"v_mov_b32 v13, s{sTMP}")
    va(f"v_mov_b32 v14, {FLAG_OFF}")
    e("ds_write_b32 v12, v13", "ldsw", rd=["v12", "v13"])
    E.lds_drain()
    e("s_barrier", "barrier")
    e("ds_read_b128 v[16:19], v14", "ldsr", rd=["v14"], wr=regs("v", 16, 4))
    E.lds_drain()
    v("v_or3_b32 v16, v16, v17, v18", ["v16"], regs("v", 16, 3))
    v("v_or_b32 v16, v16, v19", ["v16"], ["v16", "v19"])
    v(f"v_readfirstlane_b32 s{sTMP}, v16", [f"s{sTMP}"], ["v16"])
    e(f"s_andn2_b32 s{sTMP}, s{sTMP}, s{sMODE}", rd=[f"s{sTMP}"])
    e("s_cbranch_scc1 L_rerun")
    if a.stamps:
        e("s_waitcnt vmcnt(0)", "wait")
        stamp("x")
        E.lds_drain()
        e(f"s_mov_b32 s{sWS + 2}, 1048576")
        e(f"s_mov_b32 s{sWS + 3}, 0x20000")
        e(f"s_lshl_b32 s{sTMP}, s2, 2")
        e(f"s_add_u32 s{sTMP}, s{sTMP}, s{sW}")
        e(f"s_mul_i32 s{sTMP}, s{sTMP}, {8 * nstamp[0]}")
        va("v_mov_b32 v12, 0")
        for i in range(nstamp[0]):
            va(f"v_mov_b32 v14, s{stampreg[i]}")
            va(f"v_mov_b32 v15, s{stampreg[i] + 1}")
            e(f"buffer_store_dwordx2 v[14:15], v12, s[{sWS}:{sWS + 3}], s{sTMP} offen offset:{8 * i}", "vmem",
              rd=["v14", "v15", "v12"])
            e("s_nop 1", "nop")
    if a.spin:
        e("s_waitcnt vmcnt(0)", "wait")
        E.label("L_diag")
        e("s_memrealtime s[62:63]", "smem")
        e("s_waitcnt lgkmcnt(0)", "wait")
        e("s_sub_u32 s62, s62, s60")
        e(f"s_cmp_lt_u32 s62, {a.spin * 100}")
        e("s_cbranch_scc1 L_diag")
    E.label("L_end")
    e("s_endpgm", "end")

    for ep in epochs:
        if not ep["bar"]:
            E.label(f"L_spin{ep['n']}")
            e(f"ds_read_b32 v{vFT}, v{vFR}", "ldsr", rd=[f"v{vFR}"], wr=[f"v{vFT}"])
            e("s_waitcnt lgkmcnt(0)", "wait")
            v(f"v_cmp_gt_u32 vcc, {ep['n']}, v{vFT}", ["vcc"], [f"v{vFT}"])
            e(f"s_cbranch_vccnz L_spin{ep['n']}")
            e(f"s_branch L_ok{ep['n']}")
    E.label("L_codeend")

    E.label("L_rerun")
    e(f"s_mov_b32 s{sMODE}, 1")
    e("s_waitcnt vmcnt(0) lgkmcnt(0)", "wait")
    e("s_barrier", "barrier")
    va("v_mbcnt_lo_u32_b32 v0, -1, 0")
    va("v_mbcnt_hi_u32_b32 v0, -1, v0")
    e(f"s_lshl_b32 s{sTMP}, s{sW}, 6")
    va(f"v_add_u32 v0, s{sTMP}, v0")
    e("s_branch L_start")

    E.label("L_maxpass")
    va(f"v_bfe_u32 v{vT1}, v{vLN}, 2, 2")
    va(f"v_lshrrev_b32 v{vT2}, 4, v{vLN}")
    va(f"v_lshl_add_u32 v{vT2}, v{vT2}, 4, {BIAS}")
    va(f"v_lshl_add_u32 v{vT1}, v{vT1}, 8, v{vT2}")
    va(f"v_and_b32 v{UT}, 1, v{vLN}")
    va(f"v_lshl_add_u32 v{vT2}, v{UT}, {lg(qS[2])}, v{vT1}")
    va(f"v_bfe_u32 v{UT}, v{vLN}, 1, 1")
    va(f"v_lshl_add_u32 v{vT2}, v{UT}, {lg(qS[3])}, v{vT2}")
    va(f"v_and_b32 v{UT}, 3, v{vLN}")
    va(f"v_lshl_add_u32 v{vT1}, v{UT}, 10, v{vT1}")
    for x in range(4):
        for s in range(4):
            e(f"buffer_load_dwordx4 {rr('v', QT + 4 * s, 4)}, v{vT2}, s[{sQ}:{sQ + 3}], s{sX + 4 * x} offen offset:{64 * s}",
              "vmem", rd=[f"v{vT2}"], wr=regs("v", QT + 4 * s, 4))
        e("s_waitcnt vmcnt(0)", "wait")
        for s in range(4):
            q_scale(x, s)
    e(f"s_mov_b32 s{sTMP}, 0")
    E.label("L_maxloop")
    for s in range(4):
        e(f"buffer_load_dwordx4 {rr('v', QT + 4 * s, 4)}, v{vT1}, s[{sK}:{sK + 3}], s{sTMP} offen offset:{64 * s}",
          "vmem", rd=[f"v{vT1}"], wr=regs("v", QT + 4 * s, 4))
    e("s_waitcnt vmcnt(0)", "wait")
    for x in range(4):
        S = Sreg[x]
        for s in range(4):
            C, cr = ("0", []) if s == 0 else (rr("v", S, 4), regs("v", S, 4))
            E.emit(Op(f"v_mfma_f32_16x16x32_bf16 {rr('v', S, 4)}, {rr('v', QT + 4 * s, 4)}, {rr('a', Qreg[x][s], 4)}, {C}",
                      "mfma", rd=regs("v", QT + 4 * s, 4) + regs("a", Qreg[x][s], 4) + cr, wr=regs("v", S, 4), srcc=cr))
    e("s_nop 7", "nop")
    for x in range(4):
        S, n = Sreg[x], NM[x]
        v(f"v_max3_f32 v{n}, v{S}, v{S + 1}, v{n}", [f"v{n}"], [f"v{S}", f"v{S + 1}", f"v{n}"])
        v(f"v_max3_f32 v{n}, v{S + 2}, v{S + 3}, v{n}", [f"v{n}"], [f"v{S + 2}", f"v{S + 3}", f"v{n}"])
    e(f"s_add_u32 s{sTMP}, s{sTMP}, 4096")
    e(f"s_cmp_lt_u32 s{sTMP}, 131072")
    e("s_cbranch_scc1 L_maxloop")
    e("s_nop 3", "nop")
    e("s_branch L_maxdone")

    ops, nnop = fix_hazards(E.out)
    if a.pads:
        ops = insert_pads(ops)
    if a.verbose:
        print("G0", G0, "tdead", tdead)
        print([(ep["gs"], ep["gc"], [t[0] + str(t[1]) for t in ep["tiles"]]) for ep in epochs])
        print("leads", leads)
    info = dict(mfma=NMF, instrs=len(ops), nops=nnop, overflow=overflow, tail=ntail, epochs=len(epochs),
                minlead=min(leads[a.ninit:]), pslots=len(Pbases), fslots=len(Fbases), stamps=nstamp[0])
    head = [
        "; GQA attention forward, B=32 Hq=32 Hkv=8 Sq=64 Sk=512 D=128, bf16 in / bf16 out (generated schedule).",
        "; kernarg: q @0, k @8, v @16, out @24, debug @32, ws @40",
        "; One workgroup per (batch, kv head); wave w handles q head 4*hkv+w.",
        "; Softmax shift: row max of the first keys; a final check on the row sums reruns the",
        "; workgroup with the true row max (L_rerun / L_maxpass) whenever that shift is unsafe.",
        f"; @launch grid=(256,1,1) block=(256,1,1) lds={LDS_BYTES}",
        '.amdgcn_target "amdgcn-amd-amdhsa--gfx950"', ".text", f".globl {KNAME}", ".p2align 8",
        f".type {KNAME},@function", f"{KNAME}:"]
    body = [(o.text if o.cls == "label" else "    " + o.text) for o in ops]
    tail = ['.section .rodata,"a"', ".p2align 6", f".amdhsa_kernel {KNAME}",
            "  .amdhsa_next_free_vgpr 512", "  .amdhsa_next_free_sgpr 102", "  .amdhsa_accum_offset 256",
            "  .amdhsa_group_segment_fixed_size 0", "  .amdhsa_kernarg_size 48", "  .amdhsa_user_sgpr_count 2",
            "  .amdhsa_user_sgpr_kernarg_segment_ptr 1", "  .amdhsa_system_sgpr_workgroup_id_x 1",
            ".end_amdhsa_kernel"]
    return "\n".join(head + body + tail) + "\n", info


def parser():
    ap = argparse.ArgumentParser()
    ap.add_argument("out")
    for k, d in dict(groups="2,2,4,4,4,4,4,8", final="0,1,2,3", ones="0123", oacc="0", ld="nt", st="sc1 nt", sync="bar",
                     merge="12,12,40", win="10,10,16", dmaper="29", stampat="m", dbgnop="", dbgload="", dbgnost="").items():
        ap.add_argument("--" + k, default=d)
    for k, d in dict(ns=5, lag=3, lat=6, skew=8, nbar=1, dmacost=8, dma0=8, rdbias=8, hoist=64, stdist=12, q0=10,
                     ninit=3, infl=8, halftop=0, prek=2, prev=1, nc0=3, nmax=1, fbudget=12, fstart=16, pk=1,
                     rot=1, remap=1, rotmask=15, rotrev=0, qrot=3, kvs=0, qs=0, dbgswap=0, infl0=0, infl1=0, pvend=0, pvgam=100, qrun=1, snake=0, stampper=60, stamps=0, spin=0, pfcode=1, pads=1, verbose=0).items():
        ap.add_argument("--" + k, type=int, default=d)
    return ap


if __name__ == "__main__":
    a = parser().parse_args()
    txt, info = build(a)
    open(a.out, "w").write(txt)
    print(a.out, info)
```

```python
import argparse, math, re, struct, sys

KNAME = "standalone__gqa_softmax__near_ridge_kernel"
TILE = 4352
GRAN = 1088
NSLOT = 36
LDS_BYTES = 163840
FLAG_OFF = NSLOT * TILE
SYNC_OFF = FLAG_OFF + 256


def f32bits(x):
    return struct.unpack("<I", struct.pack("<f", x))[0]


def regs(p, lo, n):
    return [f"{p}{lo + i}" for i in range(n)]


def rr(p, lo, n):
    return f"{p}[{lo}:{lo + n - 1}]" if n > 1 else f"{p}{lo}"


class Op:
    __slots__ = ("text", "cls", "rd", "wr", "deps", "early", "dead", "prio", "needs", "idx", "gap",
                 "ldsn", "pre", "vmn", "tag", "srcc", "st", "cost")

    def __init__(self, text, cls, rd=(), wr=(), deps=(), early=-1, dead=10 ** 9, needs=(), pre=None, tag=None,
                 srcc=()):
        self.text, self.cls = text, cls
        self.rd, self.wr = list(rd), list(wr)
        self.deps = list(deps)
        self.early, self.dead = early, dead
        self.needs = list(needs)
        self.idx = None
        self.gap = None
        self.ldsn = None
        self.vmn = None
        self.pre = pre
        self.tag = tag
        self.prio = 0
        self.srcc = list(srcc)
        self.cost = COST.get(cls, 4)


COST = dict(trans=8, valu=4, ldsr=4, ldsw=12, vmem=20, salu=4)


class Emitter:
    def __init__(self):
        self.out = []
        self.nlds = 0
        self.lds_done = 0
        self.lds_gap = []
        self.nvm = 0
        self.vm_done = 0
        self.gap = -1
        self.nst = 0

    def emit(self, op):
        self.nst += states(op)
        op.st = self.nst
        op.idx = len(self.out)
        op.gap = self.gap
        if op.cls in ("ldsr", "ldsw"):
            op.ldsn = self.nlds
            self.nlds += 1
            self.lds_gap.append(self.gap)
        if op.cls == "vmem":
            op.vmn = self.nvm
            self.nvm += 1
        self.out.append(op)
        return op

    def raw(self, text, cls="salu", **kw):
        return self.emit(Op(text, cls, **kw))

    def label(self, name):
        self.out.append(Op(name + ":", "label"))

    def lds_wait(self, needs, lat=None):
        need = max((n.ldsn for n in needs), default=-1) + 1
        if need <= self.lds_done:
            return False
        if lat is not None:
            k = need
            while k < self.nlds and self.lds_gap[k] <= self.gap - lat:
                k += 1
            need = k
        n = min(self.nlds - need, 15)
        self.raw(f"s_waitcnt lgkmcnt({n})", "wait")
        self.lds_done = self.nlds - n
        return True

    def lds_drain(self):
        self.raw("s_waitcnt lgkmcnt(0)", "wait")
        self.lds_done = self.nlds

    def vm_wait(self, ops):
        need = max((o.vmn for o in ops), default=-1) + 1
        if need <= self.vm_done:
            return False
        n = min(self.nvm - need, 63)
        self.raw(f"s_waitcnt vmcnt({n})", "wait")
        self.vm_done = self.nvm - n
        return True


def states(op):
    if op.cls == "label":
        return 0
    m = re.match(r"s_nop (\d+)", op.text)
    return int(m.group(1)) + 1 if m else 1


def fix_hazards(ops):
    out = []
    added = 0
    for op in ops:
        if op.cls == "label":
            out.append(op)
            continue
        need = 0
        dist = 0
        rd, wr = set(op.rd), set(op.wr)
        isv = op.cls in ("valu", "trans")
        for p in reversed(out):
            if dist >= 12:
                break
            pw = set(p.wr)
            req = 0
            if p.cls == "mfma":
                if op.cls == "mfma":
                    ab = rd - set(op.srcc)
                    if pw & ab:
                        req = 8
                    if pw & set(op.srcc) and set(op.srcc) != pw:
                        req = max(req, 6)
                    if pw & wr and set(op.srcc) != pw:
                        req = max(req, 6)
                else:
                    if pw & (rd | wr):
                        req = 8
                    if isv and set(p.srcc) & wr:
                        req = max(req, 3)
            elif p.cls in ("valu", "trans"):
                if op.cls == "mfma" and pw & rd:
                    req = 2
                if p.cls == "trans" and op.cls != "trans" and pw & rd:
                    req = max(req, 1)
                if "permlane" in op.text and pw & rd:
                    req = max(req, 2)
                if ("readfirstlane" in op.text or "readlane" in op.text) and pw & rd:
                    req = max(req, 1)
                sw = {r for r in pw if r[0] == "s" or r == "vcc"}
                if sw & rd:
                    req = max(req, 5 if op.cls == "vmem" else 2)
            elif p.cls == "salu":
                if "m0" in pw and op.cls == "vmem" and "m0" in rd:
                    req = 1
            elif p.cls == "vmem":
                if "store" in p.text and set(p.rd) & wr and op.cls != "salu":
                    req = 2
            need = max(need, req - dist)
            if not (p.tag and p.tag[0] == "arm" and p.tag != op.tag):
                dist += states(p)
        if need > 0:
            out.append(Op(f"s_nop {need - 1}", "nop"))
            added += 1
        out.append(op)
    return out, added


def isize(op):
    t = op.text
    if op.cls == "label":
        return 0
    mn = t.split()[0]
    if op.cls in ("mfma", "xmfma", "ldsr", "ldsw", "vmem", "smem"):
        return 8
    if mn in ("s_getreg_b32", "s_movk_i32", "s_nop", "s_waitcnt", "s_barrier", "s_branch", "s_endpgm") or mn.startswith("s_cbranch"):
        return 4
    if mn.startswith("v_cmp") and " s[" in t:
        return 8
    if mn.startswith(("v_cvt_pk", "v_max3", "v_accvgpr", "v_pk_", "v_lshl_add", "v_add3", "v_bfe", "v_or3", "v_mbcnt",
                      "v_fma")):
        return 8
    for arg in [x.strip() for x in t[len(mn):].split(",")]:
        if re.fullmatch(r"-?(0x[0-9a-f]+|\d+)", arg) and not -16 <= int(arg, 0) <= 64:
            return 8
        if arg.startswith("L_"):
            return 8
    return 4


def insert_pads(ops):
    i0 = next(i for i, o in enumerate(ops) if o.text == "L_main:")
    i1 = next(i for i, o in enumerate(ops) if o.text == "L_end:")
    out, addr, page, pads = ops[:i0], 0, 1, []
    for i in range(i0, len(ops)):
        o = ops[i]
        if i <= i1 and addr >= 4096 * page:
            good = out[-1].cls == "mfma" and o.cls not in ("salu", "wait", "barrier", "nop")
            if good or addr + isize(o) > 4096 * page + 56:
                lab = Op(f"L_pad{len(pads)}:", "label")
                br = Op("", "salu")
                pads.append(br)
                out += [lab, br]
                addr += 4
                page += 1
        out.append(o)
        addr += isize(o)
    assert len(pads) >= 4
    for k, br in enumerate(pads):
        br.text = f"s_cbranch_execz L_pad{k + 4}" if k + 4 < len(pads) else "s_cbranch_execz L_main"
    return out


class Pool:
    def __init__(self, prefix, bases):
        self.prefix = prefix
        self.rel = {b: -1 for b in bases}

    def add(self, base, release):
        self.rel[base] = release

    def take(self, release):
        b = min(self.rel, key=lambda k: (self.rel[k], k))
        prev = self.rel[b]
        self.rel[b] = release
        return b, prev


def build(a):
    groups = [int(x) for x in a.groups.split(",")]
    assert sum(groups) == 32 and all(g % 2 == 0 for g in groups)
    G = len(groups)
    gstart = [sum(groups[:g]) for g in range(G + 1)]
    ones_x = [int(c) for c in a.ones if c.isdigit()]
    oacc_x = [int(c) for c in a.oacc if c.isdigit()]
    addx = [x for x in range(4) if x not in ones_x]
    ld, st = a.ld, a.st
    PK = 2 * a.prek
    flag = a.sync == "flag"
    GV = 1040 if a.pa else GRAN
    assert not a.pa or (a.half and not flag and len(ones_x) == 4)
    E = Emitter()
    e = E.raw

    vK, vV = 1, [2, 3, 4, 5]
    vDK, vDV = (6, 7), (11, 0)
    vOW, vOR, vOG = 8, 9, 10
    vRL = [12, 13, 14, 15]
    vFW, vFR, vFE, vFT = 12, 13, 14, 15
    NM = [16 + 4 * x for x in range(4)]
    vnext, anext, vtop = 32, 0, 256
    Lreg = {}
    for x in ones_x:
        Lreg[x] = anext
        anext += 4
    if addx:
        for i, x in enumerate(addx):
            Lreg[x] = vnext + i
        vnext += 4
    Sreg = [vnext + 4 * i for i in range(a.ns)]
    vnext += 4 * a.ns
    Oreg = {}
    for x in range(4):
        if x in oacc_x:
            Oreg[x] = ("a", anext)
            anext += 32
        else:
            vtop -= 32
            Oreg[x] = ("v", vtop)
    Pbases = list(range(vnext, vtop, 4))
    Qreg = [[anext + 16 * x + 4 * s for s in range(4)] for x in range(4)]
    anext += 64
    aONE = anext
    anext += 4
    Fbases = list(range(anext, 256, 4))
    QT = Pbases[-8]
    UT = QT + 16
    vLN, vQA, vT1, vT2 = QT + 24, QT + 25, QT + 26, QT + 27
    vDQ = (QT + 28, QT + 29)
    assert len(Pbases) >= 8 + 4 * a.prek
    kvS = [(256, 512, 1024, 2048, 8192), (256, 512, 1024, 32768, 2048), (256, 512, 16384, 32768, 1024),
           (4096, 8192, 16384, 32768, 256), (256, 8192, 16384, 32768, 512)][a.kvs]
    qS = [(256, 512, 1024, 2048, 4096), (256, 512, 4096, 8192, 1024), (256, 512, 1024, 8192, 2048)][a.qs]
    lg = lambda n: n.bit_length() - 1

    sQ, sK, sV, sO = 12, 16, 20, 24
    sW, sWG, sMODE, sC, sTHR, sQW, sTMP, sT2 = 3, 28, 29, 30, 31, 34, 35, 32
    sWS = 36
    sWV = 38
    sOFF = 64
    sX = 40
    sBAD = 88

    NK = 16
    q0 = a.q0
    vwin = [NK, NK + 16]

    qk_units = [(j, x) for x in range(4) for j in range(PK)] + [(j, x) for j in range(PK, 32) for x in range(4)]
    uidx = {u: i for i, u in enumerate(qk_units)}
    assert gstart[a.prev + 1] >= PK >= gstart[a.prev]
    final_parts = [([int(c) for c in part if c.isdigit()],
                    range(4) if "a" in part else range(4, 8) if "b" in part else range(8)) for part in a.final.split(",")]
    pvq = []
    for g in range(G):
        if g < a.prev:
            for x in range(4):
                u = ([("sum", g, None, x)] if x in ones_x else []) + [("pv", g, b, x) for b in range(8)]
                pvq += [(PK * (x + 1) - 0.5, w) for w in u]
            continue
        if g < G - 1:
            u = [("sum", g, None, x) for x in ones_x] + [("pv", g, b, x) for b in range(8) for x in range(4)]
        else:
            u = []
            for xs, bs in final_parts:
                u += [("sum", g, None, x) for x in xs if x in ones_x and ("sum", g, None, x) not in u]
                u += [("pv", g, b, x) for b in bs for x in xs]
            for w in [w for w in u[1:] if w[0] == "sum"]:
                i = u.index(w)
                u.insert(max(1, i - a.sumearly), u.pop(i))
        lo = 4 * gstart[g + 1] + a.lag
        hi = 4 * gstart[min(g + 2, G)] + a.lag
        if a.pvend and g < G - 1:
            u0, span = 4 * gstart[a.prev + 1] + a.lag, gstart[G - 1] - gstart[a.prev]
            at = lambda t: u0 + (a.pvend - u0) * ((t - gstart[a.prev]) / span) ** (a.pvgam / 100)
            lo = max(lo, at(gstart[g]))
            hi = max(hi, at(gstart[g + 1])) if g < G - 2 else a.pvend
        pvq += [(lo + (hi - lo) * i / len(u) if g < G - 1 else 10 ** 6, w) for i, w in enumerate(u)]
    pvq.sort(key=lambda p: p[0])
    seq, pi = [], 0
    for ui, (j, x) in enumerate(qk_units):
        while pi < len(pvq) and pvq[pi][0] < ui and (ui <= 4 * PK or ui % a.qrun == 0):
            seq.append(pvq[pi][1])
            pi += 1
        seq.append(("qk", j, x))
    seq += [u for _, u in pvq[pi:]]

    M = []
    flip = False
    for n, u in enumerate(seq):
        same = n > 0 and seq[n - 1][0] == u[0] and (u[0] == "qk" or seq[n - 1][1] == u[1])
        flip = a.snake and same and not flip
        ks = list(range(4 if u[0] == "qk" else groups[u[1]] // 2))
        for i, k in enumerate(ks[::-1] if flip else ks):
            M.append(("qk", u[1], u[2], k, i == 0) if u[0] == "qk" else (u[0], u[1], u[2], u[3], k))
    NMF = len(M)
    first_use, last_use = {}, {}

    def use(key, i):
        first_use.setdefault(key, i)
        last_use[key] = i

    for i, m in enumerate(M):
        if m[0] == "qk":
            _, j, x, s, _ = m
            use(("K", j, s), i)
            use(("S", j, x), i)
            use(("Q", x, s), i)
        else:
            kind, g, b, x, k = m
            kap = gstart[g] // 2 + k
            use(("P", kap, x), i)
            if kind == "pv":
                use(("V", kap, b), i)
                use(("O", x, b), i)
            else:
                use(("L", x), i)
    qgap = {first_use["S", 0, x] - 1: x for x in range(4)}
    G0 = first_use["S", 0, 3] - 1

    ppool = Pool("v", Pbases)
    for b in Pbases[-8:]:
        ppool.add(b, G0 + 1)
    Preg, Pfree = {}, {}
    for kap, x in sorted([(k, x) for k in range(16) for x in range(4)], key=lambda p: uidx[2 * p[0], p[1]]):
        Preg[kap, x], Pfree[kap, x] = ppool.take(last_use["P", kap, x])
    fpool = Pool("a", Fbases)
    for x in range(4):
        for s in range(4):
            fpool.add(Qreg[x][s], last_use["Q", x, s])
    frags = sorted([k for k in first_use if k[0] in "KV"], key=lambda k: first_use[k])
    Freg, Ffree = {}, {}
    for k in frags:
        Freg[k], Ffree[k] = fpool.take(last_use[k])
        assert Ffree[k] < first_use[k] - a.lat or Ffree[k] < 0, ("frag pool too small", k)

    mf = []
    started = set()
    for i, m in enumerate(M):
        if m[0] == "qk":
            _, j, x, s, head = m
            S = Sreg[uidx[j, x] % a.ns]
            A, B = Freg["K", j, s], Qreg[x][s]
            if head:
                C, cr = ("0", []) if j < a.nc0 else (rr("v", NM[x], 4), regs("v", NM[x], 4))
            else:
                C, cr = rr("v", S, 4), regs("v", S, 4)
            mf.append(Op(f"v_mfma_f32_16x16x32_bf16 {rr('v', S, 4)}, {rr('a', A, 4)}, {rr('a', B, 4)}, {C}", "mfma",
                         rd=regs("a", A, 4) + regs("a", B, 4) + cr, wr=regs("v", S, 4), srcc=cr))
        else:
            kind, g, b, x, k = m
            kap = gstart[g] // 2 + k
            if kind == "pv":
                p, o = Oreg[x][0], Oreg[x][1] + 4 * b
                A = Freg["V", kap, b]
                key = ("O", x, b)
            else:
                p, o, A, key = "a", Lreg[x], aONE, ("L", x)
            B = Preg[kap, x]
            C, cr = (rr(p, o, 4), regs(p, o, 4)) if key in started else ("0", [])
            started.add(key)
            ab = [rr('a', A, 4), rr('v', B, 4)]
            if (a.dbgswap or a.pa) and kind == "pv":
                ab.reverse()
            mf.append(Op(f"v_mfma_f32_16x16x32_bf16 {rr(p, o, 4)}, {ab[0]}, {ab[1]}, {C}", "mfma",
                         rd=regs("a", A, 4) + regs("v", B, 4) + cr, wr=regs(p, o, 4), srcc=cr))

    tile_first = {}
    for d in range(16):
        tile_first["K", d] = min(first_use["K", 2 * d, s] for s in range(4))
        tile_first["V", d] = min(first_use["V", d, b] for b in range(8))
    dma_order = sorted(tile_first, key=lambda t: (tile_first[t], t[1]))
    pre_tiles = [t for t in dma_order if tile_first[t] <= G0]
    merge = [int(x) for x in a.merge.split(",")]
    wins = [int(x) for x in a.win.split(",")]
    nbar = a.nbar if flag else 99
    epochs, pub = [], {t: -1 for t in pre_tiles}
    for t in dma_order[len(pre_tiles):]:
        k = len(epochs)
        gc = max(tile_first[t] - wins[min(k, len(wins) - 1)], G0 + 1)
        if epochs and gc < epochs[-1]["gc"] + merge[min(k - 1, len(merge) - 1)]:
            epochs[-1]["tiles"].append(t)
        else:
            isbar = k < nbar
            epochs.append(dict(gc=gc, gr=gc - (0 if isbar else a.lat + 1), gs=gc - (0 if isbar else a.lat + 1 + a.skew),
                               tiles=[t], bar=isbar, n=k + 1))
            assert epochs[-1]["gs"] > G0 and (k == 0 or epochs[-1]["gr"] > epochs[-2]["gc"])
            assert k == 0 or epochs[-1]["gs"] > epochs[-2]["gs"]
        pub[t] = epochs[-1]["gc"]
    free_slots = {"K": [s for s in range(0, NK, 2) if not q0 <= s < q0 + 16],
                  "V": [s for s in range(NK, NSLOT, 2) if not q0 <= s < q0 + 16]}
    slot_of, dma_op = {}, {}
    tile_reads = {t: [] for t in tile_first}
    released = set()

    def slot_for(t):
        c = [s for s in free_slots[t[0]] if not (t[0] == "K" and t[1] >= 12 and s < 8)]
        if t[0] == "K" and 8 <= t[1] < 12:
            c.sort(key=lambda s: s >= 8)
        return c[0] if c else None

    def dma_pair(srd, vo, soff):
        gs = GV if srd == sV else GRAN
        return [Op(f"buffer_load_dwordx4 v{vo[i]}, s[{srd}:{srd + 3}], s{soff} offen{' offset:%d' % gs if i else ''} {ld} lds"
                   .replace("  ", " "), "vmem", rd=["m0", f"v{vo[i]}"]) for i in range(2)]

    def make_dma(t):
        sl = slot_for(t)
        free_slots[t[0]].remove(sl)
        slot_of[t] = sl
        srd, vo = (sK, vDK) if t[0] == "K" else (sV, vDV)
        pre = Op(f"s_add_u32 m0, s{sWV if t[0] == 'V' and a.pa else sWG}, {sl * TILE}", "salu", wr=["m0"])
        ops = dma_pair(srd, vo, sOFF + t[1])
        dma_op[t] = ops[1]
        return pre, ops

    nstamp = [0]
    stampreg = list(range(56, 64, 2)) + list(range(80, 88, 2)) + [4, 6, 8, 10, 0, 96, 98, 32, 100]

    def stamp(kind="m"):
        if a.stamps and (kind in a.stampat or kind == "x") and (nstamp[0] < 14 or kind == "x"):
            for k, ins in enumerate(("s_memrealtime", "s_memtime")):
                if a.stamps >> k & 1:
                    r = stampreg[nstamp[0]]
                    nstamp[0] += 1
                    e(f"{ins} s[{r}:{r + 1}]", "smem")

    def v(text, wr, rd=(), cls="valu"):
        return e(text, cls, rd=list(rd), wr=list(wr))

    def va(text):
        return v(text, [text.split()[1].rstrip(",")])

    BIAS = GRAN - 1024
    e("s_cmp_ge_u32 s2, 256")
    e("s_cbranch_scc1 L_end")
    if a.spin:
        e("s_memrealtime s[60:61]", "smem")
    e("s_load_dwordx8 s[4:11], s[0:1], 0", "smem")
    if a.stamps:
        e(f"s_load_dwordx2 s[{sWS}:{sWS + 1}], s[0:1], 40", "smem")
    if a.pfcode:
        e("s_getpc_b64 s[96:97]")
        E.label("L_pc")
        e("s_add_u32 s96, s96, L_main-L_pc")
        e("s_addc_u32 s97, s97, 0")
        e("s_mov_b32 s98, L_codeend-L_main")
        e("s_mov_b32 s99, 0x20000")
        e("s_lshr_b32 s95, s2, 3")
        e("s_lshl_b32 s95, s95, 10")
        va("v_lshlrev_b32 v16, 2, v0")
        e(f"buffer_load_dword v{UT}, v16, s[96:99], s95 offen", "vmem", rd=["v16"], wr=[f"v{UT}"])
    if a.remap:
        e(f"s_and_b32 s{sTMP}, s2, 7")
        e(f"s_lshl_b32 s{sTMP}, s{sTMP}, 5")
        e("s_lshr_b32 s2, s2, 3")
        e(f"s_or_b32 s2, s2, s{sTMP}")
    e(f"s_mov_b32 s{sMODE}, 0")
    E.label("L_start")
    va("v_lshrrev_b32 v12, 6, v0")
    va(f"v_and_b32 v{vLN}, 63, v0")
    v(f"v_readfirstlane_b32 s{sW}, v12", [f"s{sW}"], ["v12"])
    va(f"v_lshrrev_b32 v13, 4, v{vLN}")
    va("v_and_b32 v14, 2, v13")
    va(f"v_xor_b32 v14, v14, v{vLN}")
    va(f"v_lshl_add_u32 v{vDQ[0]}, v14, 4, {BIAS}")
    va(f"v_add_u32 v{vDQ[1]}, {(qS[2] - GRAN) & 0xffffffff}, v{vDQ[0]}")
    va(f"v_lshlrev_b32 v12, {lg(kvS[3])}, v12")
    if kvS[:2] != (256, 512):
        va("v_and_b32 v15, 1, v13")
        va(f"v_mul_u32_u24 v15, {kvS[0] - 256}, v15")
        va("v_add_u32 v12, v12, v15")
        va("v_lshrrev_b32 v15, 1, v13")
        va(f"v_mul_u32_u24 v15, {kvS[1] - 512}, v15")
        va("v_add_u32 v12, v12, v15")
    va(f"v_add_u32 v{vDK[0]}, v12, v{vDQ[0]}")
    va(f"v_add_u32 v{vDK[1]}, {(kvS[2] - GRAN) & 0xffffffff}, v{vDK[0]}")
    va("v_and_b32 v14, 1, v13")
    va(f"v_lshlrev_b32 v14, {3 if a.pa else 1}, v14")
    va(f"v_xor_b32 v14, v14, v{vLN}")
    va(f"v_lshl_add_u32 v14, v14, 4, {BIAS}")
    va(f"v_add_u32 v{vDV[0]}, v12, v14")
    va(f"v_add_u32 v{vDV[1]}, {(kvS[2] - GV) & 0xffffffff}, v{vDV[0]}")
    e(f"s_mul_i32 s{sWG}, s{sW}, {2 * GRAN}", rd=[f"s{sW}"])
    if a.pa:
        e(f"s_mul_i32 s{sWV}, s{sW}, {2 * GV}")
    e(f"s_mul_i32 s{sQW}, s{sW}, {4 * TILE}")
    e(f"s_add_u32 s{sQW}, s{sQW}, {q0 * TILE}")
    e(f"s_lshl_b32 s{sTMP}, s2, 2")
    e(f"s_add_u32 s{sTMP}, s{sTMP}, s{sW}")
    if a.qrot:
        e(f"s_lshr_b32 s{sX}, s{sTMP}, {a.qrot - 1}")
        e(f"s_and_b32 s{sX}, s{sX}, 3")
        e(f"s_lshl_b32 s{sX}, s{sX}, {lg(qS[4])}")
    else:
        e(f"s_mov_b32 s{sX}, 0")
    e(f"s_lshl_b32 s{sTMP}, s{sTMP}, 14")
    e(f"s_lshl_b32 s{sC}, s2, 17")
    e(f"s_sub_u32 s{sC}, s{sC}, {BIAS}")
    e(f"s_subb_u32 s{sTHR}, 0, 0")
    e(f"s_sub_u32 s{sT2}, s{sTMP}, {BIAS}")
    e(f"s_subb_u32 s{sT2 + 1}, 0, 0")
    for d, size in ((sK, 131072 + BIAS), (sV, 131072 + BIAS), (sQ, 16384 + BIAS), (sO, 16384)):
        e(f"s_mov_b32 s{d + 2}, {size}")
        e(f"s_mov_b32 s{d + 3}, 0x20000")

    def set_off(j):
        if a.rot and j:
            e(f"s_xor_b32 s{sOFF + j}, s{sOFF}, {j * kvS[4]}")
        elif a.rot:
            e(f"s_lshr_b32 s{sOFF}, s2, {a.rot - 1}")
            e(f"s_and_b32 s{sOFF}, s{sOFF}, {a.rotmask}")
            if a.rotrev:
                e(f"s_brev_b32 s{sOFF}, s{sOFF}")
                e(f"s_lshr_b32 s{sOFF}, s{sOFF}, {32 - a.rotrev}")
            e(f"s_lshl_b32 s{sOFF}, s{sOFF}, {lg(kvS[4])}")
        else:
            e(f"s_mov_b32 s{sOFF + j}, {j * kvS[4]}")

    def set_x(x, g):
        if x or g:
            e(f"s_xor_b32 s{sX + 4 * x + g}, s{sX}, {x * qS[4] + (g >> 1) * qS[3] + (g & 1) * qS[2]}")

    for j in range(a.prek):
        set_off(j)
    e("s_waitcnt lgkmcnt(0)", "wait")
    srd_todo = {sK: (6, sC, f"s{sTHR}"), sQ: (4, sT2, f"s{sT2 + 1}"), sV: (8, sC, f"s{sTHR}"), sO: (10, sTMP, "0")}

    def need_srd(d):
        if d in srd_todo:
            p, lo, hi = srd_todo.pop(d)
            e(f"s_add_u32 s{d}, s{p}, s{lo}")
            e(f"s_addc_u32 s{d + 1}, s{p + 1}, {hi}")

    stamp("x")
    npre = len(pre_tiles)
    di = npre + a.ninit
    items = [make_dma(t) for t in dma_order[:di]]
    items[npre:npre] = [(Op(f"s_add_u32 m0, s{sQW}, {x * TILE + 2 * g * GRAN}", "salu", wr=["m0"]),
                         dma_pair(sQ, vDQ, sX + 4 * x + 2 * g)) for x in range(4) for g in range(2)]
    vm0 = E.nvm
    depth = [[int(z) for z in d.split(",")] for d in (a.deven, a.dodd or a.deven)]
    issued, landed, npoint = [0, 0], [0, 0], [0]

    def clone(o):
        return Op(o.text, o.cls, rd=o.rd, wr=o.wr)

    def point(*steps):
        code = [[], []]
        for vv in range(2):
            def issue():
                pre, ops = items[issued[vv]]
                code[vv] += [clone(pre), Op("s_nop 0", "nop")] + [clone(o) for o in ops]
                ops[1].idx, ops[1].gap, ops[1].vmn = len(E.out), E.gap, vm0 + 2 * issued[vv] + 1
                issued[vv] += 1
            for kind, k in steps:
                if kind == "wait" and landed[vv] <= k:
                    while issued[vv] <= k:
                        issue()
                    code[vv].append(Op(f"s_waitcnt vmcnt({2 * (issued[vv] - k - 1)})", "wait"))
                    landed[vv] = k + 1
                while kind == "top" and issued[vv] < len(items) and issued[vv] - landed[vv] < (depth[vv] + [99])[k]:
                    issue()
        n = npoint[0]
        npoint[0] += 1
        same = [o.text for o in code[0]] == [o.text for o in code[1]]
        for vv in range(2):
            for o in code[vv]:
                o.tag = None if same else ("arm", n, vv)
        if same:
            seq = code[0]
        elif not code[0] or not code[1]:
            seq = ([Op(f"s_cbranch_{'vccnz' if code[0] else 'vccz'} L_j{n}", "salu")] + code[0] + code[1] +
                   [Op(f"L_j{n}:", "label")])
        else:
            seq = ([Op(f"s_cbranch_vccnz L_o{n}", "salu")] + code[0] + [Op(f"s_branch L_j{n}", "salu", tag=("arm", n, 0)),
                   Op(f"L_o{n}:", "label")] + code[1] + [Op(f"L_j{n}:", "label")])
        for o in seq:
            E.emit(o) if o.cls != "label" else E.out.append(o)
        E.nvm, E.vm_done = vm0 + 2 * max(issued), vm0 + 2 * min(landed)

    n0 = min(depth[0][0], depth[1][0])
    for k in range(n0):
        pre, ops = items[k]
        E.emit(pre)
        need_srd(int(re.search(r"s\[(\d+):", ops[0].text).group(1)))
        if npre <= k < npre + 8:
            set_x((k - npre) // 2, 2 * ((k - npre) % 2))
        for o in ops:
            E.emit(o)
    issued[:] = [n0, n0]
    for d in (sK, sQ, sV, sO):
        need_srd(d)
    for x in range(4):
        for g in range(0, 4, 2):
            if npre + 2 * x + g // 2 >= n0:
                set_x(x, g)
    if depth[0] != depth[1]:
        e(f"s_getreg_b32 s{sTMP}, hwreg(HW_REG_XCC_ID, 0, 1)")
        e(f"s_cmp_lg_u32 s{sTMP}, 0")
        e("s_cselect_b64 vcc, -1, 0")
    point(("top", 0))
    for j in range(a.prek, 16):
        set_off(j)
    for x in range(4):
        for g in (1, 3):
            if not a.half:
                set_x(x, g)
    e(f"s_mov_b32 s{sC}, {f32bits(math.log2(math.e) / math.sqrt(128.0)):#x}")
    e(f"s_mov_b32 s{sTHR}, {f32bits(2.0 ** 32):#x}")
    va(f"v_and_b32 v12, 3, v{vLN}")
    va(f"v_bfe_u32 v13, v{vLN}, 2, 2")
    va(f"v_lshrrev_b32 v14, 4, v{vLN}")
    va(f"v_mul_u32_u24 v{vK}, {GRAN}, v12")
    va(f"v_lshl_add_u32 v{vK}, v13, 8, v{vK}")
    va("v_and_b32 v15, 2, v13")
    va("v_xor_b32 v15, v15, v14")
    va(f"v_lshl_add_u32 v{vK}, v15, 4, v{vK}")
    va(f"v_add_u32 v{vQA}, s{sQW}, v{vK}")
    va(f"v_mul_u32_u24 v{vV[0]}, {GV}, v13")
    va(f"v_lshl_add_u32 v{vV[0]}, v14, 8, v{vV[0]}")
    if a.pa:
        va("v_and_b32 v15, 1, v12")
        va(f"v_lshl_add_u32 v{vV[0]}, v15, 3, v{vV[0]}")
        va("v_lshrrev_b32 v15, 1, v12")
        va(f"v_lshl_add_u32 v{vV[0]}, v15, 6, v{vV[0]}")
    else:
        va(f"v_lshl_add_u32 v{vV[0]}, v12, 3, v{vV[0]}")
    va("v_and_b32 v15, 1, v14")
    va(f"v_lshl_add_u32 v{vV[0]}, v15, {7 if a.pa else 5}, v{vV[0]}")
    va(f"v_xor_b32 v{vV[1]}, {128 if a.pa else 32}, v{vV[0]}")
    va(f"v_add_u32 v{vV[2]}, {vwin[1] * TILE}, v{vV[0]}")
    va(f"v_add_u32 v{vV[3]}, {vwin[1] * TILE}, v{vV[1]}")
    va(f"v_add_u32 v{vV[0]}, {vwin[0] * TILE}, v{vV[0]}")
    va(f"v_add_u32 v{vV[1]}, {vwin[0] * TILE}, v{vV[1]}")
    e(f"s_mul_i32 s{sTMP}, s{sW}, {2 * TILE}")
    vLW, vLR, vOR1 = 12, 13, 14
    if a.pa:
        va(f"v_lshlrev_b32 v{vOR}, 8, v14")
        va(f"v_lshl_add_u32 v{vOR}, v12, 6, v{vOR}")
        va(f"v_lshl_add_u32 v{vOR}, v13, 3, v{vOR}")
        va(f"v_lshl_add_u32 v{vOR}, v15, 5, v{vOR}")
        va(f"v_add_u32 v{vOR}, s{sTMP}, v{vOR}")
        va(f"v_lshrrev_b32 v12, 5, v{vLN}")
        va("v_lshlrev_b32 v13, 2, v12")
        va(f"v_xor_b32 v13, v13, v{vLN}")
        va(f"v_lshl_add_u32 v{vOW}, v13, 3, s{sTMP}")
        va(f"v_and_b32 v13, 7, v{vLN}")
        va("v_lshlrev_b32 v13, 4, v13")
        va(f"v_lshl_add_u32 v{vOG}, v12, {lg(qS[2])}, v13")
        va(f"v_bfe_u32 v13, v{vLN}, 3, 2")
        va(f"v_lshl_add_u32 v{vOG}, v13, 8, v{vOG}")
        e(f"s_lshl_b32 s{sTMP}, s{sW}, 8")
        e(f"s_add_u32 s{sTMP}, s{sTMP}, {SYNC_OFF}")
        va(f"v_lshl_add_u32 v{vLW}, v{vLN}, 2, s{sTMP}")
        va(f"v_lshl_add_u32 v{vLR}, v14, 4, s{sTMP}")
        va(f"v_xor_b32 v{vOR1}, 32, v{vOR}")
    else:
        va(f"v_and_b32 v15, 15, v{vLN}")
        va(f"v_mul_u32_u24 v{vOW}, 272, v15")
        va(f"v_lshl_add_u32 v{vOW}, v14, 3, v{vOW}")
        va(f"v_add_u32 v{vOW}, s{sTMP}, v{vOW}")
    if a.pa:
        pass
    elif a.half:
        va(f"v_bfe_u32 v13, v{vLN}, 3, 2")
        va("v_lshrrev_b32 v15, 1, v13")
        va("v_xor_b32 v15, v15, v13")
        va("v_and_b32 v15, 1, v15")
        va("v_lshlrev_b32 v15, 2, v15")
        va(f"v_xor_b32 v15, v15, v{vLN}")
        va("v_and_b32 v15, 7, v15")
        va("v_lshlrev_b32 v15, 4, v15")
        va(f"v_lshl_add_u32 v{vOG}, v13, 8, v15")
        va(f"v_mul_u32_u24 v{vOR}, {GRAN}, v13")
        va(f"v_add3_u32 v{vOR}, v{vOR}, v15, s{sTMP}")
        va(f"v_lshrrev_b32 v13, 5, v{vLN}")
        va(f"v_lshl_add_u32 v{vOG}, v13, {lg(qS[2])}, v{vOG}")
        va("v_mul_u32_u24 v13, 272, v13")
        va(f"v_add_u32 v{vOR}, v{vOR}, v13")
    else:
        va("v_lshlrev_b32 v13, 2, v14")
        va("v_sub_u32 v15, v15, v13")
        va("v_and_b32 v15, 15, v15")
        va("v_lshlrev_b32 v15, 4, v15")
        va(f"v_lshl_add_u32 v{vOG}, v14, 8, v15")
        va(f"v_mul_u32_u24 v{vOR}, {GRAN}, v14")
        va(f"v_add3_u32 v{vOR}, v{vOR}, v15, s{sTMP}")
    va("v_mov_b32 v15, 0x3f803f80")
    for i in range(4):
        v(f"v_accvgpr_write_b32 a{aONE + i}, v15", [f"a{aONE + i}"], ["v15"])
    for x in range(4):
        va(f"v_mov_b32 v{NM[x]}, 0xff800000")
    for x in addx:
        va(f"v_mov_b32 v{Lreg[x]}, 0")
    if flag:
        e(f"s_lshl_b32 s{sTMP}, s{sW}, 8")
        e(f"s_add_u32 s{sTMP}, s{sTMP}, {SYNC_OFF}")
        va(f"v_lshlrev_b32 v{vFE}, 2, v{vLN}")
        va(f"v_lshl_add_u32 v{vFR}, v12, 8, v{vFE}")
        va(f"v_add_u32 v{vFR}, {SYNC_OFF}, v{vFR}")
        va(f"v_add_u32 v{vFW}, s{sTMP}, v{vFE}")
        va(f"v_mov_b32 v{vFE}, 0")
        e(f"ds_write_b32 v{vFW}, v{vFE}", "ldsw", rd=[f"v{vFW}", f"v{vFE}"])
        E.lds_drain()
    if a.pads:
        e("s_mov_b64 exec, 0")
        for w in range(3):
            e(f"s_cmp_eq_u32 s{sW}, {w}")
            e(f"s_cbranch_scc1 L_pad{w}")
        e("s_branch L_pad3")
        E.out.append(Op(".p2align 12", "label"))
    E.label("L_main")
    if a.pads:
        e("s_mov_b64 exec, -1")

    def finalize_read(op):
        if op.text is not None:
            return
        if op.tag[0] == "K":
            _, j, s = op.tag
            off = (slot_of["K", j // 2] + j % 2) * TILE + 64 * s
            assert off < 65536
            op.text = f"ds_read_b128 {rr('a', Freg['K', j, s], 4)}, v{vK} offset:{off}"
        else:
            _, kap, b, tau = op.tag
            sl = slot_of["V", kap]
            w = 0 if sl < vwin[1] else 1
            off = (sl - vwin[w]) * TILE + tau * 4 * GV + (16 * (b & 3) if a.pa else 64 * (b >> 1))
            assert off < 65536
            av = vV[2 * w + (b >> 2 if a.pa else b & 1)]
            op.rd = [f"v{av}"]
            op.text = f"ds_read_b64_tr_b16 {rr('a', Freg['V', kap, b] + 2 * tau, 2)}, v{av} offset:{off}"

    kr = {(j, s): Op(None, "ldsr", rd=[f"v{vK}"], wr=regs("a", Freg["K", j, s], 4), tag=("K", j, s))
          for j in range(32) for s in range(4)}
    vr = {(kap, b, t): Op(None, "ldsr", wr=regs("a", Freg["V", kap, b] + 2 * t, 2), tag=("V", kap, b, t))
          for kap in range(16) for b in range(8) for t in range(2)}
    for (j, s), op in kr.items():
        tile_reads["K", j // 2].append(op)
    for (kap, b, t), op in vr.items():
        tile_reads["V", kap].append(op)

    point(*[st_ for k in range(npre) for st_ in (("wait", k), ("top", 1))])
    e("s_barrier", "barrier")
    for t in pre_tiles:
        for op in tile_reads[t]:
            finalize_read(op)
            E.emit(op)
    e(f"s_cmp_lg_u32 s{sMODE}, 0")
    e("s_cbranch_scc1 L_maxpass")
    E.label("L_maxdone")

    def q_scale(x, s):
        for i in range(4):
            src, t = QT + 4 * s + i, UT + 2 * i
            v(f"v_lshlrev_b32 v{t}, 16, v{src}", [f"v{t}"], [f"v{src}"])
            v(f"v_and_b32 v{t + 1}, 0xffff0000, v{src}", [f"v{t + 1}"], [f"v{src}"])
        for i in range(4):
            t = UT + 2 * i
            v(f"v_pk_mul_f32 {rr('v', t, 2)}, {rr('v', t, 2)}, s[{sC}:{sC + 1}] op_sel_hi:[1,0]", regs("v", t, 2),
              regs("v", t, 2))
        for i in range(4):
            v(f"v_cvt_pk_bf16_f32 v{UT + 2 * i}, v{UT + 2 * i}, v{UT + 2 * i + 1}", [f"v{UT + 2 * i}"],
              [f"v{UT + 2 * i}", f"v{UT + 2 * i + 1}"])
        for i in range(4):
            v(f"v_accvgpr_write_b32 a{Qreg[x][s] + i}, v{UT + 2 * i}", [f"a{Qreg[x][s] + i}"], [f"v{UT + 2 * i}"])

    def q_prepare(x):
        k = npre + 2 * x
        point(*([("wait", k), ("top", 1)] if x == 0 or a.halftop else []), ("wait", k + 1))
        stamp("q")
        rds = [e(f"ds_read_b128 {rr('v', QT + 4 * s, 4)}, v{vQA} offset:{x * TILE + 64 * s}", "ldsr",
                 rd=[f"v{vQA}"], wr=regs("v", QT + 4 * s, 4)) for s in range(4)]
        point(("top", 1))
        for s in range(4):
            E.lds_wait([rds[s]])
            q_scale(x, s)
        point(("top", 2 if x < 3 else 3))

    def first_max_ops(x):
        n = NM[x]
        ops = []

        def add(text, wr, rd, dist=0, deps=()):
            ops.append(Op(text, "valu", rd=rd, wr=wr, deps=([(ops[-1], dist)] if ops else []) + list(deps)))

        for j in range(a.nmax):
            S = Sreg[uidx[j, x] % a.ns]
            for r in (S, S + 2):
                add(f"v_max3_f32 v{n}, v{r}, v{r + 1}, v{n}", [f"v{n}"], [f"v{r}", f"v{r + 1}", f"v{n}"],
                    deps=[(mf[last_use["S", j, x]], 8)])
        for sw in ("v_permlane32_swap_b32", "v_permlane16_swap_b32"):
            add(f"v_mov_b32 v{n + 1}, v{n}", [f"v{n + 1}"], [f"v{n}"])
            add(f"{sw} v{n + 1}, v{n}", [f"v{n}", f"v{n + 1}"], [f"v{n}", f"v{n + 1}"], 2)
            add(f"v_max_f32 v{n}, v{n}, v{n + 1}", [f"v{n}"], [f"v{n}", f"v{n + 1}"])
        for i in (1, 2, 3, 0):
            add(f"v_mul_f32 v{n + i}, -1.0, v{n}", [f"v{n + i}"], [f"v{n}"])
        return ops

    F = []
    ladds = {x: [] for x in range(4)}
    nmdone = {}
    for u, (j, x) in enumerate(qk_units):
        S = Sreg[u % a.ns]
        prod = mf[last_use["S", j, x]]
        sdead = first_use[("S",) + qk_units[u + a.ns]] - 1 if u + a.ns < 128 else 10 ** 9
        kap = j // 2
        pdead = max(min(sdead, first_use["P", kap, x] - 2), last_use["S", j, x])
        assert pdead < first_use["P", kap, x]
        if j == 0:
            mops = first_max_ops(x)
            for k, o in enumerate(mops):
                o.dead = max(min(pdead, first_use["S", a.nc0, x] - 2), last_use["S", a.nmax - 1, x])
                assert o.dead < first_use["S", a.nc0, x]
                o.prio = (-1, u, k)
            nmdone[x] = mops[-4]
            F += mops
        ex = []
        for i in range(4):
            op = Op(f"v_exp_f32 v{S + i}, v{S + i}", "trans", rd=[f"v{S + i}"], wr=[f"v{S + i}"],
                    deps=[(prod, 8)], dead=pdead)
            op.prio = (pdead - 4 + i, u, 3 * i)
            if j < a.nc0:
                n = NM[x] + 1
                sub = Op(f"v_add_f32 v{S + i}, v{S + i}, v{n}", "valu", rd=[f"v{S + i}", f"v{n}"], wr=[f"v{S + i}"],
                         deps=[(nmdone[x], 0), (prod, 8)], dead=pdead)
                sub.prio = (pdead - 5 + i, u, 3 * i)
                F.append(sub)
                op.deps.append((sub, 0))
            ex.append(op)
            F.append(op)
            if x in addx:
                ad = Op(f"v_add_f32 v{Lreg[x]}, v{Lreg[x]}, v{S + i}", "valu", rd=[f"v{S + i}", f"v{Lreg[x]}"],
                        wr=[f"v{Lreg[x]}"], deps=[(op, 1)], dead=min(sdead, pdead + 8))
                ad.prio = (pdead - 4 + i, u, 3 * i + 2)
                F.append(ad)
                ladds[x].append(ad)
            if i % 2:
                P = Preg[kap, x] + 2 * (j % 2) + i // 2
                cv = Op(f"v_cvt_pk_bf16_f32 v{P}, v{S + i - 1}, v{S + i}", "valu",
                        rd=[f"v{S + i - 1}", f"v{S + i}"], wr=[f"v{P}"], deps=[(ex[i - 1], 1), (op, 1)],
                        early=Pfree[kap, x], dead=pdead)
                assert Pfree[kap, x] <= pdead, ("P pool too small", kap, x)
                cv.prio = (pdead - 4 + i, u, 3 * i + 1)
                F.append(cv)
    lastsm = F[-12 * a.ns:]
    for key, op in [(("K",) + k, o) for k, o in kr.items()] + [(("V",) + k[:2], o) for k, o in vr.items()]:
        fu = first_use[key]
        mf[fu].needs.append(op)
        if op.idx is None:
            op.early = max(Ffree[key], pub[key[0], key[1] // 2 if key[0] == "K" else key[1]],
                           fu - (a.fhoist if a.fhoist and key[0] == "V" and key[1] >= gstart[G - 1] // 2 else a.hoist))
            op.dead = max(fu - a.lat, op.early)
            assert op.dead < fu
            op.prio = (op.dead - a.rdbias, -1, fu)
            F.append(op)

    tq = Sreg + NM
    tfree = {b: None for b in tq}
    tdead = max(last_use["S", 31, x] for x in range(4))
    lastsync = epochs[-1]["gc"] + 1
    epi_order = list(dict.fromkeys(int(c) for c in a.final if c.isdigit()))
    seqn = [0]
    mfpos = {o: i for i, o in enumerate(mf)}
    stage_w, stage_r, mulpair = [], {}, {}

    def epi(text, cls, **kw):
        op = Op(text, cls, **kw)
        seqn[0] += 1
        op.prio = (10 ** 8, seqn[0], 0)
        if a.eprio:
            src = [mfpos[d] for d, _ in op.deps if d in mfpos] + [d.prio[0] - a.eprio for d, _ in op.deps if d not in mfpos]
            op.prio = (max(src) + a.eprio, seqn[0], 0)
        F.append(op)
        return op

    rcp, wrs_of = {}, {x: [] for x in range(4)}

    def recip(x):
        rl, L = vRL[x], Lreg[x]
        if x in ones_x:
            prev = epi(f"v_accvgpr_read_b32 v{rl}, a{L}", "valu", rd=[f"a{L}"], wr=[f"v{rl}"],
                       deps=[(mf[last_use["L", x]], 8)], early=lastsync)
            L = rl
        else:
            prev = None
            for sw in ("v_permlane32_swap_b32", "v_permlane16_swap_b32"):
                m1 = epi(f"v_mov_b32 v{rl}, v{L}", "valu", rd=[f"v{L}"], wr=[f"v{rl}"], early=lastsync,
                         deps=[(prev, 0)] if prev else [(o, 0) for o in ladds[x][-16:]])
                m2 = epi(f"{sw} v{rl}, v{L}", "valu", rd=[f"v{L}", f"v{rl}"], wr=[f"v{L}", f"v{rl}"], deps=[(m1, 2)])
                prev = epi(f"v_add_f32 v{L}, v{L}, v{rl}", "valu", rd=[f"v{L}", f"v{rl}"], wr=[f"v{L}"], deps=[(m2, 0)])
        cm = epi(f"v_cmp_nge_f32 s[{sBAD + 2 * x}:{sBAD + 2 * x + 1}], s{sTHR}, v{L}", "valu", rd=[f"v{L}"],
                 wr=[f"s{sBAD + 2 * x}"], deps=[(prev, 0)])
        rcp[x] = epi(f"v_rcp_f32 v{rl}, v{L}", "trans", rd=[f"v{L}"], wr=[f"v{rl}"], deps=[(cm, 0)])

    def epi_rows(x, h):
        n, (p, ob) = NM[x], Oreg[x]
        if x not in rcp:
            r0 = epi(f"v_accvgpr_read_b32 v{n}, a{Lreg[x]}", "valu", rd=[f"a{Lreg[x]}"], wr=[f"v{n}"],
                     deps=[(mf[last_use["L", x]], 8)])
            cm = epi(f"v_cmp_nge_f32 s[{sBAD + 2 * x}:{sBAD + 2 * x + 1}], s{sTHR}, v{n}", "valu", rd=[f"v{n}"],
                     wr=[f"s{sBAD + 2 * x}"], deps=[(r0, 0)])
            rc = epi(f"v_rcp_f32 v{n}, v{n}", "trans", rd=[f"v{n}"], wr=[f"v{n}"], deps=[(cm, 0)])
            lw = epi(f"ds_write_b32 v{vLW}, v{n}", "ldsw", rd=[f"v{vLW}", f"v{n}"],
                     deps=[(rc, 1)] + [(o, 0) for o in rcp.values()])
            lw.cost = 8
            rcp[x] = epi(f"ds_read_b128 {rr('v', n, 4)}, v{vLR}", "ldsr", rd=[f"v{vLR}"], wr=regs("v", n, 4),
                         deps=[(lw, 0)])
        xi = epi_order.index(x)
        so, region = (xi % 2) * TILE + 2048 * h, (xi % 2, h)
        X, mu = [], []
        for b in range(4 * h, 4 * h + 4):
            prod, o = mf[last_use["O", x, b]], ob + 4 * b
            if p == "a":
                t, rel = spare.pop(0)
                src = [[(epi(f"v_accvgpr_read_b32 v{t + i}, a{o + i}", "valu", rd=[f"a{o + i}"], wr=[f"v{t + i}"],
                             deps=[(prod, 8)], early=rel), 0)] for i in range(4)]
            else:
                t, src = o, [[(prod, 8)]] * 4
            X.append(t)
            mu.append([epi(f"v_mul_f32 v{t + i}, v{n + i}, v{t + i}", "valu", rd=[f"v{n + i}", f"v{t + i}"],
                           wr=[f"v{t + i}"], deps=src[i] + [(rcp[x], a.stdist)], needs=[rcp[x]]) for i in range(4)])
            for i in (0, 2):
                mulpair[mu[-1][i]] = (mu[-1][i + 1],
                                      f"v_pk_mul_f32 {rr('v', t + i, 2)}, {rr('v', t + i, 2)}, {rr('v', n + i, 2)}")
            if b % 2 == 0:
                continue
            k = b % 4 - 1
            if k == 0:
                cv = {}
            for i in range(4):
                d = X[i % 2] + (i & 2) + k // 2
                after = [cv[0, i - 1]] if k == 0 and i % 2 else [cv[0, i | 1]] if k else []
                cv[k, i] = epi(f"v_cvt_pk_bf16_f32 v{d}, v{X[k] + i}, v{X[k + 1] + i}", "valu",
                               rd=[f"v{X[k] + i}", f"v{X[k + 1] + i}"], wr=[f"v{d}"],
                               deps=[(mu[k][i], 0), (mu[k + 1][i], 0)] + [(o, 0) for o in after])
        wrs = []
        for i in range(4):
            d = X[i % 2] + (i & 2)
            wrs.append(epi(f"ds_write_b64 v{vOW}, {rr('v', d, 2)} offset:{so + 512 * i}", "ldsw",
                           rd=[f"v{vOW}"] + regs("v", d, 2), early=10 ** 9,
                           deps=[(cv[0, i], 0), (cv[2, i], 0)] + [(r, 0) for r in stage_r.get(region, [])]))
        stage_w.extend(wrs)
        stage_r[region] = []
        for m in range(2):
            d = X[2 + m]
            rds = [epi(f"ds_read_b64_tr_b16 {rr('v', d + 2 * t, 2)}, v{(vOR, vOR1)[t]} offset:{so + 1024 * m}", "ldsr",
                       rd=[f"v{(vOR, vOR1)[t]}"], wr=regs("v", d + 2 * t, 2),
                       deps=[(w, 0) for w in wrs[2 * m:2 * m + 2]] + [(cv[2, i], 0) for i in range(4)])
                   for t in range(2)]
            stage_r[region] += rds
        for m in range(2):
            rds = stage_r[region][2 * m:2 * m + 2]
            off = f" offset:{128 * h}" if h else ""
            epi(f"buffer_store_dwordx4 {rr('v', X[2 + m], 4)}, v{vOG}, s[{sO}:{sO + 3}], s{sX + 4 * x + 2 * m} offen{off} {st}"
                .rstrip(), "vmem", rd=regs("v", X[2 + m], 4) + [f"v{vOG}"], deps=[(r, a.stdist) for r in rds], needs=rds)

    spare = sorted(ppool.rel.items(), key=lambda kv: kv[1])
    for x, bs in [(x, bs) for xs, bs in final_parts for x in xs]:
        if a.pa:
            for h in sorted({b // 4 for b in bs}):
                epi_rows(x, h)
            continue
        assert a.half or len(bs) == 8
        if x not in rcp:
            recip(x)
        xi = epi_order.index(x)
        rl, rc, wrs = vRL[x], rcp[x], wrs_of[x]
        p, ob = Oreg[x]
        so = (xi % 2) * TILE
        for b in bs:
            region = (xi % 2, b // 4 if a.half else 0)
            prod = mf[last_use["O", x, b]]
            o = ob + 4 * b
            if p == "a":
                t = tq.pop(0)
                tq.append(t)
                dep0 = [(d, 0) for d in (tfree[t] or lastsm)]
                src4 = [[(epi(f"v_accvgpr_read_b32 v{t + i}, a{o + i}", "valu", rd=[f"a{o + i}"], wr=[f"v{t + i}"],
                              deps=[(prod, 8)] + dep0, early=tdead + 1), 0)] for i in range(4)]
            else:
                t = o
                src4 = [[(prod, 8)] for i in range(4)]
            mu = [epi(f"v_mul_f32 v{t + i}, v{rl}, v{t + i}", "valu", rd=[f"v{rl}", f"v{t + i}"], wr=[f"v{t + i}"],
                      deps=src4[i] + [(rc, 1)]) for i in range(4)]
            for i in (0, 2):
                sel = "op_sel:[0,1] op_sel_hi:[1,1]" if rl % 2 else "op_sel_hi:[1,0]"
                mulpair[mu[i]] = (mu[i + 1], f"v_pk_mul_f32 {rr('v', t + i, 2)}, {rr('v', t + i, 2)}, "
                                             f"{rr('v', rl & ~1, 2)} {sel}")
            c0 = epi(f"v_cvt_pk_bf16_f32 v{t}, v{t}, v{t + 1}", "valu", rd=[f"v{t}", f"v{t + 1}"], wr=[f"v{t}"],
                     deps=[(mu[0], 0), (mu[1], 0)])
            c1 = epi(f"v_cvt_pk_bf16_f32 v{t + 1}, v{t + 2}, v{t + 3}", "valu", rd=[f"v{t + 2}", f"v{t + 3}"],
                     wr=[f"v{t + 1}"], deps=[(mu[2], 0), (mu[3], 0), (c0, 0)])
            w = epi(f"ds_write_b64 v{vOW}, {rr('v', t, 2)} offset:{so + 32 * b}", "ldsw",
                    rd=[f"v{vOW}", f"v{t}", f"v{t + 1}"], early=10 ** 9,
                    deps=[(c0, 0), (c1, 0)] + [(r, 0) for r in stage_r.get(region, [])])
            wrs.append(w)
            stage_w.append(w)
            if p == "a":
                tfree[t] = [w]
            if b % (4 if a.half else 8) != (3 if a.half else 7):
                continue
            if a.half:
                h = b // 4
                pieces = [(ob + 16 * h + 4 * n, so + 544 * n + 128 * h, 2 * n, 128 * h) for n in range(2)]
            else:
                pieces = [(ob + 4 * i, so + 272 * i, i, 0) for i in range(4)]
            rds = [epi(f"ds_read_b128 {rr(p, r, 4)}, v{vOR} offset:{lo}", "ldsr", rd=[f"v{vOR}"], wr=regs(p, r, 4),
                       deps=[(w, 0) for w in wrs]) for r, lo, _, _ in pieces]
            stage_r[region] = rds
            for rd_, (r, _, gi, go) in zip(rds, pieces):
                if str(x) in a.dbgnost:
                    continue
                stx = (st.split("/") * 4)[xi]
                off = f" offset:{go}" if go else ""
                epi(f"buffer_store_dwordx4 {rr(p, r, 4)}, v{vOG}, s[{sO}:{sO + 3}], s{sX + 4 * x + gi} offen{off} {stx}".rstrip(),
                    "vmem", rd=regs(p, r, 4) + [f"v{vOG}"], deps=[(rd_, a.stdist)], needs=[rd_])

    pending = sorted(F, key=lambda o: o.prio)
    overflow = 0
    leads = []

    def ready(op, strict=True):
        if op.early > E.gap:
            return False
        for d, dist in op.deps:
            if d.idx is None or (strict and E.nst - d.st < dist):
                return False
        return True

    def put(op):
        if op.cls == "ldsr":
            finalize_read(op)
        if op.needs:
            E.lds_wait(op.needs)
        E.emit(op)
        pending.remove(op)

    def closure(op, acc):
        assert op.early <= E.gap, ("cannot meet deadline", op.text, op.tag, op.early, E.gap)
        for d, _ in op.deps:
            if d.idx is None and d not in acc:
                assert d.cls != "mfma", ("deadline before producer", op.text, E.gap)
                closure(d, acc)
        if op not in acc:
            acc.append(op)

    def drain(merge_mul=False):
        while True:
            cand = [o for o in pending if ready(o)] or [o for o in pending if ready(o, False)]
            if not cand:
                return
            o = cand[0]
            if merge_mul and o in mulpair and mulpair[o][0].idx is None and ready(mulpair[o][0], False):
                o2, o.text = mulpair[o]
                o.rd += o2.rd
                o.wr += o2.wr
                put(o)
                o2.idx, o2.st = o.idx, o.st
                pending.remove(o2)
            else:
                put(o)

    def signal(ep):
        for t in ep["tiles"]:
            assert t in dma_op and dma_op[t].idx is not None, ("tile not issued before its epoch", t, ep)
            leads.append(E.gap - dma_op[t].gap)
        stamp("b")
        if ep["n"] >= len(epochs) - 2:
            stamp("e")
        E.vm_wait([dma_op[t] for t in ep["tiles"]])
        stamp("w")
        ep["rel"] = [t for t, rs in tile_reads.items() if t not in released and t in slot_of and
                     all(r.idx is not None and (not ep["bar"] or r.ldsn < E.lds_done) for r in rs)]
        released.update(ep["rel"])

    def passed(ep):
        if ep["n"] == 1:
            for s in range(q0, q0 + 16, 2):
                free_slots["K" if s < NK else "V"].append(s)
        for t in ep["rel"]:
            free_slots[t[0]].append(slot_of[t])
        if ("K", 11) in slot_of and all(s in free_slots["K"] for s in range(0, 8, 2)):
            for w in stage_w:
                w.early = min(w.early, E.gap)

    dper = [int(x.split("x")[0]) for x in a.dmaper.split(",") for _ in range(int((x + "x1").split("x")[1]))]
    next_dma_gap = G0 + a.dma0
    staged = None
    for g in range(-1, NMF):
        E.gap = g
        if g >= 0:
            E.emit(mf[g])
        if g in qgap:
            drain()
            q_prepare(qgap[g])
            if g == G0:
                stamp()
            E.lds_wait(mf[g + 1].needs)
            continue
        shadow = True
        budget = 8 if g < tdead + a.fstart else (a.fbudget * (g + 1) // 4 - a.fbudget * g // 4) * 4
        budget0 = budget
        fixed_mem, fixed_valu = [], []
        for ep in epochs:
            if ep["bar"]:
                if g == ep["gc"]:
                    signal(ep)
                    e("s_barrier", "barrier")
                    stamp("b")
                    if ep["n"] >= len(epochs) - 2:
                        stamp("e")
                    passed(ep)
                    shadow = False
                continue
            if g == ep["gs"] - 1:
                fixed_valu.append(Op(f"v_mov_b32 v{vFE}, {ep['n']}", "valu", wr=[f"v{vFE}"]))
            if g == ep["gs"]:
                signal(ep)
                shadow = False
                E.emit(Op(f"ds_write_b32 v{vFW}, v{vFE}", "ldsw", rd=[f"v{vFW}", f"v{vFE}"]))
                budget -= 8
            if g == ep["gr"]:
                ep["rd"] = Op(f"ds_read_b32 v{vFT}, v{vFR}", "ldsr", rd=[f"v{vFR}"], wr=[f"v{vFT}"])
                fixed_mem.append(ep["rd"])
            if g == ep["gc"] - 1:
                if E.lds_wait([ep["rd"]], a.lat):
                    shadow = False
                fixed_valu.append(Op(f"v_cmp_gt_u32 vcc, {ep['n']}, v{vFT}", "valu", rd=[f"v{vFT}"], wr=["vcc"]))
            if g == ep["gc"]:
                e(f"s_cbranch_vccnz L_spin{ep['n']}")
                E.label(f"L_ok{ep['n']}")
                passed(ep)
                shadow = False
        if a.stamps and g in [first_use["S", gs, 0] for gs in (4, 8, 12, 16, 20, 24, 28)] + [tdead]:
            stamp()
        if g >= NMF - 145 and (NMF - 1 - g) % 36 == 0:
            stamp("e")
        if g > G0 and (g - G0) % a.stampper == 1:
            stamp("p")
        if g + 1 < NMF and mf[g + 1].needs and all(n.idx is not None for n in mf[g + 1].needs):
            if E.lds_wait(mf[g + 1].needs, a.lat):
                shadow = False
        quiet = not any(not ep["bar"] and g + 1 in (ep["gs"] - 1, ep["gs"], ep["gr"], ep["gc"] - 1) for ep in epochs)
        if staged is not None:
            for o in staged:
                E.emit(o)
            staged = None
            budget -= a.dmacost
        elif shadow and quiet and di < len(dma_order) and g >= next_dma_gap and slot_for(dma_order[di]) is not None:
            pre, staged = make_dma(dma_order[di])
            di += 1
            E.emit(pre)
            next_dma_gap = max(next_dma_gap, g - 4) + dper[0]
            if len(dper) > 1:
                dper.pop(0)
        budget -= 4 * (len(fixed_mem) + len(fixed_valu))
        full = budget >= 8
        picks = []
        for o in pending:
            if o.dead <= g:
                closure(o, picks)
        budget -= sum(o.cost for o in picks)
        cand = [o for o in pending[:400] if o not in picks and ready(o)]
        if full and not picks and cand:
            first = cand[0]
            small = [o for o in cand if o.cost == 4]
            tr = [o for o in cand if o.cls == "trans"]
            if first.cost == 4 and len(small) < 2 and tr:
                first = tr[0]
            picks.append(first)
            budget -= first.cost
        for o in cand:
            if o not in picks and o.cost <= budget:
                picks.append(o)
                budget -= o.cost
        mem = [o for o in picks if o.cls in ("ldsr", "ldsw", "vmem") and all(d.idx is not None for d, _ in o.deps)]
        rest = [o for o in picks if o not in mem]
        for o in fixed_mem:
            E.emit(o)
        for o in mem:
            put(o)
        for o in fixed_valu:
            E.emit(o)
        while rest:
            o = ([o for o in rest if ready(o)] or [o for o in rest if ready(o, False)])[0]
            put(o)
            rest.remove(o)
        while budget > 0:
            more = [o for o in pending[:400] if o.cls == "valu" and ready(o)]
            if not more:
                break
            put(more[0])
            budget -= 4
        if full and not picks and budget >= 8 and any(ready(o, False) for o in pending[:400]):
            e("s_nop 1", "nop")
        if a.dbgnop:
            n0, n1, ev, ln = [int(x) for x in a.dbgnop.split(",")]
            if n0 <= g < n1 and g % ev == 0:
                e(f"s_nop {ln}", "nop")
        if g > G0:
            overflow += max(0, budget0 - budget - 8)
        if g + 1 < NMF and mf[g + 1].needs:
            E.lds_wait(mf[g + 1].needs)
    assert staged is None and di == len(dma_order) and issued == [len(items)] * 2
    stamp()
    ntail = len(pending)
    n0 = len(E.out)
    drain(a.pk)
    overflow += sum(o.cost for o in E.out[n0:])
    assert not pending
    stamp("x")

    e(f"s_or_b64 s[{sBAD}:{sBAD + 1}], s[{sBAD}:{sBAD + 1}], s[{sBAD + 2}:{sBAD + 3}]")
    e(f"s_or_b64 s[{sBAD + 4}:{sBAD + 5}], s[{sBAD + 4}:{sBAD + 5}], s[{sBAD + 6}:{sBAD + 7}]")
    e(f"s_or_b64 s[{sBAD}:{sBAD + 1}], s[{sBAD}:{sBAD + 1}], s[{sBAD + 4}:{sBAD + 5}]")
    e(f"s_cselect_b32 s{sTMP}, 1, 0")
    e(f"s_lshl_b32 s{sC}, s{sW}, 2")
    e(f"s_add_u32 s{sC}, s{sC}, {FLAG_OFF}")
    va(f"v_mov_b32 v12, s{sC}")
    va(f"v_mov_b32 v13, s{sTMP}")
    va(f"v_mov_b32 v14, {FLAG_OFF}")
    e("ds_write_b32 v12, v13", "ldsw", rd=["v12", "v13"])
    E.lds_drain()
    e("s_barrier", "barrier")
    e("ds_read_b128 v[16:19], v14", "ldsr", rd=["v14"], wr=regs("v", 16, 4))
    E.lds_drain()
    v("v_or3_b32 v16, v16, v17, v18", ["v16"], regs("v", 16, 3))
    v("v_or_b32 v16, v16, v19", ["v16"], ["v16", "v19"])
    v(f"v_readfirstlane_b32 s{sTMP}, v16", [f"s{sTMP}"], ["v16"])
    e(f"s_andn2_b32 s{sTMP}, s{sTMP}, s{sMODE}", rd=[f"s{sTMP}"])
    e("s_cbranch_scc1 L_rerun")
    if a.stamps:
        e("s_waitcnt vmcnt(0)", "wait")
        stamp("x")
        E.lds_drain()
        e(f"s_mov_b32 s{sWS + 2}, 1048576")
        e(f"s_mov_b32 s{sWS + 3}, 0x20000")
        e(f"s_lshl_b32 s{sTMP}, s2, 2")
        e(f"s_add_u32 s{sTMP}, s{sTMP}, s{sW}")
        e(f"s_mul_i32 s{sTMP}, s{sTMP}, {8 * nstamp[0]}")
        va("v_mov_b32 v12, 0")
        for i in range(nstamp[0]):
            va(f"v_mov_b32 v14, s{stampreg[i]}")
            va(f"v_mov_b32 v15, s{stampreg[i] + 1}")
            e(f"buffer_store_dwordx2 v[14:15], v12, s[{sWS}:{sWS + 3}], s{sTMP} offen offset:{8 * i}", "vmem",
              rd=["v14", "v15", "v12"])
            e("s_nop 1", "nop")
    if a.spin:
        e("s_waitcnt vmcnt(0)", "wait")
        E.label("L_diag")
        e("s_memrealtime s[62:63]", "smem")
        e("s_waitcnt lgkmcnt(0)", "wait")
        e("s_sub_u32 s62, s62, s60")
        e(f"s_cmp_lt_u32 s62, {a.spin * 100}")
        e("s_cbranch_scc1 L_diag")
    E.label("L_end")
    e("s_endpgm", "end")

    for ep in epochs:
        if not ep["bar"]:
            E.label(f"L_spin{ep['n']}")
            e(f"ds_read_b32 v{vFT}, v{vFR}", "ldsr", rd=[f"v{vFR}"], wr=[f"v{vFT}"])
            e("s_waitcnt lgkmcnt(0)", "wait")
            v(f"v_cmp_gt_u32 vcc, {ep['n']}, v{vFT}", ["vcc"], [f"v{vFT}"])
            e(f"s_cbranch_vccnz L_spin{ep['n']}")
            e(f"s_branch L_ok{ep['n']}")
    E.label("L_codeend")

    E.label("L_rerun")
    e(f"s_mov_b32 s{sMODE}, 1")
    e("s_waitcnt vmcnt(0) lgkmcnt(0)", "wait")
    e("s_barrier", "barrier")
    va("v_mbcnt_lo_u32_b32 v0, -1, 0")
    va("v_mbcnt_hi_u32_b32 v0, -1, v0")
    e(f"s_lshl_b32 s{sTMP}, s{sW}, 6")
    va(f"v_add_u32 v0, s{sTMP}, v0")
    e("s_branch L_start")

    E.label("L_maxpass")
    va(f"v_bfe_u32 v{vT1}, v{vLN}, 2, 2")
    va(f"v_lshrrev_b32 v{vT2}, 4, v{vLN}")
    va(f"v_lshl_add_u32 v{vT2}, v{vT2}, 4, {BIAS}")
    va(f"v_lshl_add_u32 v{vT1}, v{vT1}, 8, v{vT2}")
    va(f"v_and_b32 v{UT}, 1, v{vLN}")
    va(f"v_lshl_add_u32 v{vT2}, v{UT}, {lg(qS[2])}, v{vT1}")
    va(f"v_bfe_u32 v{UT}, v{vLN}, 1, 1")
    va(f"v_lshl_add_u32 v{vT2}, v{UT}, {lg(qS[3])}, v{vT2}")
    va(f"v_and_b32 v{UT}, 3, v{vLN}")
    va(f"v_lshl_add_u32 v{vT1}, v{UT}, 10, v{vT1}")
    for x in range(4):
        for s in range(4):
            e(f"buffer_load_dwordx4 {rr('v', QT + 4 * s, 4)}, v{vT2}, s[{sQ}:{sQ + 3}], s{sX + 4 * x} offen offset:{64 * s}",
              "vmem", rd=[f"v{vT2}"], wr=regs("v", QT + 4 * s, 4))
        e("s_waitcnt vmcnt(0)", "wait")
        for s in range(4):
            q_scale(x, s)
    e(f"s_mov_b32 s{sTMP}, 0")
    E.label("L_maxloop")
    for s in range(4):
        e(f"buffer_load_dwordx4 {rr('v', QT + 4 * s, 4)}, v{vT1}, s[{sK}:{sK + 3}], s{sTMP} offen offset:{64 * s}",
          "vmem", rd=[f"v{vT1}"], wr=regs("v", QT + 4 * s, 4))
    e("s_waitcnt vmcnt(0)", "wait")
    for x in range(4):
        S = Sreg[x]
        for s in range(4):
            C, cr = ("0", []) if s == 0 else (rr("v", S, 4), regs("v", S, 4))
            E.emit(Op(f"v_mfma_f32_16x16x32_bf16 {rr('v', S, 4)}, {rr('v', QT + 4 * s, 4)}, {rr('a', Qreg[x][s], 4)}, {C}",
                      "mfma", rd=regs("v", QT + 4 * s, 4) + regs("a", Qreg[x][s], 4) + cr, wr=regs("v", S, 4), srcc=cr))
    e("s_nop 7", "nop")
    for x in range(4):
        S, n = Sreg[x], NM[x]
        v(f"v_max3_f32 v{n}, v{S}, v{S + 1}, v{n}", [f"v{n}"], [f"v{S}", f"v{S + 1}", f"v{n}"])
        v(f"v_max3_f32 v{n}, v{S + 2}, v{S + 3}, v{n}", [f"v{n}"], [f"v{S + 2}", f"v{S + 3}", f"v{n}"])
    e(f"s_add_u32 s{sTMP}, s{sTMP}, 4096")
    e(f"s_cmp_lt_u32 s{sTMP}, 131072")
    e("s_cbranch_scc1 L_maxloop")
    e("s_nop 3", "nop")
    e("s_branch L_maxdone")

    ops, nnop = fix_hazards(E.out)
    if a.pads:
        ops = insert_pads(ops)
    if a.verbose:
        print("G0", G0, "tdead", tdead)
        print([(ep["gs"], ep["gc"], [t[0] + str(t[1]) for t in ep["tiles"]]) for ep in epochs])
        print("leads", leads)
        print("stores", [o.gap for o in E.out if "buffer_store" in o.text])
    info = dict(mfma=NMF, instrs=len(ops), nops=nnop, overflow=overflow, tail=ntail, epochs=len(epochs),
                minlead=min(leads[a.ninit:]), pslots=len(Pbases), fslots=len(Fbases), stamps=nstamp[0])
    head = [
        "; GQA attention forward, B=32 Hq=32 Hkv=8 Sq=64 Sk=512 D=128, bf16 in / bf16 out (generated schedule).",
        "; kernarg: q @0, k @8, v @16, out @24, debug @32, ws @40",
        "; One workgroup per (batch, kv head); wave w handles q head 4*hkv+w.",
        "; Softmax shift: row max of the first keys; a final check on the row sums reruns the",
        "; workgroup with the true row max (L_rerun / L_maxpass) whenever that shift is unsafe.",
        f"; @launch grid=(256,1,1) block=(256,1,1) lds={LDS_BYTES}",
        '.amdgcn_target "amdgcn-amd-amdhsa--gfx950"', ".text", f".globl {KNAME}", ".p2align 8",
        f".type {KNAME},@function", f"{KNAME}:"]
    body = [(o.text if o.cls == "label" else "    " + o.text) for o in ops]
    tail = ['.section .rodata,"a"', ".p2align 6", f".amdhsa_kernel {KNAME}",
            "  .amdhsa_next_free_vgpr 512", "  .amdhsa_next_free_sgpr 102", "  .amdhsa_accum_offset 256",
            "  .amdhsa_group_segment_fixed_size 0", "  .amdhsa_kernarg_size 48", "  .amdhsa_user_sgpr_count 2",
            "  .amdhsa_user_sgpr_kernarg_segment_ptr 1", "  .amdhsa_system_sgpr_workgroup_id_x 1",
            ".end_amdhsa_kernel"]
    return "\n".join(head + body + tail) + "\n", info


def parser():
    ap = argparse.ArgumentParser()
    ap.add_argument("out")
    for k, d in dict(groups="2,2,4,4,4,4,4,8", final="0a,1a,2a,3a,0b,1b,2b,3b", ones="0123", oacc="2", ld="nt", st="sc1 nt", sync="bar",
                     merge="12,12,40", win="10,10,16", dmaper="29x17,22", stampat="m", dbgnop="", dbgnost="", deven="2,3,4", dodd="5,3,4").items():
        ap.add_argument("--" + k, default=d)
    for k, d in dict(ns=5, lag=3, lat=6, skew=8, nbar=1, dmacost=8, dma0=8, rdbias=8, hoist=64, stdist=12, q0=10,
                     ninit=3, infl=8, halftop=0, prek=2, prev=1, nc0=3, nmax=1, fbudget=14, fstart=16, pk=1,
                     half=1, eprio=8, pa=1, sumearly=2, smooth=2, fhoist=80, rot=1, remap=1, rotmask=15, rotrev=0, qrot=3, kvs=0, qs=0, dbgswap=0, infl0=0, infl1=0, pvend=0, pvgam=100, qrun=1, snake=1, stampper=60, stamps=0, spin=0, pfcode=1, pads=1, verbose=0).items():
        ap.add_argument("--" + k, type=int, default=d)
    return ap


if __name__ == "__main__":
    a = parser().parse_args()
    txt, info = build(a)
    open(a.out, "w").write(txt)
    print(a.out, info)
```

```python
import argparse, math, re, struct, sys

KNAME = "standalone__gqa_softmax__near_ridge_kernel"
TILE = 4352
GRAN = 1088
NSLOT = 36
LDS_BYTES = 163840
FLAG_OFF = NSLOT * TILE
SYNC_OFF = FLAG_OFF + 256


def f32bits(x):
    return struct.unpack("<I", struct.pack("<f", x))[0]


def regs(p, lo, n):
    return [f"{p}{lo + i}" for i in range(n)]


def rr(p, lo, n):
    return f"{p}[{lo}:{lo + n - 1}]" if n > 1 else f"{p}{lo}"


class Op:
    __slots__ = ("text", "cls", "rd", "wr", "deps", "early", "dead", "prio", "needs", "idx", "gap",
                 "ldsn", "pre", "vmn", "tag", "srcc", "st", "cost")

    def __init__(self, text, cls, rd=(), wr=(), deps=(), early=-1, dead=10 ** 9, needs=(), pre=None, tag=None,
                 srcc=()):
        self.text, self.cls = text, cls
        self.rd, self.wr = list(rd), list(wr)
        self.deps = list(deps)
        self.early, self.dead = early, dead
        self.needs = list(needs)
        self.idx = None
        self.gap = None
        self.ldsn = None
        self.vmn = None
        self.pre = pre
        self.tag = tag
        self.prio = 0
        self.srcc = list(srcc)
        self.cost = COST.get(cls, 4)


COST = dict(trans=8, valu=4, ldsr=4, ldsw=12, vmem=20, salu=4)


class Emitter:
    def __init__(self):
        self.out = []
        self.nlds = 0
        self.lds_done = 0
        self.lds_gap = []
        self.nvm = 0
        self.vm_done = 0
        self.gap = -1
        self.nst = 0

    def emit(self, op):
        self.nst += states(op)
        op.st = self.nst
        op.idx = len(self.out)
        op.gap = self.gap
        if op.cls in ("ldsr", "ldsw"):
            op.ldsn = self.nlds
            self.nlds += 1
            self.lds_gap.append(self.gap)
        if op.cls == "vmem":
            op.vmn = self.nvm
            self.nvm += 1
        self.out.append(op)
        return op

    def raw(self, text, cls="salu", **kw):
        return self.emit(Op(text, cls, **kw))

    def label(self, name):
        self.out.append(Op(name + ":", "label"))

    def lds_wait(self, needs, lat=None):
        need = max((n.ldsn for n in needs), default=-1) + 1
        if need <= self.lds_done:
            return False
        if lat is not None:
            k = need
            while k < self.nlds and self.lds_gap[k] <= self.gap - lat:
                k += 1
            need = k
        n = min(self.nlds - need, 15)
        self.raw(f"s_waitcnt lgkmcnt({n})", "wait")
        self.lds_done = self.nlds - n
        return True

    def lds_drain(self):
        self.raw("s_waitcnt lgkmcnt(0)", "wait")
        self.lds_done = self.nlds

    def vm_wait(self, ops):
        need = max((o.vmn for o in ops), default=-1) + 1
        if need <= self.vm_done:
            return False
        n = min(self.nvm - need, 63)
        self.raw(f"s_waitcnt vmcnt({n})", "wait")
        self.vm_done = self.nvm - n
        return True


def states(op):
    if op.cls == "label":
        return 0
    m = re.match(r"s_nop (\d+)", op.text)
    return int(m.group(1)) + 1 if m else 1


def fix_hazards(ops):
    out = []
    added = 0
    for op in ops:
        if op.cls == "label":
            out.append(op)
            continue
        need = 0
        dist = 0
        rd, wr = set(op.rd), set(op.wr)
        isv = op.cls in ("valu", "trans")
        for p in reversed(out):
            if dist >= 12:
                break
            pw = set(p.wr)
            req = 0
            if p.cls == "mfma":
                if op.cls == "mfma":
                    ab = rd - set(op.srcc)
                    if pw & ab:
                        req = 8
                    if pw & set(op.srcc) and set(op.srcc) != pw:
                        req = max(req, 6)
                    if pw & wr and set(op.srcc) != pw:
                        req = max(req, 6)
                else:
                    if pw & (rd | wr):
                        req = 8
                    if isv and set(p.srcc) & wr:
                        req = max(req, 3)
            elif p.cls in ("valu", "trans"):
                if op.cls == "mfma" and pw & rd:
                    req = 2
                if p.cls == "trans" and op.cls != "trans" and pw & rd:
                    req = max(req, 1)
                if "permlane" in op.text and pw & rd:
                    req = max(req, 2)
                if ("readfirstlane" in op.text or "readlane" in op.text) and pw & rd:
                    req = max(req, 1)
                sw = {r for r in pw if r[0] == "s" or r == "vcc"}
                if sw & rd:
                    req = max(req, 5 if op.cls == "vmem" else 2)
            elif p.cls == "salu":
                if "m0" in pw and op.cls == "vmem" and "m0" in rd:
                    req = 1
            elif p.cls == "vmem":
                if "store" in p.text and set(p.rd) & wr and op.cls != "salu":
                    req = 2
            need = max(need, req - dist)
            if not (p.tag and p.tag[0] == "arm" and p.tag != op.tag):
                dist += states(p)
        if need > 0:
            out.append(Op(f"s_nop {need - 1}", "nop"))
            added += 1
        out.append(op)
    return out, added


def isize(op):
    t = op.text
    if op.cls == "label":
        return 0
    mn = t.split()[0]
    if op.cls in ("mfma", "xmfma", "ldsr", "ldsw", "vmem", "smem"):
        return 8
    if mn in ("s_getreg_b32", "s_movk_i32", "s_nop", "s_waitcnt", "s_barrier", "s_branch", "s_endpgm") or mn.startswith("s_cbranch"):
        return 4
    if mn.startswith("v_cmp") and " s[" in t:
        return 8
    if mn.startswith(("v_cvt_pk", "v_max3", "v_accvgpr", "v_pk_", "v_lshl_add", "v_add3", "v_bfe", "v_or3", "v_mbcnt",
                      "v_fma")):
        return 8
    for arg in [x.strip() for x in t[len(mn):].split(",")]:
        if re.fullmatch(r"-?(0x[0-9a-f]+|\d+)", arg) and not -16 <= int(arg, 0) <= 64:
            return 8
        if arg.startswith("L_"):
            return 8
    return 4


def insert_pads(ops):
    i0 = next(i for i, o in enumerate(ops) if o.text == "L_main:")
    i1 = next(i for i, o in enumerate(ops) if o.text == "L_end:")
    out, addr, page, pads = ops[:i0], 0, 1, []
    for i in range(i0, len(ops)):
        o = ops[i]
        if i <= i1 and addr >= 4096 * page:
            good = out[-1].cls == "mfma" and o.cls not in ("salu", "wait", "barrier", "nop")
            if good or addr + isize(o) > 4096 * page + 56:
                lab = Op(f"L_pad{len(pads)}:", "label")
                br = Op("", "salu")
                pads.append(br)
                out += [lab, br]
                addr += 4
                page += 1
        out.append(o)
        addr += isize(o)
    assert len(pads) >= 4
    for k, br in enumerate(pads):
        br.text = f"s_cbranch_execz L_pad{k + 4}" if k + 4 < len(pads) else "s_cbranch_execz L_main"
    return out


class Pool:
    def __init__(self, prefix, bases):
        self.prefix = prefix
        self.rel = {b: -1 for b in bases}

    def add(self, base, release):
        self.rel[base] = release

    def take(self, release):
        b = min(self.rel, key=lambda k: (self.rel[k], k))
        prev = self.rel[b]
        self.rel[b] = release
        return b, prev


def build(a):
    groups = [int(x) for x in a.groups.split(",")]
    assert sum(groups) == 32 and all(g % 2 == 0 for g in groups)
    G = len(groups)
    gstart = [sum(groups[:g]) for g in range(G + 1)]
    ones_x = [int(c) for c in a.ones if c.isdigit()]
    oacc_x = [int(c) for c in a.oacc if c.isdigit()]
    addx = [x for x in range(4) if x not in ones_x]
    ld, st = a.ld, a.st
    PK = 2 * a.prek
    flag = a.sync == "flag"
    GV = 1040 if a.pa else GRAN
    assert not a.pa or (a.half and not flag and len(ones_x) == 4)
    E = Emitter()
    e = E.raw

    vK, vV = 1, [2, 3, 4, 5]
    vDK, vDV = (6, 7), (11, 0)
    vOW, vOR, vOG = 8, 9, 10
    vRL = [12, 13, 14, 15]
    vFW, vFR, vFE, vFT = 12, 13, 14, 15
    NM = [16 + 4 * x for x in range(4)]
    vnext, anext, vtop = 32, 0, 256
    Lreg = {}
    for x in ones_x:
        Lreg[x] = anext
        anext += 4
    if addx:
        for i, x in enumerate(addx):
            Lreg[x] = vnext + i
        vnext += 4
    Sreg = [vnext + 4 * i for i in range(a.ns)]
    vnext += 4 * a.ns
    Oreg = {}
    for x in range(4):
        if x in oacc_x:
            Oreg[x] = ("a", anext)
            anext += 32
        else:
            vtop -= 32
            Oreg[x] = ("v", vtop)
    Pbases = list(range(vnext, vtop, 4))
    Qreg = [[anext + 16 * x + 4 * s for s in range(4)] for x in range(4)]
    anext += 64
    aONE = anext
    anext += 4
    Fbases = list(range(anext, 256, 4))
    QT = Pbases[-8]
    UT = QT + 16
    vLN, vQA, vT1, vT2 = QT + 24, QT + 25, QT + 26, QT + 27
    vDQ = (QT + 28, QT + 29)
    assert len(Pbases) >= 8 + 4 * a.prek
    kvS = [(256, 512, 1024, 2048, 8192), (256, 512, 1024, 32768, 2048), (256, 512, 16384, 32768, 1024),
           (4096, 8192, 16384, 32768, 256), (256, 8192, 16384, 32768, 512)][a.kvs]
    qS = [(256, 512, 1024, 2048, 4096), (256, 512, 4096, 8192, 1024), (256, 512, 1024, 8192, 2048)][a.qs]
    lg = lambda n: n.bit_length() - 1

    sQ, sK, sV, sO = 12, 16, 20, 24
    sW, sWG, sMODE, sC, sTHR, sQW, sTMP, sT2 = 3, 28, 29, 30, 31, 34, 35, 32
    sWS = 36
    sWV = 38
    sOFF = 64
    sX = 40
    sBAD = 88

    NK = 16
    q0 = a.q0
    vwin = [NK, NK + 16]

    qk_units = [(j, x) for x in range(4) for j in range(PK)] + [(j, x) for j in range(PK, 32) for x in range(4)]
    uidx = {u: i for i, u in enumerate(qk_units)}
    assert gstart[a.prev + 1] >= PK >= gstart[a.prev]
    final_parts = [([int(c) for c in part if c.isdigit()],
                    range(4) if "a" in part else range(4, 8) if "b" in part else range(8)) for part in a.final.split(",")]
    pvq = []
    for g in range(G):
        if g < a.prev:
            for x in range(4):
                u = ([("sum", g, None, x)] if x in ones_x else []) + [("pv", g, b, x) for b in range(8)]
                pvq += [(PK * (x + 1) - 0.5, w) for w in u]
            continue
        if g < G - 1:
            u = [("sum", g, None, x) for x in ones_x] + [("pv", g, b, x) for b in range(8) for x in range(4)]
        else:
            u = []
            for xs, bs in final_parts:
                u += [("sum", g, None, x) for x in xs if x in ones_x and ("sum", g, None, x) not in u]
                u += [("pv", g, b, x) for b in bs for x in xs]
            for w in [w for w in u[1:] if w[0] == "sum"]:
                i = u.index(w)
                u.insert(max(1, i - a.sumearly), u.pop(i))
        lo = 4 * gstart[g + 1] + a.lag
        hi = 4 * gstart[min(g + 2, G)] + a.lag
        if a.pvend and g < G - 1:
            u0, span = 4 * gstart[a.prev + 1] + a.lag, gstart[G - 1] - gstart[a.prev]
            at = lambda t: u0 + (a.pvend - u0) * ((t - gstart[a.prev]) / span) ** (a.pvgam / 100)
            lo = max(lo, at(gstart[g]))
            hi = max(hi, at(gstart[g + 1])) if g < G - 2 else a.pvend
        pvq += [(lo + (hi - lo) * i / len(u) if g < G - 1 else 10 ** 6, w) for i, w in enumerate(u)]
    pvq.sort(key=lambda p: p[0])
    seq, pi = [], 0
    for ui, (j, x) in enumerate(qk_units):
        while pi < len(pvq) and pvq[pi][0] < ui and (ui <= 4 * PK or ui % a.qrun == 0):
            seq.append(pvq[pi][1])
            pi += 1
        seq.append(("qk", j, x))
    seq += [u for _, u in pvq[pi:]]

    M = []
    flip = False
    for n, u in enumerate(seq):
        same = n > 0 and seq[n - 1][0] == u[0] and (u[0] == "qk" or seq[n - 1][1] == u[1])
        flip = a.snake and same and not flip
        ks = list(range(4 if u[0] == "qk" else groups[u[1]] // 2))
        for i, k in enumerate(ks[::-1] if flip else ks):
            M.append(("qk", u[1], u[2], k, i == 0) if u[0] == "qk" else (u[0], u[1], u[2], u[3], k))
    NMF = len(M)
    first_use, last_use = {}, {}

    def use(key, i):
        first_use.setdefault(key, i)
        last_use[key] = i

    for i, m in enumerate(M):
        if m[0] == "qk":
            _, j, x, s, _ = m
            use(("K", j, s), i)
            use(("S", j, x), i)
            use(("Q", x, s), i)
        else:
            kind, g, b, x, k = m
            kap = gstart[g] // 2 + k
            use(("P", kap, x), i)
            if kind == "pv":
                use(("V", kap, b), i)
                use(("O", x, b), i)
            else:
                use(("L", x), i)
    qgap = {first_use["S", 0, x] - 1: x for x in range(4)}
    G0 = first_use["S", 0, 3] - 1

    ppool = Pool("v", Pbases)
    for b in Pbases[-8:]:
        ppool.add(b, G0 + 1)
    Preg, Pfree = {}, {}
    for kap, x in sorted([(k, x) for k in range(16) for x in range(4)], key=lambda p: uidx[2 * p[0], p[1]]):
        Preg[kap, x], Pfree[kap, x] = ppool.take(last_use["P", kap, x])
    fpool = Pool("a", Fbases)
    for x in range(4):
        for s in range(4):
            fpool.add(Qreg[x][s], last_use["Q", x, s])
    frags = sorted([k for k in first_use if k[0] in "KV"], key=lambda k: first_use[k])
    Freg, Ffree = {}, {}
    for k in frags:
        Freg[k], Ffree[k] = fpool.take(last_use[k])
        assert Ffree[k] < first_use[k] - a.lat or Ffree[k] < 0, ("frag pool too small", k)

    mf = []
    started = set()
    for i, m in enumerate(M):
        if m[0] == "qk":
            _, j, x, s, head = m
            S = Sreg[uidx[j, x] % a.ns]
            A, B = Freg["K", j, s], Qreg[x][s]
            if head:
                C, cr = ("0", []) if j < a.nc0 else (rr("v", NM[x], 4), regs("v", NM[x], 4))
            else:
                C, cr = rr("v", S, 4), regs("v", S, 4)
            mf.append(Op(f"v_mfma_f32_16x16x32_bf16 {rr('v', S, 4)}, {rr('a', A, 4)}, {rr('a', B, 4)}, {C}", "mfma",
                         rd=regs("a", A, 4) + regs("a", B, 4) + cr, wr=regs("v", S, 4), srcc=cr))
        else:
            kind, g, b, x, k = m
            kap = gstart[g] // 2 + k
            if kind == "pv":
                p, o = Oreg[x][0], Oreg[x][1] + 4 * b
                A = Freg["V", kap, b]
                key = ("O", x, b)
            else:
                p, o, A, key = "a", Lreg[x], aONE, ("L", x)
            B = Preg[kap, x]
            C, cr = (rr(p, o, 4), regs(p, o, 4)) if key in started else ("0", [])
            started.add(key)
            ab = [rr('a', A, 4), rr('v', B, 4)]
            if (a.dbgswap or a.pa) and kind == "pv":
                ab.reverse()
            mf.append(Op(f"v_mfma_f32_16x16x32_bf16 {rr(p, o, 4)}, {ab[0]}, {ab[1]}, {C}", "mfma",
                         rd=regs("a", A, 4) + regs("v", B, 4) + cr, wr=regs(p, o, 4), srcc=cr))

    tile_first = {}
    for d in range(16):
        tile_first["K", d] = min(first_use["K", 2 * d, s] for s in range(4))
        tile_first["V", d] = min(first_use["V", d, b] for b in range(8))
    dma_order = sorted(tile_first, key=lambda t: (tile_first[t], t[1]))
    pre_tiles = [t for t in dma_order if tile_first[t] <= G0]
    merge = [int(x) for x in a.merge.split(",")]
    wins = [int(x) for x in a.win.split(",")]
    nbar = a.nbar if flag else 99
    epochs, pub = [], {t: -1 for t in pre_tiles}
    for t in dma_order[len(pre_tiles):]:
        k = len(epochs)
        gc = max(tile_first[t] - wins[min(k, len(wins) - 1)], G0 + 1)
        if epochs and gc < epochs[-1]["gc"] + merge[min(k - 1, len(merge) - 1)]:
            epochs[-1]["tiles"].append(t)
        else:
            isbar = k < nbar
            epochs.append(dict(gc=gc, gr=gc - (0 if isbar else a.lat + 1), gs=gc - (0 if isbar else a.lat + 1 + a.skew),
                               tiles=[t], bar=isbar, n=k + 1))
            assert epochs[-1]["gs"] > G0 and (k == 0 or epochs[-1]["gr"] > epochs[-2]["gc"])
            assert k == 0 or epochs[-1]["gs"] > epochs[-2]["gs"]
        pub[t] = epochs[-1]["gc"]
    free_slots = {"K": [s for s in range(0, NK, 2) if not q0 <= s < q0 + 16],
                  "V": [s for s in range(NK, NSLOT, 2) if not q0 <= s < q0 + 16]}
    slot_of, dma_op = {}, {}
    tile_reads = {t: [] for t in tile_first}
    released = set()

    def slot_for(t):
        c = [s for s in free_slots[t[0]] if not (t[0] == "K" and t[1] >= 12 and s < 8)]
        if t[0] == "K" and 8 <= t[1] < 12:
            c.sort(key=lambda s: s >= 8)
        return c[0] if c else None

    def dma_pair(srd, vo, soff):
        gs = GV if srd == sV else GRAN
        ld = (a.ld.split("/") * 3)[[sQ, sK, sV].index(srd)]
        return [Op(f"buffer_load_dwordx4 v{vo[i]}, s[{srd}:{srd + 3}], s{soff} offen{' offset:%d' % gs if i else ''} {ld} lds"
                   .replace("  ", " "), "vmem", rd=["m0", f"v{vo[i]}"]) for i in range(2)]

    def make_dma(t):
        sl = slot_for(t)
        free_slots[t[0]].remove(sl)
        slot_of[t] = sl
        srd, vo = (sK, vDK) if t[0] == "K" else (sV, vDV)
        pre = Op(f"s_add_u32 m0, s{sWV if t[0] == 'V' and a.pa else sWG}, {sl * TILE}", "salu", wr=["m0"])
        ops = dma_pair(srd, vo, sOFF + t[1])
        dma_op[t] = ops[1]
        return pre, ops

    nstamp = [0]
    stampreg = list(range(56, 64, 2)) + list(range(80, 88, 2)) + [4, 6, 8, 10, 0, 96, 98, 32, 100]

    def stamp(kind="m"):
        if a.stamps and (kind in a.stampat or kind == "x") and (nstamp[0] < 14 or kind == "x"):
            for k, ins in enumerate(("s_memrealtime", "s_memtime")):
                if a.stamps >> k & 1:
                    r = stampreg[nstamp[0]]
                    nstamp[0] += 1
                    e(f"{ins} s[{r}:{r + 1}]", "smem")

    def v(text, wr, rd=(), cls="valu"):
        return e(text, cls, rd=list(rd), wr=list(wr))

    def va(text):
        return v(text, [text.split()[1].rstrip(",")])

    BIAS = GRAN - 1024
    e("s_cmp_ge_u32 s2, 256")
    e("s_cbranch_scc1 L_end")
    if a.spin:
        e("s_memrealtime s[60:61]", "smem")
    if a.report >= 0:
        e("s_memrealtime s[86:87]", "smem")
    e("s_load_dwordx8 s[4:11], s[0:1], 0", "smem")
    if a.stamps:
        e(f"s_load_dwordx2 s[{sWS}:{sWS + 1}], s[0:1], 40", "smem")
    if a.pfcode:
        e("s_getpc_b64 s[96:97]")
        E.label("L_pc")
        e("s_add_u32 s96, s96, L_main-L_pc")
        e("s_addc_u32 s97, s97, 0")
        e("s_mov_b32 s98, L_codeend-L_main")
        e("s_mov_b32 s99, 0x20000")
        e("s_lshr_b32 s95, s2, 3")
        e("s_lshl_b32 s95, s95, 10")
        va("v_lshlrev_b32 v16, 2, v0")
        e(f"buffer_load_dword v{UT}, v16, s[96:99], s95 offen", "vmem", rd=["v16"], wr=[f"v{UT}"])
    if a.remap:
        e(f"s_and_b32 s{sTMP}, s2, 7")
        e(f"s_lshl_b32 s{sTMP}, s{sTMP}, 5")
        e("s_lshr_b32 s2, s2, 3")
        e(f"s_or_b32 s2, s2, s{sTMP}")
    e(f"s_mov_b32 s{sMODE}, 0")
    E.label("L_start")
    va("v_lshrrev_b32 v12, 6, v0")
    va(f"v_and_b32 v{vLN}, 63, v0")
    v(f"v_readfirstlane_b32 s{sW}, v12", [f"s{sW}"], ["v12"])
    va(f"v_lshrrev_b32 v13, 4, v{vLN}")
    va("v_and_b32 v14, 2, v13")
    va(f"v_xor_b32 v14, v14, v{vLN}")
    va(f"v_lshl_add_u32 v{vDQ[0]}, v14, 4, {BIAS}")
    va(f"v_add_u32 v{vDQ[1]}, {(qS[2] - GRAN) & 0xffffffff}, v{vDQ[0]}")
    va(f"v_lshlrev_b32 v12, {lg(kvS[3])}, v12")
    if kvS[:2] != (256, 512):
        va("v_and_b32 v15, 1, v13")
        va(f"v_mul_u32_u24 v15, {kvS[0] - 256}, v15")
        va("v_add_u32 v12, v12, v15")
        va("v_lshrrev_b32 v15, 1, v13")
        va(f"v_mul_u32_u24 v15, {kvS[1] - 512}, v15")
        va("v_add_u32 v12, v12, v15")
    va(f"v_add_u32 v{vDK[0]}, v12, v{vDQ[0]}")
    va(f"v_add_u32 v{vDK[1]}, {(kvS[2] - GRAN) & 0xffffffff}, v{vDK[0]}")
    va("v_and_b32 v14, 1, v13")
    va(f"v_lshlrev_b32 v14, {3 if a.pa else 1}, v14")
    va(f"v_xor_b32 v14, v14, v{vLN}")
    va(f"v_lshl_add_u32 v14, v14, 4, {BIAS}")
    va(f"v_add_u32 v{vDV[0]}, v12, v14")
    va(f"v_add_u32 v{vDV[1]}, {(kvS[2] - GV) & 0xffffffff}, v{vDV[0]}")
    e(f"s_mul_i32 s{sWG}, s{sW}, {2 * GRAN}", rd=[f"s{sW}"])
    if a.pa:
        e(f"s_mul_i32 s{sWV}, s{sW}, {2 * GV}")
    e(f"s_mul_i32 s{sQW}, s{sW}, {4 * TILE}")
    e(f"s_add_u32 s{sQW}, s{sQW}, {q0 * TILE}")
    e(f"s_lshl_b32 s{sTMP}, s2, 2")
    e(f"s_add_u32 s{sTMP}, s{sTMP}, s{sW}")
    if a.qrot:
        e(f"s_lshr_b32 s{sX}, s{sTMP}, {a.qrot - 1}")
        e(f"s_and_b32 s{sX}, s{sX}, 3")
        e(f"s_lshl_b32 s{sX}, s{sX}, {lg(qS[4])}")
    else:
        e(f"s_mov_b32 s{sX}, 0")
    e(f"s_lshl_b32 s{sTMP}, s{sTMP}, 14")
    e(f"s_lshl_b32 s{sC}, s2, 17")
    e(f"s_sub_u32 s{sC}, s{sC}, {BIAS}")
    e(f"s_subb_u32 s{sTHR}, 0, 0")
    e(f"s_sub_u32 s{sT2}, s{sTMP}, {BIAS}")
    e(f"s_subb_u32 s{sT2 + 1}, 0, 0")
    for d, size in ((sK, 131072 + BIAS), (sV, 131072 + BIAS), (sQ, 16384 + BIAS), (sO, 16384)):
        e(f"s_mov_b32 s{d + 2}, {size}")
        e(f"s_mov_b32 s{d + 3}, 0x20000")

    def set_off(j):
        if a.rot and j:
            e(f"s_xor_b32 s{sOFF + j}, s{sOFF}, {j * kvS[4]}")
        elif a.rot:
            e(f"s_lshr_b32 s{sOFF}, s2, {a.rot - 1}")
            e(f"s_and_b32 s{sOFF}, s{sOFF}, {a.rotmask}")
            if a.rotrev:
                e(f"s_brev_b32 s{sOFF}, s{sOFF}")
                e(f"s_lshr_b32 s{sOFF}, s{sOFF}, {32 - a.rotrev}")
            e(f"s_lshl_b32 s{sOFF}, s{sOFF}, {lg(kvS[4])}")
        else:
            e(f"s_mov_b32 s{sOFF + j}, {j * kvS[4]}")

    def set_x(x, g):
        if x or g:
            e(f"s_xor_b32 s{sX + 4 * x + g}, s{sX}, {x * qS[4] + (g >> 1) * qS[3] + (g & 1) * qS[2]}")

    for j in range(a.prek):
        set_off(j)
    e("s_waitcnt lgkmcnt(0)", "wait")
    srd_todo = {sK: (6, sC, f"s{sTHR}"), sQ: (4, sT2, f"s{sT2 + 1}"), sV: (8, sC, f"s{sTHR}"), sO: (10, sTMP, "0")}

    def need_srd(d):
        if d in srd_todo:
            p, lo, hi = srd_todo.pop(d)
            e(f"s_add_u32 s{d}, s{p}, s{lo}")
            e(f"s_addc_u32 s{d + 1}, s{p + 1}, {hi}")

    stamp("x")
    npre = len(pre_tiles)
    di = npre + a.ninit
    items = [make_dma(t) for t in dma_order[:di]]
    items[npre:npre] = [(Op(f"s_add_u32 m0, s{sQW}, {x * TILE + 2 * g * GRAN}", "salu", wr=["m0"]),
                         dma_pair(sQ, vDQ, sX + 4 * x + 2 * g)) for x in range(4) for g in range(2)]
    vm0 = E.nvm
    depth = [[int(z) for z in d.split(",")] for d in (a.deven, a.dodd or a.deven)]
    issued, landed, npoint = [0, 0], [0, 0], [0]

    def clone(o):
        return Op(o.text, o.cls, rd=o.rd, wr=o.wr)

    def point(*steps):
        code = [[], []]
        for vv in range(2):
            def issue():
                pre, ops = items[issued[vv]]
                code[vv] += [clone(pre), Op("s_nop 0", "nop")] + [clone(o) for o in ops]
                ops[1].idx, ops[1].gap, ops[1].vmn = len(E.out), E.gap, vm0 + 2 * issued[vv] + 1
                issued[vv] += 1
            for kind, k in steps:
                if kind == "wait" and landed[vv] <= k:
                    while issued[vv] <= k:
                        issue()
                    code[vv].append(Op(f"s_waitcnt vmcnt({2 * (issued[vv] - k - 1)})", "wait"))
                    landed[vv] = k + 1
                while kind == "top" and issued[vv] < len(items) and issued[vv] - landed[vv] < (depth[vv] + [99])[k]:
                    issue()
        n = npoint[0]
        npoint[0] += 1
        same = [o.text for o in code[0]] == [o.text for o in code[1]]
        for vv in range(2):
            for o in code[vv]:
                o.tag = None if same else ("arm", n, vv)
        if same:
            seq = code[0]
        elif not code[0] or not code[1]:
            seq = ([Op(f"s_cbranch_{'vccnz' if code[0] else 'vccz'} L_j{n}", "salu")] + code[0] + code[1] +
                   [Op(f"L_j{n}:", "label")])
        else:
            seq = ([Op(f"s_cbranch_vccnz L_o{n}", "salu")] + code[0] + [Op(f"s_branch L_j{n}", "salu", tag=("arm", n, 0)),
                   Op(f"L_o{n}:", "label")] + code[1] + [Op(f"L_j{n}:", "label")])
        for o in seq:
            E.emit(o) if o.cls != "label" else E.out.append(o)
        E.nvm, E.vm_done = vm0 + 2 * max(issued), vm0 + 2 * min(landed)

    n0 = min(depth[0][0], depth[1][0])
    for k in range(n0):
        pre, ops = items[k]
        E.emit(pre)
        need_srd(int(re.search(r"s\[(\d+):", ops[0].text).group(1)))
        if npre <= k < npre + 8:
            set_x((k - npre) // 2, 2 * ((k - npre) % 2))
        for o in ops:
            E.emit(o)
    issued[:] = [n0, n0]
    for d in (sK, sQ, sV, sO):
        need_srd(d)
    for x in range(4):
        for g in range(0, 4, 2):
            if npre + 2 * x + g // 2 >= n0:
                set_x(x, g)
    if depth[0] != depth[1]:
        e(f"s_getreg_b32 s{sTMP}, hwreg(HW_REG_XCC_ID, 0, 1)")
        e(f"s_cmp_lg_u32 s{sTMP}, 0")
        e("s_cselect_b64 vcc, -1, 0")
    point(("top", 0))
    for j in range(a.prek, 16):
        set_off(j)
    for x in range(4):
        for g in (1, 3):
            if not a.half:
                set_x(x, g)
    e(f"s_mov_b32 s{sC}, {f32bits(math.log2(math.e) / math.sqrt(128.0)):#x}")
    e(f"s_mov_b32 s{sTHR}, {f32bits(2.0 ** 32):#x}")
    va(f"v_and_b32 v12, 3, v{vLN}")
    va(f"v_bfe_u32 v13, v{vLN}, 2, 2")
    va(f"v_lshrrev_b32 v14, 4, v{vLN}")
    va(f"v_mul_u32_u24 v{vK}, {GRAN}, v12")
    va(f"v_lshl_add_u32 v{vK}, v13, 8, v{vK}")
    va("v_and_b32 v15, 2, v13")
    va("v_xor_b32 v15, v15, v14")
    va(f"v_lshl_add_u32 v{vK}, v15, 4, v{vK}")
    va(f"v_add_u32 v{vQA}, s{sQW}, v{vK}")
    va(f"v_mul_u32_u24 v{vV[0]}, {GV}, v13")
    va(f"v_lshl_add_u32 v{vV[0]}, v14, 8, v{vV[0]}")
    if a.pa:
        va("v_and_b32 v15, 1, v12")
        va(f"v_lshl_add_u32 v{vV[0]}, v15, 3, v{vV[0]}")
        va("v_lshrrev_b32 v15, 1, v12")
        va(f"v_lshl_add_u32 v{vV[0]}, v15, 6, v{vV[0]}")
    else:
        va(f"v_lshl_add_u32 v{vV[0]}, v12, 3, v{vV[0]}")
    va("v_and_b32 v15, 1, v14")
    va(f"v_lshl_add_u32 v{vV[0]}, v15, {7 if a.pa else 5}, v{vV[0]}")
    va(f"v_xor_b32 v{vV[1]}, {128 if a.pa else 32}, v{vV[0]}")
    va(f"v_add_u32 v{vV[2]}, {vwin[1] * TILE}, v{vV[0]}")
    va(f"v_add_u32 v{vV[3]}, {vwin[1] * TILE}, v{vV[1]}")
    va(f"v_add_u32 v{vV[0]}, {vwin[0] * TILE}, v{vV[0]}")
    va(f"v_add_u32 v{vV[1]}, {vwin[0] * TILE}, v{vV[1]}")
    e(f"s_mul_i32 s{sTMP}, s{sW}, {2 * TILE}")
    vLW, vLR, vOR1 = 12, 13, 14
    if a.pa:
        va(f"v_lshlrev_b32 v{vOR}, 8, v14")
        va(f"v_lshl_add_u32 v{vOR}, v12, 6, v{vOR}")
        va(f"v_lshl_add_u32 v{vOR}, v13, 3, v{vOR}")
        va(f"v_lshl_add_u32 v{vOR}, v15, 5, v{vOR}")
        va(f"v_add_u32 v{vOR}, s{sTMP}, v{vOR}")
        va(f"v_lshrrev_b32 v12, 5, v{vLN}")
        va("v_lshlrev_b32 v13, 2, v12")
        va(f"v_xor_b32 v13, v13, v{vLN}")
        va(f"v_lshl_add_u32 v{vOW}, v13, 3, s{sTMP}")
        va(f"v_and_b32 v13, 7, v{vLN}")
        va("v_lshlrev_b32 v13, 4, v13")
        va(f"v_lshl_add_u32 v{vOG}, v12, {lg(qS[2])}, v13")
        va(f"v_bfe_u32 v13, v{vLN}, 3, 2")
        va(f"v_lshl_add_u32 v{vOG}, v13, 8, v{vOG}")
        e(f"s_lshl_b32 s{sTMP}, s{sW}, 8")
        e(f"s_add_u32 s{sTMP}, s{sTMP}, {SYNC_OFF}")
        va(f"v_lshl_add_u32 v{vLW}, v{vLN}, 2, s{sTMP}")
        va(f"v_lshl_add_u32 v{vLR}, v14, 4, s{sTMP}")
        va(f"v_xor_b32 v{vOR1}, 32, v{vOR}")
    else:
        va(f"v_and_b32 v15, 15, v{vLN}")
        va(f"v_mul_u32_u24 v{vOW}, 272, v15")
        va(f"v_lshl_add_u32 v{vOW}, v14, 3, v{vOW}")
        va(f"v_add_u32 v{vOW}, s{sTMP}, v{vOW}")
    if a.pa:
        pass
    elif a.half:
        va(f"v_bfe_u32 v13, v{vLN}, 3, 2")
        va("v_lshrrev_b32 v15, 1, v13")
        va("v_xor_b32 v15, v15, v13")
        va("v_and_b32 v15, 1, v15")
        va("v_lshlrev_b32 v15, 2, v15")
        va(f"v_xor_b32 v15, v15, v{vLN}")
        va("v_and_b32 v15, 7, v15")
        va("v_lshlrev_b32 v15, 4, v15")
        va(f"v_lshl_add_u32 v{vOG}, v13, 8, v15")
        va(f"v_mul_u32_u24 v{vOR}, {GRAN}, v13")
        va(f"v_add3_u32 v{vOR}, v{vOR}, v15, s{sTMP}")
        va(f"v_lshrrev_b32 v13, 5, v{vLN}")
        va(f"v_lshl_add_u32 v{vOG}, v13, {lg(qS[2])}, v{vOG}")
        va("v_mul_u32_u24 v13, 272, v13")
        va(f"v_add_u32 v{vOR}, v{vOR}, v13")
    else:
        va("v_lshlrev_b32 v13, 2, v14")
        va("v_sub_u32 v15, v15, v13")
        va("v_and_b32 v15, 15, v15")
        va("v_lshlrev_b32 v15, 4, v15")
        va(f"v_lshl_add_u32 v{vOG}, v14, 8, v15")
        va(f"v_mul_u32_u24 v{vOR}, {GRAN}, v14")
        va(f"v_add3_u32 v{vOR}, v{vOR}, v15, s{sTMP}")
    va("v_mov_b32 v15, 0x3f803f80")
    for i in range(4):
        v(f"v_accvgpr_write_b32 a{aONE + i}, v15", [f"a{aONE + i}"], ["v15"])
    for x in range(4):
        va(f"v_mov_b32 v{NM[x]}, 0xff800000")
    for x in addx:
        va(f"v_mov_b32 v{Lreg[x]}, 0")
    if flag:
        e(f"s_lshl_b32 s{sTMP}, s{sW}, 8")
        e(f"s_add_u32 s{sTMP}, s{sTMP}, {SYNC_OFF}")
        va(f"v_lshlrev_b32 v{vFE}, 2, v{vLN}")
        va(f"v_lshl_add_u32 v{vFR}, v12, 8, v{vFE}")
        va(f"v_add_u32 v{vFR}, {SYNC_OFF}, v{vFR}")
        va(f"v_add_u32 v{vFW}, s{sTMP}, v{vFE}")
        va(f"v_mov_b32 v{vFE}, 0")
        e(f"ds_write_b32 v{vFW}, v{vFE}", "ldsw", rd=[f"v{vFW}", f"v{vFE}"])
        E.lds_drain()
    if a.pads:
        e("s_mov_b64 exec, 0")
        for w in range(3):
            e(f"s_cmp_eq_u32 s{sW}, {w}")
            e(f"s_cbranch_scc1 L_pad{w}")
        e("s_branch L_pad3")
        E.out.append(Op(".p2align 12", "label"))
    E.label("L_main")
    if a.pads:
        e("s_mov_b64 exec, -1")

    def finalize_read(op):
        if op.text is not None:
            return
        if op.tag[0] == "K":
            _, j, s = op.tag
            off = (slot_of["K", j // 2] + j % 2) * TILE + 64 * s
            assert off < 65536
            op.text = f"ds_read_b128 {rr('a', Freg['K', j, s], 4)}, v{vK} offset:{off}"
        else:
            _, kap, b, tau = op.tag
            sl = slot_of["V", kap]
            w = 0 if sl < vwin[1] else 1
            off = (sl - vwin[w]) * TILE + tau * 4 * GV + (16 * (b & 3) if a.pa else 64 * (b >> 1))
            assert off < 65536
            av = vV[2 * w + (b >> 2 if a.pa else b & 1)]
            op.rd = [f"v{av}"]
            op.text = f"ds_read_b64_tr_b16 {rr('a', Freg['V', kap, b] + 2 * tau, 2)}, v{av} offset:{off}"

    kr = {(j, s): Op(None, "ldsr", rd=[f"v{vK}"], wr=regs("a", Freg["K", j, s], 4), tag=("K", j, s))
          for j in range(32) for s in range(4)}
    vr = {(kap, b, t): Op(None, "ldsr", wr=regs("a", Freg["V", kap, b] + 2 * t, 2), tag=("V", kap, b, t))
          for kap in range(16) for b in range(8) for t in range(2)}
    for (j, s), op in kr.items():
        tile_reads["K", j // 2].append(op)
    for (kap, b, t), op in vr.items():
        tile_reads["V", kap].append(op)

    point(*[st_ for k in range(npre) for st_ in (("wait", k), ("top", 1))])
    e("s_barrier", "barrier")
    for t in pre_tiles:
        for op in tile_reads[t]:
            finalize_read(op)
            E.emit(op)
    e(f"s_cmp_lg_u32 s{sMODE}, 0")
    e("s_cbranch_scc1 L_maxpass")
    E.label("L_maxdone")

    def q_scale(x, s):
        for i in range(4):
            src, t = QT + 4 * s + i, UT + 2 * i
            v(f"v_lshlrev_b32 v{t}, 16, v{src}", [f"v{t}"], [f"v{src}"])
            v(f"v_and_b32 v{t + 1}, 0xffff0000, v{src}", [f"v{t + 1}"], [f"v{src}"])
        for i in range(4):
            t = UT + 2 * i
            v(f"v_pk_mul_f32 {rr('v', t, 2)}, {rr('v', t, 2)}, s[{sC}:{sC + 1}] op_sel_hi:[1,0]", regs("v", t, 2),
              regs("v", t, 2))
        for i in range(4):
            v(f"v_cvt_pk_bf16_f32 v{UT + 2 * i}, v{UT + 2 * i}, v{UT + 2 * i + 1}", [f"v{UT + 2 * i}"],
              [f"v{UT + 2 * i}", f"v{UT + 2 * i + 1}"])
        for i in range(4):
            v(f"v_accvgpr_write_b32 a{Qreg[x][s] + i}, v{UT + 2 * i}", [f"a{Qreg[x][s] + i}"], [f"v{UT + 2 * i}"])

    def q_prepare(x):
        k = npre + 2 * x
        point(*([("wait", k), ("top", 1)] if x == 0 or a.halftop else []), ("wait", k + 1))
        stamp("q")
        rds = [e(f"ds_read_b128 {rr('v', QT + 4 * s, 4)}, v{vQA} offset:{x * TILE + 64 * s}", "ldsr",
                 rd=[f"v{vQA}"], wr=regs("v", QT + 4 * s, 4)) for s in range(4)]
        point(("top", 1))
        for s in range(4):
            E.lds_wait([rds[s]])
            q_scale(x, s)
        point(("top", 2 if x < 3 else 3))

    def first_max_ops(x):
        n = NM[x]
        ops = []

        def add(text, wr, rd, dist=0, deps=()):
            ops.append(Op(text, "valu", rd=rd, wr=wr, deps=([(ops[-1], dist)] if ops else []) + list(deps)))

        for j in range(a.nmax):
            S = Sreg[uidx[j, x] % a.ns]
            for r in (S, S + 2):
                add(f"v_max3_f32 v{n}, v{r}, v{r + 1}, v{n}", [f"v{n}"], [f"v{r}", f"v{r + 1}", f"v{n}"],
                    deps=[(mf[last_use["S", j, x]], 8)])
        for sw in ("v_permlane32_swap_b32", "v_permlane16_swap_b32"):
            add(f"v_mov_b32 v{n + 1}, v{n}", [f"v{n + 1}"], [f"v{n}"])
            add(f"{sw} v{n + 1}, v{n}", [f"v{n}", f"v{n + 1}"], [f"v{n}", f"v{n + 1}"], 2)
            add(f"v_max_f32 v{n}, v{n}, v{n + 1}", [f"v{n}"], [f"v{n}", f"v{n + 1}"])
        for i in (1, 2, 3, 0):
            add(f"v_mul_f32 v{n + i}, -1.0, v{n}", [f"v{n + i}"], [f"v{n}"])
        return ops

    F = []
    ladds = {x: [] for x in range(4)}
    nmdone = {}
    for u, (j, x) in enumerate(qk_units):
        S = Sreg[u % a.ns]
        prod = mf[last_use["S", j, x]]
        sdead = first_use[("S",) + qk_units[u + a.ns]] - 1 if u + a.ns < 128 else 10 ** 9
        kap = j // 2
        pdead = max(min(sdead, first_use["P", kap, x] - 2), last_use["S", j, x])
        assert pdead < first_use["P", kap, x]
        if j == 0:
            mops = first_max_ops(x)
            for k, o in enumerate(mops):
                o.dead = max(min(pdead, first_use["S", a.nc0, x] - 2), last_use["S", a.nmax - 1, x])
                assert o.dead < first_use["S", a.nc0, x]
                o.prio = (-1, u, k)
            nmdone[x] = mops[-4]
            F += mops
        ex = []
        for i in range(4):
            op = Op(f"v_exp_f32 v{S + i}, v{S + i}", "trans", rd=[f"v{S + i}"], wr=[f"v{S + i}"],
                    deps=[(prod, 8)], dead=pdead)
            op.prio = (pdead - 4 + i, u, 3 * i)
            if j < a.nc0:
                n = NM[x] + 1
                sub = Op(f"v_add_f32 v{S + i}, v{S + i}, v{n}", "valu", rd=[f"v{S + i}", f"v{n}"], wr=[f"v{S + i}"],
                         deps=[(nmdone[x], 0), (prod, 8)], dead=pdead)
                sub.prio = (pdead - 5 + i, u, 3 * i)
                F.append(sub)
                op.deps.append((sub, 0))
            ex.append(op)
            F.append(op)
            if x in addx:
                ad = Op(f"v_add_f32 v{Lreg[x]}, v{Lreg[x]}, v{S + i}", "valu", rd=[f"v{S + i}", f"v{Lreg[x]}"],
                        wr=[f"v{Lreg[x]}"], deps=[(op, 1)], dead=min(sdead, pdead + 8))
                ad.prio = (pdead - 4 + i, u, 3 * i + 2)
                F.append(ad)
                ladds[x].append(ad)
            if i % 2:
                P = Preg[kap, x] + 2 * (j % 2) + i // 2
                cv = Op(f"v_cvt_pk_bf16_f32 v{P}, v{S + i - 1}, v{S + i}", "valu",
                        rd=[f"v{S + i - 1}", f"v{S + i}"], wr=[f"v{P}"], deps=[(ex[i - 1], 1), (op, 1)],
                        early=Pfree[kap, x], dead=pdead)
                assert Pfree[kap, x] <= pdead, ("P pool too small", kap, x)
                cv.prio = (pdead - 4 + i, u, 3 * i + 1)
                F.append(cv)
    lastsm = F[-12 * a.ns:]
    for key, op in [(("K",) + k, o) for k, o in kr.items()] + [(("V",) + k[:2], o) for k, o in vr.items()]:
        fu = first_use[key]
        mf[fu].needs.append(op)
        if op.idx is None:
            op.early = max(Ffree[key], pub[key[0], key[1] // 2 if key[0] == "K" else key[1]],
                           fu - (a.fhoist if a.fhoist and key[0] == "V" and key[1] >= gstart[G - 1] // 2 else a.hoist))
            op.dead = max(fu - a.lat, op.early)
            assert op.dead < fu
            op.prio = (op.dead - a.rdbias, -1, fu)
            F.append(op)

    tq = Sreg + NM
    tfree = {b: None for b in tq}
    tdead = max(last_use["S", 31, x] for x in range(4))
    lastsync = epochs[-1]["gc"] + 1
    epi_order = list(dict.fromkeys(int(c) for c in a.final if c.isdigit()))
    seqn = [0]
    mfpos = {o: i for i, o in enumerate(mf)}
    stage_w, stage_r, mulpair = [], {}, {}

    def epi(text, cls, **kw):
        op = Op(text, cls, **kw)
        seqn[0] += 1
        op.prio = (10 ** 8, seqn[0], 0)
        if a.eprio:
            src = [mfpos[d] for d, _ in op.deps if d in mfpos] + [d.prio[0] - a.eprio for d, _ in op.deps if d not in mfpos]
            op.prio = (max(src) + a.eprio, seqn[0], 0)
        F.append(op)
        return op

    rcp, wrs_of = {}, {x: [] for x in range(4)}

    def recip(x):
        rl, L = vRL[x], Lreg[x]
        if x in ones_x:
            prev = epi(f"v_accvgpr_read_b32 v{rl}, a{L}", "valu", rd=[f"a{L}"], wr=[f"v{rl}"],
                       deps=[(mf[last_use["L", x]], 8)], early=lastsync)
            L = rl
        else:
            prev = None
            for sw in ("v_permlane32_swap_b32", "v_permlane16_swap_b32"):
                m1 = epi(f"v_mov_b32 v{rl}, v{L}", "valu", rd=[f"v{L}"], wr=[f"v{rl}"], early=lastsync,
                         deps=[(prev, 0)] if prev else [(o, 0) for o in ladds[x][-16:]])
                m2 = epi(f"{sw} v{rl}, v{L}", "valu", rd=[f"v{L}", f"v{rl}"], wr=[f"v{L}", f"v{rl}"], deps=[(m1, 2)])
                prev = epi(f"v_add_f32 v{L}, v{L}, v{rl}", "valu", rd=[f"v{L}", f"v{rl}"], wr=[f"v{L}"], deps=[(m2, 0)])
        cm = epi(f"v_cmp_nge_f32 s[{sBAD + 2 * x}:{sBAD + 2 * x + 1}], s{sTHR}, v{L}", "valu", rd=[f"v{L}"],
                 wr=[f"s{sBAD + 2 * x}"], deps=[(prev, 0)])
        rcp[x] = epi(f"v_rcp_f32 v{rl}, v{L}", "trans", rd=[f"v{L}"], wr=[f"v{rl}"], deps=[(cm, 0)])

    def epi_rows(x, h):
        n, (p, ob) = NM[x], Oreg[x]
        if x not in rcp:
            r0 = epi(f"v_accvgpr_read_b32 v{n}, a{Lreg[x]}", "valu", rd=[f"a{Lreg[x]}"], wr=[f"v{n}"],
                     deps=[(mf[last_use["L", x]], 8)])
            cm = epi(f"v_cmp_nge_f32 s[{sBAD + 2 * x}:{sBAD + 2 * x + 1}], s{sTHR}, v{n}", "valu", rd=[f"v{n}"],
                     wr=[f"s{sBAD + 2 * x}"], deps=[(r0, 0)])
            rc = epi(f"v_rcp_f32 v{n}, v{n}", "trans", rd=[f"v{n}"], wr=[f"v{n}"], deps=[(cm, 0)])
            lw = epi(f"ds_write_b32 v{vLW}, v{n}", "ldsw", rd=[f"v{vLW}", f"v{n}"],
                     deps=[(rc, 1)] + [(o, 0) for o in rcp.values()])
            lw.cost = 8
            rcp[x] = epi(f"ds_read_b128 {rr('v', n, 4)}, v{vLR}", "ldsr", rd=[f"v{vLR}"], wr=regs("v", n, 4),
                         deps=[(lw, 0)])
        xi = epi_order.index(x)
        so, region = (xi % 2) * TILE + 2048 * h, (xi % 2, h)
        X, mu = [], []
        for b in range(4 * h, 4 * h + 4):
            prod, o = mf[last_use["O", x, b]], ob + 4 * b
            if p == "a":
                t, rel = spare.pop(0)
                src = [[(epi(f"v_accvgpr_read_b32 v{t + i}, a{o + i}", "valu", rd=[f"a{o + i}"], wr=[f"v{t + i}"],
                             deps=[(prod, 8)], early=rel), 0)] for i in range(4)]
            else:
                t, src = o, [[(prod, 8)]] * 4
            X.append(t)
            mu.append([epi(f"v_mul_f32 v{t + i}, v{n + i}, v{t + i}", "valu", rd=[f"v{n + i}", f"v{t + i}"],
                           wr=[f"v{t + i}"], deps=src[i] + [(rcp[x], a.stdist)], needs=[rcp[x]]) for i in range(4)])
            for i in (0, 2):
                mulpair[mu[-1][i]] = (mu[-1][i + 1],
                                      f"v_pk_mul_f32 {rr('v', t + i, 2)}, {rr('v', t + i, 2)}, {rr('v', n + i, 2)}")
            if b % 2 == 0:
                continue
            k = b % 4 - 1
            if k == 0:
                cv = {}
            for i in range(4):
                d = X[i % 2] + (i & 2) + k // 2
                after = [cv[0, i - 1]] if k == 0 and i % 2 else [cv[0, i | 1]] if k else []
                cv[k, i] = epi(f"v_cvt_pk_bf16_f32 v{d}, v{X[k] + i}, v{X[k + 1] + i}", "valu",
                               rd=[f"v{X[k] + i}", f"v{X[k + 1] + i}"], wr=[f"v{d}"],
                               deps=[(mu[k][i], 0), (mu[k + 1][i], 0)] + [(o, 0) for o in after])
        wrs = []
        for i in range(4):
            d = X[i % 2] + (i & 2)
            wrs.append(epi(f"ds_write_b64 v{vOW}, {rr('v', d, 2)} offset:{so + 512 * i}", "ldsw",
                           rd=[f"v{vOW}"] + regs("v", d, 2), early=10 ** 9,
                           deps=[(cv[0, i], 0), (cv[2, i], 0)] + [(r, 0) for r in stage_r.get(region, [])]))
        stage_w.extend(wrs)
        stage_r[region] = []
        for m in range(2):
            d = X[2 + m]
            rds = [epi(f"ds_read_b64_tr_b16 {rr('v', d + 2 * t, 2)}, v{(vOR, vOR1)[t]} offset:{so + 1024 * m}", "ldsr",
                       rd=[f"v{(vOR, vOR1)[t]}"], wr=regs("v", d + 2 * t, 2),
                       deps=[(w, 0) for w in wrs[2 * m:2 * m + 2]] + [(cv[2, i], 0) for i in range(4)])
                   for t in range(2)]
            stage_r[region] += rds
        for m in range(2):
            rds = stage_r[region][2 * m:2 * m + 2]
            off = f" offset:{128 * h}" if h else ""
            epi(f"buffer_store_dwordx4 {rr('v', X[2 + m], 4)}, v{vOG}, s[{sO}:{sO + 3}], s{sX + 4 * x + 2 * m} offen{off} {st}"
                .rstrip(), "vmem", rd=regs("v", X[2 + m], 4) + [f"v{vOG}"], deps=[(r, a.stdist) for r in rds], needs=rds)

    spare = sorted(ppool.rel.items(), key=lambda kv: kv[1])
    for x, bs in [(x, bs) for xs, bs in final_parts for x in xs]:
        if a.pa:
            for h in sorted({b // 4 for b in bs}):
                epi_rows(x, h)
            continue
        assert a.half or len(bs) == 8
        if x not in rcp:
            recip(x)
        xi = epi_order.index(x)
        rl, rc, wrs = vRL[x], rcp[x], wrs_of[x]
        p, ob = Oreg[x]
        so = (xi % 2) * TILE
        for b in bs:
            region = (xi % 2, b // 4 if a.half else 0)
            prod = mf[last_use["O", x, b]]
            o = ob + 4 * b
            if p == "a":
                t = tq.pop(0)
                tq.append(t)
                dep0 = [(d, 0) for d in (tfree[t] or lastsm)]
                src4 = [[(epi(f"v_accvgpr_read_b32 v{t + i}, a{o + i}", "valu", rd=[f"a{o + i}"], wr=[f"v{t + i}"],
                              deps=[(prod, 8)] + dep0, early=tdead + 1), 0)] for i in range(4)]
            else:
                t = o
                src4 = [[(prod, 8)] for i in range(4)]
            mu = [epi(f"v_mul_f32 v{t + i}, v{rl}, v{t + i}", "valu", rd=[f"v{rl}", f"v{t + i}"], wr=[f"v{t + i}"],
                      deps=src4[i] + [(rc, 1)]) for i in range(4)]
            for i in (0, 2):
                sel = "op_sel:[0,1] op_sel_hi:[1,1]" if rl % 2 else "op_sel_hi:[1,0]"
                mulpair[mu[i]] = (mu[i + 1], f"v_pk_mul_f32 {rr('v', t + i, 2)}, {rr('v', t + i, 2)}, "
                                             f"{rr('v', rl & ~1, 2)} {sel}")
            c0 = epi(f"v_cvt_pk_bf16_f32 v{t}, v{t}, v{t + 1}", "valu", rd=[f"v{t}", f"v{t + 1}"], wr=[f"v{t}"],
                     deps=[(mu[0], 0), (mu[1], 0)])
            c1 = epi(f"v_cvt_pk_bf16_f32 v{t + 1}, v{t + 2}, v{t + 3}", "valu", rd=[f"v{t + 2}", f"v{t + 3}"],
                     wr=[f"v{t + 1}"], deps=[(mu[2], 0), (mu[3], 0), (c0, 0)])
            w = epi(f"ds_write_b64 v{vOW}, {rr('v', t, 2)} offset:{so + 32 * b}", "ldsw",
                    rd=[f"v{vOW}", f"v{t}", f"v{t + 1}"], early=10 ** 9,
                    deps=[(c0, 0), (c1, 0)] + [(r, 0) for r in stage_r.get(region, [])])
            wrs.append(w)
            stage_w.append(w)
            if p == "a":
                tfree[t] = [w]
            if b % (4 if a.half else 8) != (3 if a.half else 7):
                continue
            if a.half:
                h = b // 4
                pieces = [(ob + 16 * h + 4 * n, so + 544 * n + 128 * h, 2 * n, 128 * h) for n in range(2)]
            else:
                pieces = [(ob + 4 * i, so + 272 * i, i, 0) for i in range(4)]
            rds = [epi(f"ds_read_b128 {rr(p, r, 4)}, v{vOR} offset:{lo}", "ldsr", rd=[f"v{vOR}"], wr=regs(p, r, 4),
                       deps=[(w, 0) for w in wrs]) for r, lo, _, _ in pieces]
            stage_r[region] = rds
            for rd_, (r, _, gi, go) in zip(rds, pieces):
                if str(x) in a.dbgnost:
                    continue
                stx = (st.split("/") * 4)[xi]
                off = f" offset:{go}" if go else ""
                epi(f"buffer_store_dwordx4 {rr(p, r, 4)}, v{vOG}, s[{sO}:{sO + 3}], s{sX + 4 * x + gi} offen{off} {stx}".rstrip(),
                    "vmem", rd=regs(p, r, 4) + [f"v{vOG}"], deps=[(rd_, a.stdist)], needs=[rd_])

    pending = sorted(F, key=lambda o: o.prio)
    overflow = 0
    leads = []

    def ready(op, strict=True):
        if op.early > E.gap:
            return False
        for d, dist in op.deps:
            if d.idx is None or (strict and E.nst - d.st < dist):
                return False
        return True

    def put(op):
        if op.cls == "ldsr":
            finalize_read(op)
        if op.needs:
            E.lds_wait(op.needs)
        E.emit(op)
        pending.remove(op)

    def closure(op, acc):
        assert op.early <= E.gap, ("cannot meet deadline", op.text, op.tag, op.early, E.gap)
        for d, _ in op.deps:
            if d.idx is None and d not in acc:
                assert d.cls != "mfma", ("deadline before producer", op.text, E.gap)
                closure(d, acc)
        if op not in acc:
            acc.append(op)

    def drain(merge_mul=False):
        while True:
            cand = [o for o in pending if ready(o)] or [o for o in pending if ready(o, False)]
            if not cand:
                return
            o = cand[0]
            if merge_mul and o in mulpair and mulpair[o][0].idx is None and ready(mulpair[o][0], False):
                o2, o.text = mulpair[o]
                o.rd += o2.rd
                o.wr += o2.wr
                put(o)
                o2.idx, o2.st = o.idx, o.st
                pending.remove(o2)
            else:
                put(o)

    def signal(ep):
        for t in ep["tiles"]:
            assert t in dma_op and dma_op[t].idx is not None, ("tile not issued before its epoch", t, ep)
            leads.append(E.gap - dma_op[t].gap)
        stamp("b")
        if ep["n"] >= len(epochs) - 2:
            stamp("e")
        E.vm_wait([dma_op[t] for t in ep["tiles"]])
        stamp("w")
        ep["rel"] = [t for t, rs in tile_reads.items() if t not in released and t in slot_of and
                     all(r.idx is not None and (not ep["bar"] or r.ldsn < E.lds_done) for r in rs)]
        released.update(ep["rel"])

    def passed(ep):
        if ep["n"] == 1:
            for s in range(q0, q0 + 16, 2):
                free_slots["K" if s < NK else "V"].append(s)
        for t in ep["rel"]:
            free_slots[t[0]].append(slot_of[t])
        if ("K", 11) in slot_of and all(s in free_slots["K"] for s in range(0, 8, 2)):
            for w in stage_w:
                w.early = min(w.early, E.gap)

    dper = [int(x.split("x")[0]) for x in a.dmaper.split(",") for _ in range(int((x + "x1").split("x")[1]))]
    next_dma_gap = G0 + a.dma0
    staged = None
    for g in range(-1, NMF):
        E.gap = g
        if g >= 0:
            E.emit(mf[g])
        if g in qgap:
            drain()
            q_prepare(qgap[g])
            if g == G0:
                stamp()
            E.lds_wait(mf[g + 1].needs)
            continue
        shadow = True
        budget = 8 if g < tdead + a.fstart else (a.fbudget * (g + 1) // 4 - a.fbudget * g // 4) * 4
        budget0 = budget
        fixed_mem, fixed_valu = [], []
        for ep in epochs:
            if ep["bar"]:
                if g == ep["gc"]:
                    signal(ep)
                    e("s_barrier", "barrier")
                    stamp("b")
                    if ep["n"] >= len(epochs) - 2:
                        stamp("e")
                    passed(ep)
                    shadow = False
                continue
            if g == ep["gs"] - 1:
                fixed_valu.append(Op(f"v_mov_b32 v{vFE}, {ep['n']}", "valu", wr=[f"v{vFE}"]))
            if g == ep["gs"]:
                signal(ep)
                shadow = False
                E.emit(Op(f"ds_write_b32 v{vFW}, v{vFE}", "ldsw", rd=[f"v{vFW}", f"v{vFE}"]))
                budget -= 8
            if g == ep["gr"]:
                ep["rd"] = Op(f"ds_read_b32 v{vFT}, v{vFR}", "ldsr", rd=[f"v{vFR}"], wr=[f"v{vFT}"])
                fixed_mem.append(ep["rd"])
            if g == ep["gc"] - 1:
                if E.lds_wait([ep["rd"]], a.lat):
                    shadow = False
                fixed_valu.append(Op(f"v_cmp_gt_u32 vcc, {ep['n']}, v{vFT}", "valu", rd=[f"v{vFT}"], wr=["vcc"]))
            if g == ep["gc"]:
                e(f"s_cbranch_vccnz L_spin{ep['n']}")
                E.label(f"L_ok{ep['n']}")
                passed(ep)
                shadow = False
        if a.stamps and g in [first_use["S", gs, 0] for gs in (4, 8, 12, 16, 20, 24, 28)] + [tdead]:
            stamp()
        if g >= NMF - 145 and (NMF - 1 - g) % 36 == 0:
            stamp("e")
        if g > G0 and (g - G0) % a.stampper == 1:
            stamp("p")
        if g + 1 < NMF and mf[g + 1].needs and all(n.idx is not None for n in mf[g + 1].needs):
            if E.lds_wait(mf[g + 1].needs, a.lat):
                shadow = False
        quiet = not any(not ep["bar"] and g + 1 in (ep["gs"] - 1, ep["gs"], ep["gr"], ep["gc"] - 1) for ep in epochs)
        if staged is not None:
            for o in staged:
                E.emit(o)
            staged = None
            budget -= a.dmacost
        elif shadow and quiet and di < len(dma_order) and g >= next_dma_gap and slot_for(dma_order[di]) is not None:
            pre, staged = make_dma(dma_order[di])
            di += 1
            E.emit(pre)
            next_dma_gap = max(next_dma_gap, g - 4) + dper[0]
            if len(dper) > 1:
                dper.pop(0)
        budget -= 4 * (len(fixed_mem) + len(fixed_valu))
        full = budget >= 8
        picks = []
        for o in pending:
            if o.dead <= g:
                closure(o, picks)
        budget -= sum(o.cost for o in picks)
        cand = [o for o in pending[:400] if o not in picks and ready(o)]
        if full and not picks and cand:
            first = cand[0]
            small = [o for o in cand if o.cost == 4]
            tr = [o for o in cand if o.cls == "trans"]
            if first.cost == 4 and len(small) < 2 and tr:
                first = tr[0]
            picks.append(first)
            budget -= first.cost
        for o in cand:
            if o not in picks and o.cost <= budget:
                picks.append(o)
                budget -= o.cost
        mem = [o for o in picks if o.cls in ("ldsr", "ldsw", "vmem") and all(d.idx is not None for d, _ in o.deps)]
        rest = [o for o in picks if o not in mem]
        for o in fixed_mem:
            E.emit(o)
        for o in mem:
            put(o)
        for o in fixed_valu:
            E.emit(o)
        while rest:
            o = ([o for o in rest if ready(o)] or [o for o in rest if ready(o, False)])[0]
            put(o)
            rest.remove(o)
        while budget > 0:
            more = [o for o in pending[:400] if o.cls == "valu" and ready(o)]
            if not more:
                break
            put(more[0])
            budget -= 4
        if full and not picks and budget >= 8 and any(ready(o, False) for o in pending[:400]):
            e("s_nop 1", "nop")
        if a.touch and g == a.touch:
            e(f"buffer_load_dword v15, v{vOG}, s[{sO}:{sO + 3}], 0 offen nt", "vmem", rd=[f"v{vOG}"], wr=["v15"])
        if a.dbgnop:
            n0, n1, ev, ln = [int(x) for x in a.dbgnop.split(",")]
            if n0 <= g < n1 and g % ev == 0:
                e(f"s_nop {ln}", "nop")
        if g > G0:
            overflow += max(0, budget0 - budget - 8)
        if g + 1 < NMF and mf[g + 1].needs:
            E.lds_wait(mf[g + 1].needs)
    assert staged is None and di == len(dma_order) and issued == [len(items)] * 2
    stamp()
    ntail = len(pending)
    n0 = len(E.out)
    drain(a.pk)
    overflow += sum(o.cost for o in E.out[n0:])
    assert not pending
    stamp("x")

    e(f"s_or_b64 s[{sBAD}:{sBAD + 1}], s[{sBAD}:{sBAD + 1}], s[{sBAD + 2}:{sBAD + 3}]")
    e(f"s_or_b64 s[{sBAD + 4}:{sBAD + 5}], s[{sBAD + 4}:{sBAD + 5}], s[{sBAD + 6}:{sBAD + 7}]")
    e(f"s_or_b64 s[{sBAD}:{sBAD + 1}], s[{sBAD}:{sBAD + 1}], s[{sBAD + 4}:{sBAD + 5}]")
    e(f"s_cselect_b32 s{sTMP}, 1, 0")
    e(f"s_lshl_b32 s{sC}, s{sW}, 2")
    e(f"s_add_u32 s{sC}, s{sC}, {FLAG_OFF}")
    va(f"v_mov_b32 v12, s{sC}")
    va(f"v_mov_b32 v13, s{sTMP}")
    va(f"v_mov_b32 v14, {FLAG_OFF}")
    e("ds_write_b32 v12, v13", "ldsw", rd=["v12", "v13"])
    E.lds_drain()
    e("s_barrier", "barrier")
    e("ds_read_b128 v[16:19], v14", "ldsr", rd=["v14"], wr=regs("v", 16, 4))
    E.lds_drain()
    v("v_or3_b32 v16, v16, v17, v18", ["v16"], regs("v", 16, 3))
    v("v_or_b32 v16, v16, v19", ["v16"], ["v16", "v19"])
    v(f"v_readfirstlane_b32 s{sTMP}, v16", [f"s{sTMP}"], ["v16"])
    e(f"s_andn2_b32 s{sTMP}, s{sTMP}, s{sMODE}", rd=[f"s{sTMP}"])
    e("s_cbranch_scc1 L_rerun")
    if a.stamps:
        e("s_waitcnt vmcnt(0)", "wait")
        stamp("x")
        E.lds_drain()
        e(f"s_mov_b32 s{sWS + 2}, 1048576")
        e(f"s_mov_b32 s{sWS + 3}, 0x20000")
        e(f"s_lshl_b32 s{sTMP}, s2, 2")
        e(f"s_add_u32 s{sTMP}, s{sTMP}, s{sW}")
        e(f"s_mul_i32 s{sTMP}, s{sTMP}, {8 * nstamp[0]}")
        va("v_mov_b32 v12, 0")
        for i in range(nstamp[0]):
            va(f"v_mov_b32 v14, s{stampreg[i]}")
            va(f"v_mov_b32 v15, s{stampreg[i] + 1}")
            e(f"buffer_store_dwordx2 v[14:15], v12, s[{sWS}:{sWS + 3}], s{sTMP} offen offset:{8 * i}", "vmem",
              rd=["v14", "v15", "v12"])
            e("s_nop 1", "nop")
    if a.report >= 0:
        r = stampreg[a.report]
        e("s_mov_b32 s94, s86")
        if a.reportwg:
            e(f"s_lshr_b32 s{sTMP}, s2, 5")
            e(f"s_cmp_lg_u32 s{sTMP}, {a.reportwg - 1}")
            e("s_cbranch_scc1 L_end")
        e(f"s_sub_u32 s{sTMP}, s{r}, s94")
        e(f"s_mul_i32 s{sTMP}, s{sTMP}, 5")
        e(f"s_add_u32 s{sTMP}, s{sTMP}, 3000")
        E.label("L_diag2")
        e("s_memrealtime s[92:93]", "smem")
        e("s_waitcnt lgkmcnt(0)", "wait")
        e("s_sub_u32 s92, s92, s94")
        e(f"s_cmp_lt_u32 s92, s{sTMP}")
        e("s_cbranch_scc1 L_diag2")
    if a.spin:
        e("s_waitcnt vmcnt(0)", "wait")
        E.label("L_diag")
        e("s_memrealtime s[62:63]", "smem")
        e("s_waitcnt lgkmcnt(0)", "wait")
        e("s_sub_u32 s62, s62, s60")
        e(f"s_cmp_lt_u32 s62, {a.spin * 100}")
        e("s_cbranch_scc1 L_diag")
    E.label("L_end")
    e("s_endpgm", "end")

    for ep in epochs:
        if not ep["bar"]:
            E.label(f"L_spin{ep['n']}")
            e(f"ds_read_b32 v{vFT}, v{vFR}", "ldsr", rd=[f"v{vFR}"], wr=[f"v{vFT}"])
            e("s_waitcnt lgkmcnt(0)", "wait")
            v(f"v_cmp_gt_u32 vcc, {ep['n']}, v{vFT}", ["vcc"], [f"v{vFT}"])
            e(f"s_cbranch_vccnz L_spin{ep['n']}")
            e(f"s_branch L_ok{ep['n']}")
    E.label("L_codeend")

    E.label("L_rerun")
    e(f"s_mov_b32 s{sMODE}, 1")
    e("s_waitcnt vmcnt(0) lgkmcnt(0)", "wait")
    e("s_barrier", "barrier")
    va("v_mbcnt_lo_u32_b32 v0, -1, 0")
    va("v_mbcnt_hi_u32_b32 v0, -1, v0")
    e(f"s_lshl_b32 s{sTMP}, s{sW}, 6")
    va(f"v_add_u32 v0, s{sTMP}, v0")
    e("s_branch L_start")

    E.label("L_maxpass")
    va(f"v_bfe_u32 v{vT1}, v{vLN}, 2, 2")
    va(f"v_lshrrev_b32 v{vT2}, 4, v{vLN}")
    va(f"v_lshl_add_u32 v{vT2}, v{vT2}, 4, {BIAS}")
    va(f"v_lshl_add_u32 v{vT1}, v{vT1}, 8, v{vT2}")
    va(f"v_and_b32 v{UT}, 1, v{vLN}")
    va(f"v_lshl_add_u32 v{vT2}, v{UT}, {lg(qS[2])}, v{vT1}")
    va(f"v_bfe_u32 v{UT}, v{vLN}, 1, 1")
    va(f"v_lshl_add_u32 v{vT2}, v{UT}, {lg(qS[3])}, v{vT2}")
    va(f"v_and_b32 v{UT}, 3, v{vLN}")
    va(f"v_lshl_add_u32 v{vT1}, v{UT}, 10, v{vT1}")
    for x in range(4):
        for s in range(4):
            e(f"buffer_load_dwordx4 {rr('v', QT + 4 * s, 4)}, v{vT2}, s[{sQ}:{sQ + 3}], s{sX + 4 * x} offen offset:{64 * s}",
              "vmem", rd=[f"v{vT2}"], wr=regs("v", QT + 4 * s, 4))
        e("s_waitcnt vmcnt(0)", "wait")
        for s in range(4):
            q_scale(x, s)
    e(f"s_mov_b32 s{sTMP}, 0")
    E.label("L_maxloop")
    for s in range(4):
        e(f"buffer_load_dwordx4 {rr('v', QT + 4 * s, 4)}, v{vT1}, s[{sK}:{sK + 3}], s{sTMP} offen offset:{64 * s}",
          "vmem", rd=[f"v{vT1}"], wr=regs("v", QT + 4 * s, 4))
    e("s_waitcnt vmcnt(0)", "wait")
    for x in range(4):
        S = Sreg[x]
        for s in range(4):
            C, cr = ("0", []) if s == 0 else (rr("v", S, 4), regs("v", S, 4))
            E.emit(Op(f"v_mfma_f32_16x16x32_bf16 {rr('v', S, 4)}, {rr('v', QT + 4 * s, 4)}, {rr('a', Qreg[x][s], 4)}, {C}",
                      "mfma", rd=regs("v", QT + 4 * s, 4) + regs("a", Qreg[x][s], 4) + cr, wr=regs("v", S, 4), srcc=cr))
    e("s_nop 7", "nop")
    for x in range(4):
        S, n = Sreg[x], NM[x]
        v(f"v_max3_f32 v{n}, v{S}, v{S + 1}, v{n}", [f"v{n}"], [f"v{S}", f"v{S + 1}", f"v{n}"])
        v(f"v_max3_f32 v{n}, v{S + 2}, v{S + 3}, v{n}", [f"v{n}"], [f"v{S + 2}", f"v{S + 3}", f"v{n}"])
    e(f"s_add_u32 s{sTMP}, s{sTMP}, 4096")
    e(f"s_cmp_lt_u32 s{sTMP}, 131072")
    e("s_cbranch_scc1 L_maxloop")
    e("s_nop 3", "nop")
    e("s_branch L_maxdone")

    ops, nnop = fix_hazards(E.out)
    if a.pads:
        ops = insert_pads(ops)
    if a.verbose:
        print("G0", G0, "tdead", tdead)
        print([(ep["gs"], ep["gc"], [t[0] + str(t[1]) for t in ep["tiles"]]) for ep in epochs])
        print("leads", leads)
        print("stores", [o.gap for o in E.out if "buffer_store" in o.text])
    info = dict(mfma=NMF, instrs=len(ops), nops=nnop, overflow=overflow, tail=ntail, epochs=len(epochs),
                minlead=min(leads[a.ninit:]), pslots=len(Pbases), fslots=len(Fbases), stamps=nstamp[0])
    head = [
        "; GQA attention forward, B=32 Hq=32 Hkv=8 Sq=64 Sk=512 D=128, bf16 in / bf16 out (generated schedule).",
        "; kernarg: q @0, k @8, v @16, out @24, debug @32, ws @40",
        "; One workgroup per (batch, kv head); wave w handles q head 4*hkv+w.",
        "; Softmax shift: row max of the first keys; a final check on the row sums reruns the",
        "; workgroup with the true row max (L_rerun / L_maxpass) whenever that shift is unsafe.",
        f"; @launch grid=(256,1,1) block=(256,1,1) lds={LDS_BYTES}",
        '.amdgcn_target "amdgcn-amd-amdhsa--gfx950"', ".text", f".globl {KNAME}", ".p2align 8",
        f".type {KNAME},@function", f"{KNAME}:"]
    body = [(o.text if o.cls == "label" else "    " + o.text) for o in ops]
    tail = ['.section .rodata,"a"', ".p2align 6", f".amdhsa_kernel {KNAME}",
            "  .amdhsa_next_free_vgpr 512", "  .amdhsa_next_free_sgpr 102", "  .amdhsa_accum_offset 256",
            "  .amdhsa_group_segment_fixed_size 0", "  .amdhsa_kernarg_size 48", "  .amdhsa_user_sgpr_count 2",
            "  .amdhsa_user_sgpr_kernarg_segment_ptr 1", "  .amdhsa_system_sgpr_workgroup_id_x 1",
            ".end_amdhsa_kernel"]
    return "\n".join(head + body + tail) + "\n", info


def parser():
    ap = argparse.ArgumentParser()
    ap.add_argument("out")
    for k, d in dict(groups="2,2,4,4,4,4,4,8", final="0a,1a,2a,3a,0b,1b,2b,3b", ones="0123", oacc="2", ld="nt", st="sc1 nt", sync="bar",
                     merge="12,12,40", win="10,10,16", dmaper="29x17,22", stampat="m", dbgnop="", dbgnost="", deven="2,3,4", dodd="5,3,4").items():
        ap.add_argument("--" + k, default=d)
    for k, d in dict(ns=5, lag=3, lat=6, skew=8, nbar=1, dmacost=8, dma0=8, rdbias=8, hoist=64, stdist=12, q0=10,
                     ninit=3, infl=8, halftop=0, prek=2, prev=1, nc0=3, nmax=1, fbudget=14, fstart=16, pk=1,
                     half=1, touch=0, report=-1, reportwg=0, eprio=8, pa=1, sumearly=2, smooth=2, fhoist=80, rot=1, remap=1, rotmask=15, rotrev=0, qrot=3, kvs=0, qs=0, dbgswap=0, infl0=0, infl1=0, pvend=0, pvgam=100, qrun=1, snake=1, stampper=60, stamps=0, spin=0, pfcode=1, pads=1, verbose=0).items():
        ap.add_argument("--" + k, type=int, default=d)
    return ap


if __name__ == "__main__":
    a = parser().parse_args()
    txt, info = build(a)
    open(a.out, "w").write(txt)
    print(a.out, info)
```

```python
import argparse, math, re, struct, sys

KNAME = "standalone__gqa_softmax__near_ridge_kernel"
TILE = 4352
GRAN = 1088
NSLOT = 36
LDS_BYTES = 163840
FLAG_OFF = NSLOT * TILE
SYNC_OFF = FLAG_OFF + 256


def f32bits(x):
    return struct.unpack("<I", struct.pack("<f", x))[0]


def regs(p, lo, n):
    return [f"{p}{lo + i}" for i in range(n)]


def rr(p, lo, n):
    return f"{p}[{lo}:{lo + n - 1}]" if n > 1 else f"{p}{lo}"


class Op:
    __slots__ = ("text", "cls", "rd", "wr", "deps", "early", "dead", "prio", "needs", "idx", "gap",
                 "ldsn", "pre", "vmn", "tag", "srcc", "st", "cost")

    def __init__(self, text, cls, rd=(), wr=(), deps=(), early=-1, dead=10 ** 9, needs=(), pre=None, tag=None,
                 srcc=()):
        self.text, self.cls = text, cls
        self.rd, self.wr = list(rd), list(wr)
        self.deps = list(deps)
        self.early, self.dead = early, dead
        self.needs = list(needs)
        self.idx = None
        self.gap = None
        self.ldsn = None
        self.vmn = None
        self.pre = pre
        self.tag = tag
        self.prio = 0
        self.srcc = list(srcc)
        self.cost = COST.get(cls, 4)


COST = dict(trans=8, valu=4, ldsr=4, ldsw=12, vmem=20, salu=4)


class Emitter:
    def __init__(self):
        self.out = []
        self.nlds = 0
        self.lds_done = 0
        self.lds_gap = []
        self.nvm = 0
        self.vm_done = 0
        self.gap = -1
        self.nst = 0

    def emit(self, op):
        self.nst += states(op)
        op.st = self.nst
        op.idx = len(self.out)
        op.gap = self.gap
        if op.cls in ("ldsr", "ldsw"):
            op.ldsn = self.nlds
            self.nlds += 1
            self.lds_gap.append(self.gap)
        if op.cls == "vmem":
            op.vmn = self.nvm
            self.nvm += 1
        self.out.append(op)
        return op

    def raw(self, text, cls="salu", **kw):
        return self.emit(Op(text, cls, **kw))

    def label(self, name):
        self.out.append(Op(name + ":", "label"))

    def lds_wait(self, needs, lat=None):
        need = max((n.ldsn for n in needs), default=-1) + 1
        if need <= self.lds_done:
            return False
        if lat is not None:
            k = need
            while k < self.nlds and self.lds_gap[k] <= self.gap - lat:
                k += 1
            need = k
        n = min(self.nlds - need, 15)
        self.raw(f"s_waitcnt lgkmcnt({n})", "wait")
        self.lds_done = self.nlds - n
        return True

    def lds_drain(self):
        self.raw("s_waitcnt lgkmcnt(0)", "wait")
        self.lds_done = self.nlds

    def vm_wait(self, ops):
        need = max((o.vmn for o in ops), default=-1) + 1
        if need <= self.vm_done:
            return False
        n = min(self.nvm - need, 63)
        self.raw(f"s_waitcnt vmcnt({n})", "wait")
        self.vm_done = self.nvm - n
        return True


def states(op):
    if op.cls == "label":
        return 0
    m = re.match(r"s_nop (\d+)", op.text)
    return int(m.group(1)) + 1 if m else 1


def fix_hazards(ops):
    out = []
    added = 0
    for op in ops:
        if op.cls == "label":
            out.append(op)
            continue
        need = 0
        dist = 0
        rd, wr = set(op.rd), set(op.wr)
        isv = op.cls in ("valu", "trans")
        for p in reversed(out):
            if dist >= 12:
                break
            pw = set(p.wr)
            req = 0
            if p.cls == "mfma":
                if "smfmac" in p.text and op.cls != "mfma" and pw & (rd | wr):
                    req = 12
                elif op.cls == "mfma":
                    ab = rd - set(op.srcc)
                    if pw & ab:
                        req = 8
                    if pw & set(op.srcc) and set(op.srcc) != pw:
                        req = max(req, 6)
                    if pw & wr and set(op.srcc) != pw:
                        req = max(req, 6)
                else:
                    if pw & (rd | wr):
                        req = 8
                    if isv and set(p.srcc) & wr:
                        req = max(req, 3)
            elif p.cls in ("valu", "trans"):
                if op.cls == "mfma" and pw & rd:
                    req = 2
                if p.cls == "trans" and op.cls != "trans" and pw & rd:
                    req = max(req, 1)
                if "permlane" in op.text and pw & rd:
                    req = max(req, 2)
                if ("readfirstlane" in op.text or "readlane" in op.text) and pw & rd:
                    req = max(req, 1)
                sw = {r for r in pw if r[0] == "s" or r == "vcc"}
                if sw & rd:
                    req = max(req, 5 if op.cls == "vmem" else 2)
            elif p.cls == "salu":
                if "m0" in pw and op.cls == "vmem" and "m0" in rd:
                    req = 1
            elif p.cls == "vmem":
                if "store" in p.text and set(p.rd) & wr and op.cls != "salu":
                    req = 2
            need = max(need, req - dist)
            if not (p.tag and p.tag[0] == "arm" and p.tag != op.tag):
                dist += states(p)
        if need > 0:
            out.append(Op(f"s_nop {need - 1}", "nop"))
            added += 1
        out.append(op)
    return out, added


def isize(op):
    t = op.text
    if op.cls == "label":
        return 0
    mn = t.split()[0]
    if op.cls in ("mfma", "xmfma", "ldsr", "ldsw", "vmem", "smem"):
        return 8
    if mn in ("s_getreg_b32", "s_movk_i32", "s_nop", "s_waitcnt", "s_barrier", "s_branch", "s_endpgm") or mn.startswith("s_cbranch"):
        return 4
    if mn.startswith("v_cmp") and " s[" in t:
        return 8
    if mn.startswith(("v_cvt_pk", "v_max3", "v_accvgpr", "v_pk_", "v_lshl_add", "v_add3", "v_bfe", "v_or3", "v_mbcnt",
                      "v_fma")):
        return 8
    for arg in [x.strip() for x in t[len(mn):].split(",")]:
        if re.fullmatch(r"-?(0x[0-9a-f]+|\d+)", arg) and not -16 <= int(arg, 0) <= 64:
            return 8
        if arg.startswith("L_"):
            return 8
    return 4


def insert_pads(ops):
    i0 = next(i for i, o in enumerate(ops) if o.text == "L_main:")
    i1 = next(i for i, o in enumerate(ops) if o.text == "L_end:")
    out, addr, page, pads = ops[:i0], 0, 1, []
    for i in range(i0, len(ops)):
        o = ops[i]
        if i <= i1 and addr >= 4096 * page:
            good = out[-1].cls == "mfma" and o.cls not in ("salu", "wait", "barrier", "nop")
            if good or addr + isize(o) > 4096 * page + 56:
                lab = Op(f"L_pad{len(pads)}:", "label")
                br = Op("", "salu")
                pads.append(br)
                out += [lab, br]
                addr += 4
                page += 1
        out.append(o)
        addr += isize(o)
    assert len(pads) >= 4
    for k, br in enumerate(pads):
        br.text = f"s_cbranch_execz L_pad{k + 4}" if k + 4 < len(pads) else "s_cbranch_execz L_main"
    return out


class Pool:
    def __init__(self, prefix, bases):
        self.prefix = prefix
        self.rel = {b: -1 for b in bases}

    def add(self, base, release):
        self.rel[base] = release

    def take(self, release):
        b = min(self.rel, key=lambda k: (self.rel[k], k))
        prev = self.rel[b]
        self.rel[b] = release
        return b, prev


def build(a):
    groups = [int(x) for x in a.groups.split(",")]
    assert sum(groups) == 32 and all(g % 2 == 0 for g in groups)
    G = len(groups)
    gstart = [sum(groups[:g]) for g in range(G + 1)]
    ones_x = [int(c) for c in a.ones if c.isdigit()]
    oacc_x = [int(c) for c in a.oacc if c.isdigit()]
    addx = [x for x in range(4) if x not in ones_x]
    ld, st = a.ld, a.st
    PK = 2 * a.prek
    flag = a.sync == "flag"
    GV = 1040 if a.pa else GRAN
    assert not a.pa or (a.half and not flag and len(ones_x) == 4)
    E = Emitter()
    e = E.raw

    vK, vV = 1, [2, 3, 4, 5]
    vDK, vDV = (6, 7), (11, 0)
    vOW, vOR, vOG = 8, 9, 10
    vRL = [12, 13, 14, 15]
    vFW, vFR, vFE, vFT = 12, 13, 14, 15
    vIX = 15
    NM = [16 + 4 * x for x in range(4)]
    vnext, anext, vtop = 32, 0, 256
    Lreg = {}
    for x in ones_x:
        Lreg[x] = anext
        anext += 4
    if addx:
        for i, x in enumerate(addx):
            Lreg[x] = vnext + i
        vnext += 4
    Sreg = [vnext + 4 * i for i in range(a.ns)]
    vnext += 4 * a.ns
    Oreg = {}
    for x in range(4):
        if x in oacc_x:
            Oreg[x] = ("a", anext)
            anext += 32
        else:
            vtop -= 32
            Oreg[x] = ("v", vtop)
    Pbases = list(range(vnext, vtop, 4))
    Qreg = [[anext + 16 * x + 4 * s for s in range(4)] for x in range(4)]
    anext += 64
    aONE = anext
    anext += 4
    Fbases = list(range(anext, 256, 4))
    QT = Pbases[-8]
    UT = QT + 16
    vLN, vQA, vT1, vT2 = QT + 24, QT + 25, QT + 26, QT + 27
    vDQ = (QT + 28, QT + 29)
    assert len(Pbases) >= 8 + 4 * a.prek
    kvS = [(256, 512, 1024, 2048, 8192), (256, 512, 1024, 32768, 2048), (256, 512, 16384, 32768, 1024),
           (4096, 8192, 16384, 32768, 256), (256, 8192, 16384, 32768, 512)][a.kvs]
    qS = [(256, 512, 1024, 2048, 4096), (256, 512, 4096, 8192, 1024), (256, 512, 1024, 8192, 2048)][a.qs]
    lg = lambda n: n.bit_length() - 1

    sQ, sK, sV, sO = 12, 16, 20, 24
    sW, sWG, sMODE, sC, sTHR, sQW, sTMP, sT2 = 3, 28, 29, 30, 31, 34, 35, 32
    sWS = 36
    sWV = 38
    sOFF = 64
    sX = 40
    sBAD = 88

    NK = 16
    q0 = a.q0
    vwin = [NK, NK + 16]

    qk_units = [(j, x) for x in range(4) for j in range(PK)] + [(j, x) for j in range(PK, 32) for x in range(4)]
    uidx = {u: i for i, u in enumerate(qk_units)}
    assert gstart[a.prev + 1] >= PK >= gstart[a.prev]
    final_parts = [([int(c) for c in part if c.isdigit()],
                    range(4) if "a" in part else range(4, 8) if "b" in part else range(8)) for part in a.final.split(",")]
    pvq = []
    for g in range(G):
        if g < a.prev:
            for x in range(4):
                u = ([("sum", g, None, x)] if x in ones_x else []) + [("pv", g, b, x) for b in range(8)]
                pvq += [(PK * (x + 1) - 0.5, w) for w in u]
            continue
        if g < G - 1:
            u = [("sum", g, None, x) for x in ones_x] + [("pv", g, b, x) for b in range(8) for x in range(4)]
        else:
            u = []
            for xs, bs in final_parts:
                u += [("sum", g, None, x) for x in xs if x in ones_x and ("sum", g, None, x) not in u]
                u += [("pv", g, b, x) for b in bs for x in xs]
            for w in [w for w in u[1:] if w[0] == "sum"]:
                i = u.index(w)
                u.insert(max(1, i - a.sumearly), u.pop(i))
        lo = 4 * gstart[g + 1] + a.lag
        hi = 4 * gstart[min(g + 2, G)] + a.lag
        if a.pvend and g < G - 1:
            u0, span = 4 * gstart[a.prev + 1] + a.lag, gstart[G - 1] - gstart[a.prev]
            at = lambda t: u0 + (a.pvend - u0) * ((t - gstart[a.prev]) / span) ** (a.pvgam / 100)
            lo = max(lo, at(gstart[g]))
            hi = max(hi, at(gstart[g + 1])) if g < G - 2 else a.pvend
        pvq += [(lo + (hi - lo) * i / len(u) if g < G - 1 else 10 ** 6, w) for i, w in enumerate(u)]
    pvq.sort(key=lambda p: p[0])
    seq, pi = [], 0
    for ui, (j, x) in enumerate(qk_units):
        while pi < len(pvq) and pvq[pi][0] < ui and (ui <= 4 * PK or ui % a.qrun == 0):
            seq.append(pvq[pi][1])
            pi += 1
        seq.append(("qk", j, x))
    seq += [u for _, u in pvq[pi:]]

    M = []
    flip = False
    for n, u in enumerate(seq):
        same = n > 0 and seq[n - 1][0] == u[0] and (u[0] == "qk" or seq[n - 1][1] == u[1])
        flip = a.snake and same and not flip
        ks = list(range(4 if u[0] == "qk" else groups[u[1]] // 2))
        if u[0] == "sum" and a.sparse:
            ks = [k for k in ks if (gstart[u[1]] // 2 + k) % 2]
        for i, k in enumerate(ks[::-1] if flip else ks):
            M.append(("qk", u[1], u[2], k, i == 0) if u[0] == "qk" else (u[0], u[1], u[2], u[3], k))
    NMF = len(M)
    first_use, last_use = {}, {}

    def use(key, i):
        first_use.setdefault(key, i)
        last_use[key] = i

    for i, m in enumerate(M):
        if m[0] == "qk":
            _, j, x, s, _ = m
            use(("K", j, s), i)
            use(("S", j, x), i)
            use(("Q", x, s), i)
        else:
            kind, g, b, x, k = m
            kap = gstart[g] // 2 + k
            use(("P", kap, x), i)
            if kind == "pv":
                use(("V", kap, b), i)
                use(("O", x, b), i)
            else:
                use(("L", x), i)
                if a.sparse:
                    use(("P", kap - 1, x), i)
    qgap = {first_use["S", 0, x] - 1: x for x in range(4)}
    G0 = first_use["S", 0, 3] - 1

    pw = 2 if a.sparse else 1
    ppool = Pool("v", Pbases[len(Pbases) % pw::pw])
    for b in ppool.rel:
        if b >= QT:
            ppool.add(b, G0 + 1)
    Preg, Pfree = {}, {}
    for kap, x in sorted([(k, x) for k in range(0, 16, pw) for x in range(4)], key=lambda p: uidx[2 * p[0], p[1]]):
        b, rel = ppool.take(max(last_use["P", kap + i, x] for i in range(pw)))
        for i in range(pw):
            Preg[kap + i, x], Pfree[kap + i, x] = b + 4 * i, rel
    fpool = Pool("a", Fbases)
    for x in range(4):
        for s in range(4):
            fpool.add(Qreg[x][s], last_use["Q", x, s])
    frags = sorted([k for k in first_use if k[0] in "KV"], key=lambda k: first_use[k])
    Freg, Ffree = {}, {}
    for k in frags:
        Freg[k], Ffree[k] = fpool.take(last_use[k])
        assert Ffree[k] < first_use[k] - a.lat or Ffree[k] < 0, ("frag pool too small", k)

    mf = []
    started = set()
    for i, m in enumerate(M):
        if m[0] == "qk":
            _, j, x, s, head = m
            S = Sreg[uidx[j, x] % a.ns]
            A, B = Freg["K", j, s], Qreg[x][s]
            if head:
                C, cr = ("0", []) if j < a.nc0 else (rr("v", NM[x], 4), regs("v", NM[x], 4))
            else:
                C, cr = rr("v", S, 4), regs("v", S, 4)
            mf.append(Op(f"v_mfma_f32_16x16x32_bf16 {rr('v', S, 4)}, {rr('a', A, 4)}, {rr('a', B, 4)}, {C}", "mfma",
                         rd=regs("a", A, 4) + regs("a", B, 4) + cr, wr=regs("v", S, 4), srcc=cr))
        else:
            kind, g, b, x, k = m
            kap = gstart[g] // 2 + k
            if kind == "pv":
                p, o = Oreg[x][0], Oreg[x][1] + 4 * b
                A = Freg["V", kap, b]
                key = ("O", x, b)
            else:
                p, o, A, key = "a", Lreg[x], aONE, ("L", x)
            B = Preg[kap, x]
            if kind == "sum" and a.sparse:
                mf.append(Op(f"v_smfmac_f32_16x16x64_bf16 {rr(p, o, 4)}, {rr('a', A, 4)}, {rr('v', B - 4, 8)}, v{vIX}",
                             "mfma", rd=regs("a", A, 4) + regs("v", B - 4, 8) + [f"v{vIX}"] + regs(p, o, 4),
                             wr=regs(p, o, 4), srcc=regs(p, o, 4)))
                continue
            C, cr = (rr(p, o, 4), regs(p, o, 4)) if key in started else ("0", [])
            started.add(key)
            ab = [rr('a', A, 4), rr('v', B, 4)]
            if (a.dbgswap or a.pa) and kind == "pv":
                ab.reverse()
            mf.append(Op(f"v_mfma_f32_16x16x32_bf16 {rr(p, o, 4)}, {ab[0]}, {ab[1]}, {C}", "mfma",
                         rd=regs("a", A, 4) + regs("v", B, 4) + cr, wr=regs(p, o, 4), srcc=cr))

    tile_first = {}
    for d in range(16):
        tile_first["K", d] = min(first_use["K", 2 * d, s] for s in range(4))
        tile_first["V", d] = min(first_use["V", d, b] for b in range(8))
    dma_order = sorted(tile_first, key=lambda t: (tile_first[t], t[1]))
    pre_tiles = [t for t in dma_order if tile_first[t] <= G0]
    merge = [int(x) for x in a.merge.split(",")]
    wins = [int(x) for x in a.win.split(",")]
    nbar = a.nbar if flag else 99
    epochs, pub = [], {t: -1 for t in pre_tiles}
    for t in dma_order[len(pre_tiles):]:
        k = len(epochs)
        gc = max(tile_first[t] - wins[min(k, len(wins) - 1)], G0 + 1)
        if epochs and gc < epochs[-1]["gc"] + merge[min(k - 1, len(merge) - 1)]:
            epochs[-1]["tiles"].append(t)
        else:
            isbar = k < nbar
            epochs.append(dict(gc=gc, gr=gc - (0 if isbar else a.lat + 1), gs=gc - (0 if isbar else a.lat + 1 + a.skew),
                               tiles=[t], bar=isbar, n=k + 1))
            assert epochs[-1]["gs"] > G0 and (k == 0 or epochs[-1]["gr"] > epochs[-2]["gc"])
            assert k == 0 or epochs[-1]["gs"] > epochs[-2]["gs"]
        pub[t] = epochs[-1]["gc"]
    free_slots = {"K": [s for s in range(0, NK, 2) if not q0 <= s < q0 + 16],
                  "V": [s for s in range(NK, NSLOT, 2) if not q0 <= s < q0 + 16]}
    slot_of, dma_op = {}, {}
    tile_reads = {t: [] for t in tile_first}
    released = set()

    def slot_for(t):
        c = [s for s in free_slots[t[0]] if not (t[0] == "K" and t[1] >= 12 and s < 8)]
        if t[0] == "K" and 8 <= t[1] < 12:
            c.sort(key=lambda s: s >= 8)
        return c[0] if c else None

    def dma_pair(srd, vo, soff):
        gs = GV if srd == sV else GRAN
        ld = (a.ld.split("/") * 3)[[sQ, sK, sV].index(srd)]
        return [Op(f"buffer_load_dwordx4 v{vo[i]}, s[{srd}:{srd + 3}], s{soff} offen{' offset:%d' % gs if i else ''} {ld} lds"
                   .replace("  ", " "), "vmem", rd=["m0", f"v{vo[i]}"]) for i in range(2)]

    def make_dma(t):
        sl = slot_for(t)
        free_slots[t[0]].remove(sl)
        slot_of[t] = sl
        srd, vo = (sK, vDK) if t[0] == "K" else (sV, vDV)
        pre = Op(f"s_add_u32 m0, s{sWV if t[0] == 'V' and a.pa else sWG}, {sl * TILE}", "salu", wr=["m0"])
        ops = dma_pair(srd, vo, sOFF + t[1])
        dma_op[t] = ops[1]
        return pre, ops

    nstamp = [0]
    stampreg = list(range(56, 64, 2)) + list(range(80, 88, 2)) + [4, 6, 8, 10, 0, 96, 98, 32, 100]

    def stamp(kind="m"):
        if a.stamps and (kind in a.stampat or kind == "x") and (nstamp[0] < 14 or kind == "x"):
            for k, ins in enumerate(("s_memrealtime", "s_memtime")):
                if a.stamps >> k & 1:
                    r = stampreg[nstamp[0]]
                    nstamp[0] += 1
                    e(f"{ins} s[{r}:{r + 1}]", "smem")

    def v(text, wr, rd=(), cls="valu"):
        return e(text, cls, rd=list(rd), wr=list(wr))

    def va(text):
        return v(text, [text.split()[1].rstrip(",")])

    BIAS = GRAN - 1024
    e("s_cmp_ge_u32 s2, 256")
    e("s_cbranch_scc1 L_end")
    if a.spin:
        e("s_memrealtime s[60:61]", "smem")
    if a.report >= 0:
        e("s_memrealtime s[86:87]", "smem")
        e("s_load_dwordx2 s[100:101], s[0:1], 32", "smem")
    e("s_load_dwordx8 s[4:11], s[0:1], 0", "smem")
    if a.stamps:
        e(f"s_load_dwordx2 s[{sWS}:{sWS + 1}], s[0:1], 40", "smem")
    if a.pfcode:
        e("s_getpc_b64 s[96:97]")
        E.label("L_pc")
        e("s_add_u32 s96, s96, L_main-L_pc")
        e("s_addc_u32 s97, s97, 0")
        e("s_mov_b32 s98, L_codeend-L_main")
        e("s_mov_b32 s99, 0x20000")
        e("s_lshr_b32 s95, s2, 3")
        e("s_lshl_b32 s95, s95, 10")
        va("v_lshlrev_b32 v16, 2, v0")
        e(f"buffer_load_dword v{UT}, v16, s[96:99], s95 offen", "vmem", rd=["v16"], wr=[f"v{UT}"])
    if a.remap:
        e(f"s_and_b32 s{sTMP}, s2, 7")
        e(f"s_lshl_b32 s{sTMP}, s{sTMP}, 5")
        e("s_lshr_b32 s2, s2, 3")
        e(f"s_or_b32 s2, s2, s{sTMP}")
    e(f"s_mov_b32 s{sMODE}, 0")
    E.label("L_start")
    va("v_lshrrev_b32 v12, 6, v0")
    va(f"v_and_b32 v{vLN}, 63, v0")
    v(f"v_readfirstlane_b32 s{sW}, v12", [f"s{sW}"], ["v12"])
    va(f"v_lshrrev_b32 v13, 4, v{vLN}")
    va("v_and_b32 v14, 2, v13")
    va(f"v_xor_b32 v14, v14, v{vLN}")
    va(f"v_lshl_add_u32 v{vDQ[0]}, v14, 4, {BIAS}")
    va(f"v_add_u32 v{vDQ[1]}, {(qS[2] - GRAN) & 0xffffffff}, v{vDQ[0]}")
    va(f"v_lshlrev_b32 v12, {lg(kvS[3])}, v12")
    if kvS[:2] != (256, 512):
        va("v_and_b32 v15, 1, v13")
        va(f"v_mul_u32_u24 v15, {kvS[0] - 256}, v15")
        va("v_add_u32 v12, v12, v15")
        va("v_lshrrev_b32 v15, 1, v13")
        va(f"v_mul_u32_u24 v15, {kvS[1] - 512}, v15")
        va("v_add_u32 v12, v12, v15")
    va(f"v_add_u32 v{vDK[0]}, v12, v{vDQ[0]}")
    va(f"v_add_u32 v{vDK[1]}, {(kvS[2] - GRAN) & 0xffffffff}, v{vDK[0]}")
    va("v_and_b32 v14, 1, v13")
    va(f"v_lshlrev_b32 v14, {3 if a.pa else 1}, v14")
    va(f"v_xor_b32 v14, v14, v{vLN}")
    va(f"v_lshl_add_u32 v14, v14, 4, {BIAS}")
    va(f"v_add_u32 v{vDV[0]}, v12, v14")
    va(f"v_add_u32 v{vDV[1]}, {(kvS[2] - GV) & 0xffffffff}, v{vDV[0]}")
    e(f"s_mul_i32 s{sWG}, s{sW}, {2 * GRAN}", rd=[f"s{sW}"])
    if a.pa:
        e(f"s_mul_i32 s{sWV}, s{sW}, {2 * GV}")
    e(f"s_mul_i32 s{sQW}, s{sW}, {4 * TILE}")
    e(f"s_add_u32 s{sQW}, s{sQW}, {q0 * TILE}")
    e(f"s_lshl_b32 s{sTMP}, s2, 2")
    e(f"s_add_u32 s{sTMP}, s{sTMP}, s{sW}")
    if a.qrot:
        e(f"s_lshr_b32 s{sX}, s{sTMP}, {a.qrot - 1}")
        e(f"s_and_b32 s{sX}, s{sX}, 3")
        e(f"s_lshl_b32 s{sX}, s{sX}, {lg(qS[4])}")
    else:
        e(f"s_mov_b32 s{sX}, 0")
    e(f"s_lshl_b32 s{sTMP}, s{sTMP}, 14")
    e(f"s_lshl_b32 s{sC}, s2, 17")
    e(f"s_sub_u32 s{sC}, s{sC}, {BIAS}")
    e(f"s_subb_u32 s{sTHR}, 0, 0")
    e(f"s_sub_u32 s{sT2}, s{sTMP}, {BIAS}")
    e(f"s_subb_u32 s{sT2 + 1}, 0, 0")
    for d, size in ((sK, 131072 + BIAS), (sV, 131072 + BIAS), (sQ, 16384 + BIAS), (sO, 16384)):
        e(f"s_mov_b32 s{d + 2}, {size}")
        e(f"s_mov_b32 s{d + 3}, 0x20000")

    def set_off(j):
        if a.rot and j:
            e(f"s_xor_b32 s{sOFF + j}, s{sOFF}, {j * kvS[4]}")
        elif a.rot:
            e(f"s_lshr_b32 s{sOFF}, s2, {a.rot - 1}")
            e(f"s_and_b32 s{sOFF}, s{sOFF}, {a.rotmask}")
            if a.rotrev:
                e(f"s_brev_b32 s{sOFF}, s{sOFF}")
                e(f"s_lshr_b32 s{sOFF}, s{sOFF}, {32 - a.rotrev}")
            e(f"s_lshl_b32 s{sOFF}, s{sOFF}, {lg(kvS[4])}")
        else:
            e(f"s_mov_b32 s{sOFF + j}, {j * kvS[4]}")

    def set_x(x, g):
        if x or g:
            e(f"s_xor_b32 s{sX + 4 * x + g}, s{sX}, {x * qS[4] + (g >> 1) * qS[3] + (g & 1) * qS[2]}")

    for j in range(a.prek):
        set_off(j)
    e("s_waitcnt lgkmcnt(0)", "wait")
    srd_todo = {sK: (6, sC, f"s{sTHR}"), sQ: (4, sT2, f"s{sT2 + 1}"), sV: (8, sC, f"s{sTHR}"), sO: (10, sTMP, "0")}

    def need_srd(d):
        if d in srd_todo:
            p, lo, hi = srd_todo.pop(d)
            e(f"s_add_u32 s{d}, s{p}, s{lo}")
            e(f"s_addc_u32 s{d + 1}, s{p + 1}, {hi}")

    stamp("x")
    npre = len(pre_tiles)
    di = npre + a.ninit
    items = [make_dma(t) for t in dma_order[:di]]
    items[npre:npre] = [(Op(f"s_add_u32 m0, s{sQW}, {x * TILE + 2 * g * GRAN}", "salu", wr=["m0"]),
                         dma_pair(sQ, vDQ, sX + 4 * x + 2 * g)) for x in range(4) for g in range(2)]
    vm0 = E.nvm
    depth = [[int(z) for z in d.split(",")] for d in (a.deven, a.dodd or a.deven)]
    issued, landed, npoint = [0, 0], [0, 0], [0]

    def clone(o):
        return Op(o.text, o.cls, rd=o.rd, wr=o.wr)

    def point(*steps):
        code = [[], []]
        for vv in range(2):
            def issue():
                pre, ops = items[issued[vv]]
                code[vv] += [clone(pre), Op("s_nop 0", "nop")] + [clone(o) for o in ops]
                ops[1].idx, ops[1].gap, ops[1].vmn = len(E.out), E.gap, vm0 + 2 * issued[vv] + 1
                issued[vv] += 1
            for kind, k in steps:
                if kind == "wait" and landed[vv] <= k:
                    while issued[vv] <= k:
                        issue()
                    code[vv].append(Op(f"s_waitcnt vmcnt({2 * (issued[vv] - k - 1)})", "wait"))
                    landed[vv] = k + 1
                while kind == "top" and issued[vv] < len(items) and issued[vv] - landed[vv] < (depth[vv] + [99])[k]:
                    issue()
        n = npoint[0]
        npoint[0] += 1
        same = [o.text for o in code[0]] == [o.text for o in code[1]]
        for vv in range(2):
            for o in code[vv]:
                o.tag = None if same else ("arm", n, vv)
        if same:
            seq = code[0]
        elif not code[0] or not code[1]:
            seq = ([Op(f"s_cbranch_{'vccnz' if code[0] else 'vccz'} L_j{n}", "salu")] + code[0] + code[1] +
                   [Op(f"L_j{n}:", "label")])
        else:
            seq = ([Op(f"s_cbranch_vccnz L_o{n}", "salu")] + code[0] + [Op(f"s_branch L_j{n}", "salu", tag=("arm", n, 0)),
                   Op(f"L_o{n}:", "label")] + code[1] + [Op(f"L_j{n}:", "label")])
        for o in seq:
            E.emit(o) if o.cls != "label" else E.out.append(o)
        E.nvm, E.vm_done = vm0 + 2 * max(issued), vm0 + 2 * min(landed)

    n0 = min(depth[0][0], depth[1][0])
    for k in range(n0):
        pre, ops = items[k]
        E.emit(pre)
        need_srd(int(re.search(r"s\[(\d+):", ops[0].text).group(1)))
        if npre <= k < npre + 8:
            set_x((k - npre) // 2, 2 * ((k - npre) % 2))
        for o in ops:
            E.emit(o)
    issued[:] = [n0, n0]
    for d in (sK, sQ, sV, sO):
        need_srd(d)
    for x in range(4):
        for g in range(0, 4, 2):
            if npre + 2 * x + g // 2 >= n0:
                set_x(x, g)
    if depth[0] != depth[1]:
        e(f"s_getreg_b32 s{sTMP}, hwreg(HW_REG_XCC_ID, 0, 1)")
        e(f"s_cmp_lg_u32 s{sTMP}, 0")
        e("s_cselect_b64 vcc, -1, 0")
    point(("top", 0))
    for j in range(a.prek, 16):
        set_off(j)
    for x in range(4):
        for g in (1, 3):
            if not a.half:
                set_x(x, g)
    e(f"s_mov_b32 s{sC}, {f32bits(math.log2(math.e) / math.sqrt(128.0)):#x}")
    e(f"s_mov_b32 s{sTHR}, {f32bits(2.0 ** 32):#x}")
    va(f"v_and_b32 v12, 3, v{vLN}")
    va(f"v_bfe_u32 v13, v{vLN}, 2, 2")
    va(f"v_lshrrev_b32 v14, 4, v{vLN}")
    va(f"v_mul_u32_u24 v{vK}, {GRAN}, v12")
    va(f"v_lshl_add_u32 v{vK}, v13, 8, v{vK}")
    va("v_and_b32 v15, 2, v13")
    va("v_xor_b32 v15, v15, v14")
    va(f"v_lshl_add_u32 v{vK}, v15, 4, v{vK}")
    va(f"v_add_u32 v{vQA}, s{sQW}, v{vK}")
    va(f"v_mul_u32_u24 v{vV[0]}, {GV}, v13")
    va(f"v_lshl_add_u32 v{vV[0]}, v14, 8, v{vV[0]}")
    if a.pa:
        va("v_and_b32 v15, 1, v12")
        va(f"v_lshl_add_u32 v{vV[0]}, v15, 3, v{vV[0]}")
        va("v_lshrrev_b32 v15, 1, v12")
        va(f"v_lshl_add_u32 v{vV[0]}, v15, 6, v{vV[0]}")
    else:
        va(f"v_lshl_add_u32 v{vV[0]}, v12, 3, v{vV[0]}")
    va("v_and_b32 v15, 1, v14")
    va(f"v_lshl_add_u32 v{vV[0]}, v15, {7 if a.pa else 5}, v{vV[0]}")
    if a.hswap:
        e(f"s_lshl_b32 s{sT2}, s2, 2")
        e(f"s_add_u32 s{sT2}, s{sT2}, s{sW}")
        e(f"s_bfe_u32 s{sT2}, s{sT2}, {(a.hswap - 1) | 1 << 16:#x}")
        e(f"s_lshl_b32 s{sT2}, s{sT2}, 7")
        va(f"v_xor_b32 v{vV[0]}, s{sT2}, v{vV[0]}")
    va(f"v_xor_b32 v{vV[1]}, {128 if a.pa else 32}, v{vV[0]}")
    va(f"v_add_u32 v{vV[2]}, {vwin[1] * TILE}, v{vV[0]}")
    va(f"v_add_u32 v{vV[3]}, {vwin[1] * TILE}, v{vV[1]}")
    va(f"v_add_u32 v{vV[0]}, {vwin[0] * TILE}, v{vV[0]}")
    va(f"v_add_u32 v{vV[1]}, {vwin[0] * TILE}, v{vV[1]}")
    e(f"s_mul_i32 s{sTMP}, s{sW}, {2 * TILE}")
    vLW, vLR, vOR1 = 12, 13, 14
    if a.pa:
        va(f"v_lshlrev_b32 v{vOR}, 8, v14")
        va(f"v_lshl_add_u32 v{vOR}, v12, 6, v{vOR}")
        va(f"v_lshl_add_u32 v{vOR}, v13, 3, v{vOR}")
        va(f"v_lshl_add_u32 v{vOR}, v15, 5, v{vOR}")
        va(f"v_add_u32 v{vOR}, s{sTMP}, v{vOR}")
        va(f"v_lshrrev_b32 v12, 5, v{vLN}")
        va("v_lshlrev_b32 v13, 2, v12")
        va(f"v_xor_b32 v13, v13, v{vLN}")
        va(f"v_lshl_add_u32 v{vOW}, v13, 3, s{sTMP}")
        va(f"v_and_b32 v13, 7, v{vLN}")
        va("v_lshlrev_b32 v13, 4, v13")
        va(f"v_lshl_add_u32 v{vOG}, v12, {lg(qS[2])}, v13")
        va(f"v_bfe_u32 v13, v{vLN}, 3, 2")
        va(f"v_lshl_add_u32 v{vOG}, v13, 8, v{vOG}")
        e(f"s_lshl_b32 s{sTMP}, s{sW}, 8")
        e(f"s_add_u32 s{sTMP}, s{sTMP}, {SYNC_OFF}")
        va(f"v_lshl_add_u32 v{vLW}, v{vLN}, 2, s{sTMP}")
        va(f"v_lshl_add_u32 v{vLR}, v14, 4, s{sTMP}")
        va(f"v_xor_b32 v{vOR1}, 32, v{vOR}")
    else:
        va(f"v_and_b32 v15, 15, v{vLN}")
        va(f"v_mul_u32_u24 v{vOW}, 272, v15")
        va(f"v_lshl_add_u32 v{vOW}, v14, 3, v{vOW}")
        va(f"v_add_u32 v{vOW}, s{sTMP}, v{vOW}")
    if a.pa:
        pass
    elif a.half:
        va(f"v_bfe_u32 v13, v{vLN}, 3, 2")
        va("v_lshrrev_b32 v15, 1, v13")
        va("v_xor_b32 v15, v15, v13")
        va("v_and_b32 v15, 1, v15")
        va("v_lshlrev_b32 v15, 2, v15")
        va(f"v_xor_b32 v15, v15, v{vLN}")
        va("v_and_b32 v15, 7, v15")
        va("v_lshlrev_b32 v15, 4, v15")
        va(f"v_lshl_add_u32 v{vOG}, v13, 8, v15")
        va(f"v_mul_u32_u24 v{vOR}, {GRAN}, v13")
        va(f"v_add3_u32 v{vOR}, v{vOR}, v15, s{sTMP}")
        va(f"v_lshrrev_b32 v13, 5, v{vLN}")
        va(f"v_lshl_add_u32 v{vOG}, v13, {lg(qS[2])}, v{vOG}")
        va("v_mul_u32_u24 v13, 272, v13")
        va(f"v_add_u32 v{vOR}, v{vOR}, v13")
    else:
        va("v_lshlrev_b32 v13, 2, v14")
        va("v_sub_u32 v15, v15, v13")
        va("v_and_b32 v15, 15, v15")
        va("v_lshlrev_b32 v15, 4, v15")
        va(f"v_lshl_add_u32 v{vOG}, v14, 8, v15")
        va(f"v_mul_u32_u24 v{vOR}, {GRAN}, v14")
        va(f"v_add3_u32 v{vOR}, v{vOR}, v15, s{sTMP}")
    va("v_mov_b32 v15, 0x3f803f80")
    for i in range(4):
        v(f"v_accvgpr_write_b32 a{aONE + i}, v15", [f"a{aONE + i}"], ["v15"])
    if a.sparse:
        assert a.pa and not a.hswap
        va(f"v_and_b32 v{vIX}, 1, v{vLN}")
        va(f"v_sub_u32 v{vIX}, 0, v{vIX}")
        va(f"v_and_b32 v{vIX}, 0xaaaaaaaa, v{vIX}")
        va(f"v_or_b32 v{vIX}, 0x44444444, v{vIX}")
        for x in range(4):
            for i in range(4):
                v(f"v_accvgpr_write_b32 a{Lreg[x] + i}, 0", [f"a{Lreg[x] + i}"])
    if a.hswap:
        va(f"v_add_u32 v{vOG}, s{sT2}, v{vOG}")
        va(f"v_xor_b32 v15, 128, v{vOG}")
    for x in range(4):
        va(f"v_mov_b32 v{NM[x]}, 0xff800000")
    for x in addx:
        va(f"v_mov_b32 v{Lreg[x]}, 0")
    if flag:
        e(f"s_lshl_b32 s{sTMP}, s{sW}, 8")
        e(f"s_add_u32 s{sTMP}, s{sTMP}, {SYNC_OFF}")
        va(f"v_lshlrev_b32 v{vFE}, 2, v{vLN}")
        va(f"v_lshl_add_u32 v{vFR}, v12, 8, v{vFE}")
        va(f"v_add_u32 v{vFR}, {SYNC_OFF}, v{vFR}")
        va(f"v_add_u32 v{vFW}, s{sTMP}, v{vFE}")
        va(f"v_mov_b32 v{vFE}, 0")
        e(f"ds_write_b32 v{vFW}, v{vFE}", "ldsw", rd=[f"v{vFW}", f"v{vFE}"])
        E.lds_drain()
    if a.pads:
        e("s_mov_b64 exec, 0")
        for w in range(3):
            e(f"s_cmp_eq_u32 s{sW}, {w}")
            e(f"s_cbranch_scc1 L_pad{w}")
        e("s_branch L_pad3")
        E.out.append(Op(".p2align 12", "label"))
    E.label("L_main")
    if a.pads:
        e("s_mov_b64 exec, -1")

    def finalize_read(op):
        if op.text is not None:
            return
        if op.tag[0] == "K":
            _, j, s = op.tag
            off = (slot_of["K", j // 2] + j % 2) * TILE + 64 * s
            assert off < 65536
            op.text = f"ds_read_b128 {rr('a', Freg['K', j, s], 4)}, v{vK} offset:{off}"
        else:
            _, kap, b, tau = op.tag
            sl = slot_of["V", kap]
            w = 0 if sl < vwin[1] else 1
            off = (sl - vwin[w]) * TILE + tau * 4 * GV + (16 * (b & 3) if a.pa else 64 * (b >> 1))
            assert off < 65536
            av = vV[2 * w + (b >> 2 if a.pa else b & 1)]
            op.rd = [f"v{av}"]
            op.text = f"ds_read_b64_tr_b16 {rr('a', Freg['V', kap, b] + 2 * tau, 2)}, v{av} offset:{off}"

    kr = {(j, s): Op(None, "ldsr", rd=[f"v{vK}"], wr=regs("a", Freg["K", j, s], 4), tag=("K", j, s))
          for j in range(32) for s in range(4)}
    vr = {(kap, b, t): Op(None, "ldsr", wr=regs("a", Freg["V", kap, b] + 2 * t, 2), tag=("V", kap, b, t))
          for kap in range(16) for b in range(8) for t in range(2)}
    for (j, s), op in kr.items():
        tile_reads["K", j // 2].append(op)
    for (kap, b, t), op in vr.items():
        tile_reads["V", kap].append(op)

    point(*[st_ for k in range(npre) for st_ in (("wait", k), ("top", 1))])
    e("s_barrier", "barrier")
    for t in pre_tiles:
        for op in tile_reads[t]:
            finalize_read(op)
            E.emit(op)
    e(f"s_cmp_lg_u32 s{sMODE}, 0")
    e("s_cbranch_scc1 L_maxpass")
    E.label("L_maxdone")

    def q_scale(x, s):
        for i in range(4):
            src, t = QT + 4 * s + i, UT + 2 * i
            v(f"v_lshlrev_b32 v{t}, 16, v{src}", [f"v{t}"], [f"v{src}"])
            v(f"v_and_b32 v{t + 1}, 0xffff0000, v{src}", [f"v{t + 1}"], [f"v{src}"])
        for i in range(4):
            t = UT + 2 * i
            v(f"v_pk_mul_f32 {rr('v', t, 2)}, {rr('v', t, 2)}, s[{sC}:{sC + 1}] op_sel_hi:[1,0]", regs("v", t, 2),
              regs("v", t, 2))
        for i in range(4):
            v(f"v_cvt_pk_bf16_f32 v{UT + 2 * i}, v{UT + 2 * i}, v{UT + 2 * i + 1}", [f"v{UT + 2 * i}"],
              [f"v{UT + 2 * i}", f"v{UT + 2 * i + 1}"])
        for i in range(4):
            v(f"v_accvgpr_write_b32 a{Qreg[x][s] + i}, v{UT + 2 * i}", [f"a{Qreg[x][s] + i}"], [f"v{UT + 2 * i}"])

    def q_prepare(x):
        k = npre + 2 * x
        point(*([("wait", k), ("top", 1)] if x == 0 or a.halftop else []), ("wait", k + 1))
        stamp("q")
        rds = [e(f"ds_read_b128 {rr('v', QT + 4 * s, 4)}, v{vQA} offset:{x * TILE + 64 * s}", "ldsr",
                 rd=[f"v{vQA}"], wr=regs("v", QT + 4 * s, 4)) for s in range(4)]
        point(("top", 1))
        for s in range(4):
            E.lds_wait([rds[s]])
            q_scale(x, s)
        point(("top", 2 if x < 3 else 3))

    def first_max_ops(x):
        n = NM[x]
        ops = []

        def add(text, wr, rd, dist=0, deps=()):
            ops.append(Op(text, "valu", rd=rd, wr=wr, deps=([(ops[-1], dist)] if ops else []) + list(deps)))

        for j in range(a.nmax):
            S = Sreg[uidx[j, x] % a.ns]
            for r in (S, S + 2):
                add(f"v_max3_f32 v{n}, v{r}, v{r + 1}, v{n}", [f"v{n}"], [f"v{r}", f"v{r + 1}", f"v{n}"],
                    deps=[(mf[last_use["S", j, x]], 8)])
        for sw in ("v_permlane32_swap_b32", "v_permlane16_swap_b32"):
            add(f"v_mov_b32 v{n + 1}, v{n}", [f"v{n + 1}"], [f"v{n}"])
            add(f"{sw} v{n + 1}, v{n}", [f"v{n}", f"v{n + 1}"], [f"v{n}", f"v{n + 1}"], 2)
            add(f"v_max_f32 v{n}, v{n}, v{n + 1}", [f"v{n}"], [f"v{n}", f"v{n + 1}"])
        for i in (1, 2, 3, 0):
            add(f"v_mul_f32 v{n + i}, -1.0, v{n}", [f"v{n + i}"], [f"v{n}"])
        return ops

    F = []
    ladds = {x: [] for x in range(4)}
    nmdone = {}
    for u, (j, x) in enumerate(qk_units):
        S = Sreg[u % a.ns]
        prod = mf[last_use["S", j, x]]
        sdead = first_use[("S",) + qk_units[u + a.ns]] - 1 if u + a.ns < 128 else 10 ** 9
        kap = j // 2
        pdead = max(min(sdead, first_use["P", kap, x] - 2), last_use["S", j, x])
        assert pdead < first_use["P", kap, x]
        if j == 0:
            mops = first_max_ops(x)
            for k, o in enumerate(mops):
                o.dead = max(min(pdead, first_use["S", a.nc0, x] - 2), last_use["S", a.nmax - 1, x])
                assert o.dead < first_use["S", a.nc0, x]
                o.prio = (-1, u, k)
            nmdone[x] = mops[-4]
            F += mops
        ex = []
        for i in range(4):
            op = Op(f"v_exp_f32 v{S + i}, v{S + i}", "trans", rd=[f"v{S + i}"], wr=[f"v{S + i}"],
                    deps=[(prod, 8)], dead=pdead)
            op.prio = (pdead - 4 + i, u, 3 * i)
            if j < a.nc0:
                n = NM[x] + 1
                sub = Op(f"v_add_f32 v{S + i}, v{S + i}, v{n}", "valu", rd=[f"v{S + i}", f"v{n}"], wr=[f"v{S + i}"],
                         deps=[(nmdone[x], 0), (prod, 8)], dead=pdead)
                sub.prio = (pdead - 5 + i, u, 3 * i)
                F.append(sub)
                op.deps.append((sub, 0))
            ex.append(op)
            F.append(op)
            if x in addx:
                ad = Op(f"v_add_f32 v{Lreg[x]}, v{Lreg[x]}, v{S + i}", "valu", rd=[f"v{S + i}", f"v{Lreg[x]}"],
                        wr=[f"v{Lreg[x]}"], deps=[(op, 1)], dead=min(sdead, pdead + 8))
                ad.prio = (pdead - 4 + i, u, 3 * i + 2)
                F.append(ad)
                ladds[x].append(ad)
            if i % 2:
                P = Preg[kap, x] + 2 * (j % 2) + i // 2
                cv = Op(f"v_cvt_pk_bf16_f32 v{P}, v{S + i - 1}, v{S + i}", "valu",
                        rd=[f"v{S + i - 1}", f"v{S + i}"], wr=[f"v{P}"], deps=[(ex[i - 1], 1), (op, 1)],
                        early=Pfree[kap, x], dead=pdead)
                assert Pfree[kap, x] <= pdead, ("P pool too small", kap, x)
                cv.prio = (pdead - 4 + i, u, 3 * i + 1)
                F.append(cv)
    lastsm = F[-12 * a.ns:]
    for key, op in [(("K",) + k, o) for k, o in kr.items()] + [(("V",) + k[:2], o) for k, o in vr.items()]:
        fu = first_use[key]
        mf[fu].needs.append(op)
        if op.idx is None:
            op.early = max(Ffree[key], pub[key[0], key[1] // 2 if key[0] == "K" else key[1]],
                           fu - (a.fhoist if a.fhoist and key[0] == "V" and key[1] >= gstart[G - 1] // 2 else a.hoist))
            op.dead = max(fu - a.lat, op.early)
            assert op.dead < fu
            op.prio = (op.dead - a.rdbias, -1, fu)
            F.append(op)

    tq = Sreg + NM
    tfree = {b: None for b in tq}
    tdead = max(last_use["S", 31, x] for x in range(4))
    lastsync = epochs[-1]["gc"] + 1
    epi_order = list(dict.fromkeys(int(c) for c in a.final if c.isdigit()))
    seqn = [0]
    mfpos = {o: i for i, o in enumerate(mf)}
    stage_w, stage_r, mulpair = [], {}, {}

    def epi(text, cls, **kw):
        op = Op(text, cls, **kw)
        seqn[0] += 1
        op.prio = (10 ** 8, seqn[0], 0)
        if a.eprio:
            src = [mfpos[d] for d, _ in op.deps if d in mfpos] + [d.prio[0] - a.eprio for d, _ in op.deps if d not in mfpos]
            op.prio = (max(src) + a.eprio, seqn[0], 0)
        F.append(op)
        return op

    rcp, wrs_of = {}, {x: [] for x in range(4)}

    def recip(x):
        rl, L = vRL[x], Lreg[x]
        if x in ones_x:
            prev = epi(f"v_accvgpr_read_b32 v{rl}, a{L}", "valu", rd=[f"a{L}"], wr=[f"v{rl}"],
                       deps=[(mf[last_use["L", x]], 8)], early=lastsync)
            L = rl
        else:
            prev = None
            for sw in ("v_permlane32_swap_b32", "v_permlane16_swap_b32"):
                m1 = epi(f"v_mov_b32 v{rl}, v{L}", "valu", rd=[f"v{L}"], wr=[f"v{rl}"], early=lastsync,
                         deps=[(prev, 0)] if prev else [(o, 0) for o in ladds[x][-16:]])
                m2 = epi(f"{sw} v{rl}, v{L}", "valu", rd=[f"v{L}", f"v{rl}"], wr=[f"v{L}", f"v{rl}"], deps=[(m1, 2)])
                prev = epi(f"v_add_f32 v{L}, v{L}, v{rl}", "valu", rd=[f"v{L}", f"v{rl}"], wr=[f"v{L}"], deps=[(m2, 0)])
        cm = epi(f"v_cmp_nge_f32 s[{sBAD + 2 * x}:{sBAD + 2 * x + 1}], s{sTHR}, v{L}", "valu", rd=[f"v{L}"],
                 wr=[f"s{sBAD + 2 * x}"], deps=[(prev, 0)])
        rcp[x] = epi(f"v_rcp_f32 v{rl}, v{L}", "trans", rd=[f"v{L}"], wr=[f"v{rl}"], deps=[(cm, 0)])

    def epi_rows(x, h):
        n, (p, ob) = NM[x], Oreg[x]
        if x not in rcp:
            r0 = epi(f"v_accvgpr_read_b32 v{n}, a{Lreg[x]}", "valu", rd=[f"a{Lreg[x]}"], wr=[f"v{n}"],
                     deps=[(mf[last_use["L", x]], 12)])
            if a.sparse:
                r1 = epi(f"v_accvgpr_read_b32 v{n + 1}, a{Lreg[x] + 1}", "valu", rd=[f"a{Lreg[x] + 1}"],
                         wr=[f"v{n + 1}"], deps=[(mf[last_use["L", x]], 12)])
                r0 = epi(f"v_add_f32 v{n}, v{n}, v{n + 1}", "valu", rd=[f"v{n}", f"v{n + 1}"], wr=[f"v{n}"],
                         deps=[(r0, 0), (r1, 0)])
            cm = epi(f"v_cmp_nge_f32 s[{sBAD + 2 * x}:{sBAD + 2 * x + 1}], s{sTHR}, v{n}", "valu", rd=[f"v{n}"],
                     wr=[f"s{sBAD + 2 * x}"], deps=[(r0, 0)])
            rc = epi(f"v_rcp_f32 v{n}, v{n}", "trans", rd=[f"v{n}"], wr=[f"v{n}"], deps=[(cm, 0)])
            lw = epi(f"ds_write_b32 v{vLW}, v{n}", "ldsw", rd=[f"v{vLW}", f"v{n}"],
                     deps=[(rc, 1)] + [(o, 0) for o in rcp.values()])
            lw.cost = 8
            rcp[x] = epi(f"ds_read_b128 {rr('v', n, 4)}, v{vLR}", "ldsr", rd=[f"v{vLR}"], wr=regs("v", n, 4),
                         deps=[(lw, 0)])
        xi = epi_order.index(x)
        so, region = (xi % 2) * TILE + 2048 * h, (xi % 2, h)
        X, mu = [], []
        for b in range(4 * h, 4 * h + 4):
            prod, o = mf[last_use["O", x, b]], ob + 4 * b
            if p == "a":
                t, rel = spare.pop(0)
                src = [[(epi(f"v_accvgpr_read_b32 v{t + i}, a{o + i}", "valu", rd=[f"a{o + i}"], wr=[f"v{t + i}"],
                             deps=[(prod, 8)], early=rel), 0)] for i in range(4)]
            else:
                t, src = o, [[(prod, 8)]] * 4
            X.append(t)
            mu.append([epi(f"v_mul_f32 v{t + i}, v{n + i}, v{t + i}", "valu", rd=[f"v{n + i}", f"v{t + i}"],
                           wr=[f"v{t + i}"], deps=src[i] + [(rcp[x], a.stdist)], needs=[rcp[x]]) for i in range(4)])
            for i in (0, 2):
                mulpair[mu[-1][i]] = (mu[-1][i + 1],
                                      f"v_pk_mul_f32 {rr('v', t + i, 2)}, {rr('v', t + i, 2)}, {rr('v', n + i, 2)}")
            if b % 2 == 0:
                continue
            k = b % 4 - 1
            if k == 0:
                cv = {}
            for i in range(4):
                d = X[i % 2] + (i & 2) + k // 2
                after = [cv[0, i - 1]] if k == 0 and i % 2 else [cv[0, i | 1]] if k else []
                cv[k, i] = epi(f"v_cvt_pk_bf16_f32 v{d}, v{X[k] + i}, v{X[k + 1] + i}", "valu",
                               rd=[f"v{X[k] + i}", f"v{X[k + 1] + i}"], wr=[f"v{d}"],
                               deps=[(mu[k][i], 0), (mu[k + 1][i], 0)] + [(o, 0) for o in after])
        wrs = []
        for i in range(4):
            d = X[i % 2] + (i & 2)
            wrs.append(epi(f"ds_write_b64 v{vOW}, {rr('v', d, 2)} offset:{so + 512 * i}", "ldsw",
                           rd=[f"v{vOW}"] + regs("v", d, 2), early=10 ** 9,
                           deps=[(cv[0, i], 0), (cv[2, i], 0)] + [(r, 0) for r in stage_r.get(region, [])]))
        stage_w.extend(wrs)
        stage_r[region] = []
        for m in range(2):
            d = X[2 + m]
            rds = [epi(f"ds_read_b64_tr_b16 {rr('v', d + 2 * t, 2)}, v{(vOR, vOR1)[t]} offset:{so + 1024 * m}", "ldsr",
                       rd=[f"v{(vOR, vOR1)[t]}"], wr=regs("v", d + 2 * t, 2),
                       deps=[(w, 0) for w in wrs[2 * m:2 * m + 2]] + [(cv[2, i], 0) for i in range(4)])
                   for t in range(2)]
            stage_r[region] += rds
        for m in range(2):
            rds = stage_r[region][2 * m:2 * m + 2]
            off = f" offset:{128 * h}" if h and not a.hswap else ""
            vo = 15 if h and a.hswap else vOG
            st = (a.st.split("/") * 8)[len(stage_w) // 4 - 1]
            epi(f"buffer_store_dwordx4 {rr('v', X[2 + m], 4)}, v{vo}, s[{sO}:{sO + 3}], s{sX + 4 * x + 2 * m} offen{off} {st}"
                .rstrip(), "vmem", rd=regs("v", X[2 + m], 4) + [f"v{vo}"], deps=[(r, a.stdist) for r in rds], needs=rds)

    spare = sorted([(b + 4 * i, rel) for b, rel in ppool.rel.items() for i in range(pw)], key=lambda kv: kv[1])
    for x, bs in [(x, bs) for xs, bs in final_parts for x in xs]:
        if a.pa:
            for h in sorted({b // 4 for b in bs}):
                epi_rows(x, h)
            continue
        assert a.half or len(bs) == 8
        if x not in rcp:
            recip(x)
        xi = epi_order.index(x)
        rl, rc, wrs = vRL[x], rcp[x], wrs_of[x]
        p, ob = Oreg[x]
        so = (xi % 2) * TILE
        for b in bs:
            region = (xi % 2, b // 4 if a.half else 0)
            prod = mf[last_use["O", x, b]]
            o = ob + 4 * b
            if p == "a":
                t = tq.pop(0)
                tq.append(t)
                dep0 = [(d, 0) for d in (tfree[t] or lastsm)]
                src4 = [[(epi(f"v_accvgpr_read_b32 v{t + i}, a{o + i}", "valu", rd=[f"a{o + i}"], wr=[f"v{t + i}"],
                              deps=[(prod, 8)] + dep0, early=tdead + 1), 0)] for i in range(4)]
            else:
                t = o
                src4 = [[(prod, 8)] for i in range(4)]
            mu = [epi(f"v_mul_f32 v{t + i}, v{rl}, v{t + i}", "valu", rd=[f"v{rl}", f"v{t + i}"], wr=[f"v{t + i}"],
                      deps=src4[i] + [(rc, 1)]) for i in range(4)]
            for i in (0, 2):
                sel = "op_sel:[0,1] op_sel_hi:[1,1]" if rl % 2 else "op_sel_hi:[1,0]"
                mulpair[mu[i]] = (mu[i + 1], f"v_pk_mul_f32 {rr('v', t + i, 2)}, {rr('v', t + i, 2)}, "
                                             f"{rr('v', rl & ~1, 2)} {sel}")
            c0 = epi(f"v_cvt_pk_bf16_f32 v{t}, v{t}, v{t + 1}", "valu", rd=[f"v{t}", f"v{t + 1}"], wr=[f"v{t}"],
                     deps=[(mu[0], 0), (mu[1], 0)])
            c1 = epi(f"v_cvt_pk_bf16_f32 v{t + 1}, v{t + 2}, v{t + 3}", "valu", rd=[f"v{t + 2}", f"v{t + 3}"],
                     wr=[f"v{t + 1}"], deps=[(mu[2], 0), (mu[3], 0), (c0, 0)])
            w = epi(f"ds_write_b64 v{vOW}, {rr('v', t, 2)} offset:{so + 32 * b}", "ldsw",
                    rd=[f"v{vOW}", f"v{t}", f"v{t + 1}"], early=10 ** 9,
                    deps=[(c0, 0), (c1, 0)] + [(r, 0) for r in stage_r.get(region, [])])
            wrs.append(w)
            stage_w.append(w)
            if p == "a":
                tfree[t] = [w]
            if b % (4 if a.half else 8) != (3 if a.half else 7):
                continue
            if a.half:
                h = b // 4
                pieces = [(ob + 16 * h + 4 * n, so + 544 * n + 128 * h, 2 * n, 128 * h) for n in range(2)]
            else:
                pieces = [(ob + 4 * i, so + 272 * i, i, 0) for i in range(4)]
            rds = [epi(f"ds_read_b128 {rr(p, r, 4)}, v{vOR} offset:{lo}", "ldsr", rd=[f"v{vOR}"], wr=regs(p, r, 4),
                       deps=[(w, 0) for w in wrs]) for r, lo, _, _ in pieces]
            stage_r[region] = rds
            for rd_, (r, _, gi, go) in zip(rds, pieces):
                if str(x) in a.dbgnost:
                    continue
                stx = (st.split("/") * 4)[xi]
                off = f" offset:{go}" if go else ""
                epi(f"buffer_store_dwordx4 {rr(p, r, 4)}, v{vOG}, s[{sO}:{sO + 3}], s{sX + 4 * x + gi} offen{off} {stx}".rstrip(),
                    "vmem", rd=regs(p, r, 4) + [f"v{vOG}"], deps=[(rd_, a.stdist)], needs=[rd_])

    pending = sorted(F, key=lambda o: o.prio)
    overflow = 0
    leads = []

    def ready(op, strict=True):
        if op.early > E.gap:
            return False
        for d, dist in op.deps:
            if d.idx is None or (strict and E.nst - d.st < dist):
                return False
        return True

    def put(op):
        if op.cls == "ldsr":
            finalize_read(op)
        if op.needs:
            E.lds_wait(op.needs)
        E.emit(op)
        pending.remove(op)

    def closure(op, acc):
        assert op.early <= E.gap, ("cannot meet deadline", op.text, op.tag, op.early, E.gap)
        for d, _ in op.deps:
            if d.idx is None and d not in acc:
                assert d.cls != "mfma", ("deadline before producer", op.text, E.gap)
                closure(d, acc)
        if op not in acc:
            acc.append(op)

    def drain(merge_mul=False):
        while True:
            cand = [o for o in pending if ready(o)] or [o for o in pending if ready(o, False)]
            if not cand:
                return
            o = cand[0]
            if merge_mul and o in mulpair and mulpair[o][0].idx is None and ready(mulpair[o][0], False):
                o2, o.text = mulpair[o]
                o.rd += o2.rd
                o.wr += o2.wr
                put(o)
                o2.idx, o2.st = o.idx, o.st
                pending.remove(o2)
            else:
                put(o)

    def signal(ep):
        for t in ep["tiles"]:
            assert t in dma_op and dma_op[t].idx is not None, ("tile not issued before its epoch", t, ep)
            leads.append(E.gap - dma_op[t].gap)
        stamp("b")
        if ep["n"] >= len(epochs) - 2:
            stamp("e")
        E.vm_wait([dma_op[t] for t in ep["tiles"]])
        stamp("w")
        ep["rel"] = [t for t, rs in tile_reads.items() if t not in released and t in slot_of and
                     all(r.idx is not None and (not ep["bar"] or r.ldsn < E.lds_done) for r in rs)]
        released.update(ep["rel"])

    def passed(ep):
        if ep["n"] == 1:
            for s in range(q0, q0 + 16, 2):
                free_slots["K" if s < NK else "V"].append(s)
        for t in ep["rel"]:
            free_slots[t[0]].append(slot_of[t])
        if ("K", 11) in slot_of and all(s in free_slots["K"] for s in range(0, 8, 2)):
            for w in stage_w:
                w.early = min(w.early, E.gap)

    dper = [int(x.split("x")[0]) for x in a.dmaper.split(",") for _ in range(int((x + "x1").split("x")[1]))]
    next_dma_gap = G0 + a.dma0
    staged = None
    for g in range(-1, NMF):
        E.gap = g
        if g >= 0:
            E.emit(mf[g])
        if g in qgap:
            drain()
            q_prepare(qgap[g])
            if g == G0:
                stamp()
            E.lds_wait(mf[g + 1].needs)
            continue
        shadow = True
        budget = 8 if g < tdead + a.fstart else (a.fbudget * (g + 1) // 4 - a.fbudget * g // 4) * 4
        budget0 = budget
        if g >= 0 and "smfmac" in mf[g].text:
            budget -= 4
        fixed_mem, fixed_valu = [], []
        for ep in epochs:
            if ep["bar"]:
                if g == ep["gc"]:
                    signal(ep)
                    e("s_barrier", "barrier")
                    stamp("b")
                    if ep["n"] >= len(epochs) - 2:
                        stamp("e")
                    passed(ep)
                    shadow = False
                continue
            if g == ep["gs"] - 1:
                fixed_valu.append(Op(f"v_mov_b32 v{vFE}, {ep['n']}", "valu", wr=[f"v{vFE}"]))
            if g == ep["gs"]:
                signal(ep)
                shadow = False
                E.emit(Op(f"ds_write_b32 v{vFW}, v{vFE}", "ldsw", rd=[f"v{vFW}", f"v{vFE}"]))
                budget -= 8
            if g == ep["gr"]:
                ep["rd"] = Op(f"ds_read_b32 v{vFT}, v{vFR}", "ldsr", rd=[f"v{vFR}"], wr=[f"v{vFT}"])
                fixed_mem.append(ep["rd"])
            if g == ep["gc"] - 1:
                if E.lds_wait([ep["rd"]], a.lat):
                    shadow = False
                fixed_valu.append(Op(f"v_cmp_gt_u32 vcc, {ep['n']}, v{vFT}", "valu", rd=[f"v{vFT}"], wr=["vcc"]))
            if g == ep["gc"]:
                e(f"s_cbranch_vccnz L_spin{ep['n']}")
                E.label(f"L_ok{ep['n']}")
                passed(ep)
                shadow = False
        if a.stamps and g in [first_use["S", gs, 0] for gs in (4, 8, 12, 16, 20, 24, 28)] + [tdead]:
            stamp()
        if g in (first_use["S", 14, 0], first_use["S", 22, 0]):
            stamp("s")
        if g in (G0 + 1, first_use["S", 14, 0], tdead):
            stamp("g")
        if g >= NMF - 145 and (NMF - 1 - g) % 36 == 0:
            stamp("e")
        if g > G0 and (g - G0) % a.stampper == 1:
            stamp("p")
        if g + 1 < NMF and mf[g + 1].needs and all(n.idx is not None for n in mf[g + 1].needs):
            if E.lds_wait(mf[g + 1].needs, a.lat):
                shadow = False
        quiet = not any(not ep["bar"] and g + 1 in (ep["gs"] - 1, ep["gs"], ep["gr"], ep["gc"] - 1) for ep in epochs)
        if staged is not None:
            for o in staged:
                E.emit(o)
            staged = None
            budget -= a.dmacost
        elif shadow and quiet and di < len(dma_order) and g >= next_dma_gap and slot_for(dma_order[di]) is not None:
            pre, staged = make_dma(dma_order[di])
            di += 1
            E.emit(pre)
            next_dma_gap = max(next_dma_gap, g - 4) + dper[0]
            if len(dper) > 1:
                dper.pop(0)
        budget -= 4 * (len(fixed_mem) + len(fixed_valu))
        full = budget >= 8
        picks = []
        for o in pending:
            if o.dead <= g:
                closure(o, picks)
        budget -= sum(o.cost for o in picks)
        cand = [o for o in pending[:400] if o not in picks and ready(o)]
        if full and not picks and cand:
            first = cand[0]
            small = [o for o in cand if o.cost == 4]
            tr = [o for o in cand if o.cls == "trans"]
            if first.cost == 4 and len(small) < 2 and tr:
                first = tr[0]
            picks.append(first)
            budget -= first.cost
        for o in cand:
            if o not in picks and o.cost <= budget:
                picks.append(o)
                budget -= o.cost
        mem = [o for o in picks if o.cls in ("ldsr", "ldsw", "vmem") and all(d.idx is not None for d, _ in o.deps)]
        rest = [o for o in picks if o not in mem]
        for o in fixed_mem:
            E.emit(o)
        for o in mem:
            put(o)
        for o in fixed_valu:
            E.emit(o)
        while rest:
            o = ([o for o in rest if ready(o)] or [o for o in rest if ready(o, False)])[0]
            put(o)
            rest.remove(o)
        while budget > 0:
            more = [o for o in pending[:400] if o.cls == "valu" and ready(o)]
            if not more:
                break
            put(more[0])
            budget -= 4
        if full and not picks and budget >= 8 and any(ready(o, False) for o in pending[:400]):
            e("s_nop 1", "nop")
        if a.touch and g == a.touch:
            e(f"buffer_load_dword v15, v{vOG}, s[{sO}:{sO + 3}], 0 offen nt", "vmem", rd=[f"v{vOG}"], wr=["v15"])
        if a.dbgnop:
            n0, n1, ev, ln = [int(x) for x in a.dbgnop.split(",")]
            if n0 <= g < n1 and g % ev == 0:
                e(f"s_nop {ln}", "nop")
        if g > G0:
            overflow += max(0, budget0 - budget - 8)
        if g + 1 < NMF and mf[g + 1].needs:
            E.lds_wait(mf[g + 1].needs)
    assert staged is None and di == len(dma_order) and issued == [len(items)] * 2
    stamp()
    ntail = len(pending)
    n0 = len(E.out)
    drain(a.pk)
    overflow += sum(o.cost for o in E.out[n0:])
    assert not pending
    stamp("x")

    e(f"s_or_b64 s[{sBAD}:{sBAD + 1}], s[{sBAD}:{sBAD + 1}], s[{sBAD + 2}:{sBAD + 3}]")
    e(f"s_or_b64 s[{sBAD + 4}:{sBAD + 5}], s[{sBAD + 4}:{sBAD + 5}], s[{sBAD + 6}:{sBAD + 7}]")
    e(f"s_or_b64 s[{sBAD}:{sBAD + 1}], s[{sBAD}:{sBAD + 1}], s[{sBAD + 4}:{sBAD + 5}]")
    e(f"s_cselect_b32 s{sTMP}, 1, 0")
    e(f"s_lshl_b32 s{sC}, s{sW}, 2")
    e(f"s_add_u32 s{sC}, s{sC}, {FLAG_OFF}")
    va(f"v_mov_b32 v12, s{sC}")
    va(f"v_mov_b32 v13, s{sTMP}")
    va(f"v_mov_b32 v14, {FLAG_OFF}")
    e("ds_write_b32 v12, v13", "ldsw", rd=["v12", "v13"])
    E.lds_drain()
    e("s_barrier", "barrier")
    e("ds_read_b128 v[16:19], v14", "ldsr", rd=["v14"], wr=regs("v", 16, 4))
    E.lds_drain()
    v("v_or3_b32 v16, v16, v17, v18", ["v16"], regs("v", 16, 3))
    v("v_or_b32 v16, v16, v19", ["v16"], ["v16", "v19"])
    v(f"v_readfirstlane_b32 s{sTMP}, v16", [f"s{sTMP}"], ["v16"])
    e(f"s_andn2_b32 s{sTMP}, s{sTMP}, s{sMODE}", rd=[f"s{sTMP}"])
    e("s_cbranch_scc1 L_rerun")
    if a.stamps:
        e("s_waitcnt vmcnt(0)", "wait")
        stamp("x")
        E.lds_drain()
        e(f"s_mov_b32 s{sWS + 2}, 1048576")
        e(f"s_mov_b32 s{sWS + 3}, 0x20000")
        e(f"s_lshl_b32 s{sTMP}, s2, 2")
        e(f"s_add_u32 s{sTMP}, s{sTMP}, s{sW}")
        e(f"s_mul_i32 s{sTMP}, s{sTMP}, {8 * nstamp[0]}")
        va("v_mov_b32 v12, 0")
        for i in range(nstamp[0]):
            va(f"v_mov_b32 v14, s{stampreg[i]}")
            va(f"v_mov_b32 v15, s{stampreg[i] + 1}")
            e(f"buffer_store_dwordx2 v[14:15], v12, s[{sWS}:{sWS + 3}], s{sTMP} offen offset:{8 * i}", "vmem",
              rd=["v14", "v15", "v12"])
            e("s_nop 1", "nop")
    if a.report >= 0:
        r = stampreg[a.report]
        e("s_mov_b32 s94, s86")
        if a.reportglob:
            e("s_mov_b32 s88, s100")
            e("s_mov_b32 s89, s101")
            e("s_mov_b32 s90, 256")
            e("s_mov_b32 s91, 0x20000")
            e("s_not_b32 s92, s86")
            va("v_mov_b32 v14, s92")
            va("v_mov_b32 v12, 0")
            e("s_mov_b64 exec, 1")
            e("buffer_atomic_umax v14, v12, s[88:91], 0 offen sc1", "vmem", rd=["v14", "v12"])
            e("s_mov_b64 exec, -1")
            E.label("L_diag3")
            e("s_memrealtime s[92:93]", "smem")
            e("s_waitcnt lgkmcnt(0)", "wait")
            e("s_sub_u32 s92, s92, s94")
            e("s_cmp_lt_u32 s92, 4500")
            e("s_cbranch_scc1 L_diag3")
            e("buffer_load_dword v14, v12, s[88:91], 0 offen sc0 sc1", "vmem", rd=["v12"], wr=["v14"])
            e("s_waitcnt vmcnt(0)", "wait")
            v("v_readfirstlane_b32 s94, v14", ["s94"], ["v14"])
            e("s_not_b32 s94, s94", rd=["s94"])
        if a.reportwg:
            e(f"s_lshr_b32 s{sTMP}, s2, 5")
            e(f"s_cmp_lg_u32 s{sTMP}, {a.reportwg - 1}")
            e("s_cbranch_scc1 L_end")
        e(f"s_sub_u32 s{sTMP}, s{r}, s94")
        e(f"s_min_u32 s{sTMP}, s{sTMP}, 4000")
        e(f"s_mul_i32 s{sTMP}, s{sTMP}, 5")
        e(f"s_add_u32 s{sTMP}, s{sTMP}, 3000")
        E.label("L_diag2")
        e("s_memrealtime s[92:93]", "smem")
        e("s_waitcnt lgkmcnt(0)", "wait")
        e("s_sub_u32 s92, s92, s94")
        e(f"s_cmp_lt_u32 s92, s{sTMP}")
        e("s_cbranch_scc1 L_diag2")
    if a.spin:
        e("s_waitcnt vmcnt(0)", "wait")
        E.label("L_diag")
        e("s_memrealtime s[62:63]", "smem")
        e("s_waitcnt lgkmcnt(0)", "wait")
        e("s_sub_u32 s62, s62, s60")
        e(f"s_cmp_lt_u32 s62, {a.spin * 100}")
        e("s_cbranch_scc1 L_diag")
    E.label("L_end")
    e("s_endpgm", "end")

    for ep in epochs:
        if not ep["bar"]:
            E.label(f"L_spin{ep['n']}")
            e(f"ds_read_b32 v{vFT}, v{vFR}", "ldsr", rd=[f"v{vFR}"], wr=[f"v{vFT}"])
            e("s_waitcnt lgkmcnt(0)", "wait")
            v(f"v_cmp_gt_u32 vcc, {ep['n']}, v{vFT}", ["vcc"], [f"v{vFT}"])
            e(f"s_cbranch_vccnz L_spin{ep['n']}")
            e(f"s_branch L_ok{ep['n']}")
    E.label("L_codeend")

    E.label("L_rerun")
    e(f"s_mov_b32 s{sMODE}, 1")
    e("s_waitcnt vmcnt(0) lgkmcnt(0)", "wait")
    e("s_barrier", "barrier")
    va("v_mbcnt_lo_u32_b32 v0, -1, 0")
    va("v_mbcnt_hi_u32_b32 v0, -1, v0")
    e(f"s_lshl_b32 s{sTMP}, s{sW}, 6")
    va(f"v_add_u32 v0, s{sTMP}, v0")
    e("s_branch L_start")

    E.label("L_maxpass")
    va(f"v_bfe_u32 v{vT1}, v{vLN}, 2, 2")
    va(f"v_lshrrev_b32 v{vT2}, 4, v{vLN}")
    va(f"v_lshl_add_u32 v{vT2}, v{vT2}, 4, {BIAS}")
    va(f"v_lshl_add_u32 v{vT1}, v{vT1}, 8, v{vT2}")
    va(f"v_and_b32 v{UT}, 1, v{vLN}")
    va(f"v_lshl_add_u32 v{vT2}, v{UT}, {lg(qS[2])}, v{vT1}")
    va(f"v_bfe_u32 v{UT}, v{vLN}, 1, 1")
    va(f"v_lshl_add_u32 v{vT2}, v{UT}, {lg(qS[3])}, v{vT2}")
    va(f"v_and_b32 v{UT}, 3, v{vLN}")
    va(f"v_lshl_add_u32 v{vT1}, v{UT}, 10, v{vT1}")
    for x in range(4):
        for s in range(4):
            e(f"buffer_load_dwordx4 {rr('v', QT + 4 * s, 4)}, v{vT2}, s[{sQ}:{sQ + 3}], s{sX + 4 * x} offen offset:{64 * s}",
              "vmem", rd=[f"v{vT2}"], wr=regs("v", QT + 4 * s, 4))
        e("s_waitcnt vmcnt(0)", "wait")
        for s in range(4):
            q_scale(x, s)
    e(f"s_mov_b32 s{sTMP}, 0")
    E.label("L_maxloop")
    for s in range(4):
        e(f"buffer_load_dwordx4 {rr('v', QT + 4 * s, 4)}, v{vT1}, s[{sK}:{sK + 3}], s{sTMP} offen offset:{64 * s}",
          "vmem", rd=[f"v{vT1}"], wr=regs("v", QT + 4 * s, 4))
    e("s_waitcnt vmcnt(0)", "wait")
    for x in range(4):
        S = Sreg[x]
        for s in range(4):
            C, cr = ("0", []) if s == 0 else (rr("v", S, 4), regs("v", S, 4))
            E.emit(Op(f"v_mfma_f32_16x16x32_bf16 {rr('v', S, 4)}, {rr('v', QT + 4 * s, 4)}, {rr('a', Qreg[x][s], 4)}, {C}",
                      "mfma", rd=regs("v", QT + 4 * s, 4) + regs("a", Qreg[x][s], 4) + cr, wr=regs("v", S, 4), srcc=cr))
    e("s_nop 7", "nop")
    for x in range(4):
        S, n = Sreg[x], NM[x]
        v(f"v_max3_f32 v{n}, v{S}, v{S + 1}, v{n}", [f"v{n}"], [f"v{S}", f"v{S + 1}", f"v{n}"])
        v(f"v_max3_f32 v{n}, v{S + 2}, v{S + 3}, v{n}", [f"v{n}"], [f"v{S + 2}", f"v{S + 3}", f"v{n}"])
    e(f"s_add_u32 s{sTMP}, s{sTMP}, 4096")
    e(f"s_cmp_lt_u32 s{sTMP}, 131072")
    e("s_cbranch_scc1 L_maxloop")
    e("s_nop 3", "nop")
    e("s_branch L_maxdone")

    ops, nnop = fix_hazards(E.out)
    if a.pads:
        ops = insert_pads(ops)
    if a.verbose:
        print("G0", G0, "tdead", tdead)
        print([(ep["gs"], ep["gc"], [t[0] + str(t[1]) for t in ep["tiles"]]) for ep in epochs])
        print("leads", leads)
        print("stores", [o.gap for o in E.out if "buffer_store" in o.text])
    info = dict(mfma=NMF, instrs=len(ops), nops=nnop, overflow=overflow, tail=ntail, epochs=len(epochs),
                minlead=min(leads[a.ninit:]), pslots=len(Pbases), fslots=len(Fbases), stamps=nstamp[0])
    head = [
        "; GQA attention forward, B=32 Hq=32 Hkv=8 Sq=64 Sk=512 D=128, bf16 in / bf16 out (generated schedule).",
        "; kernarg: q @0, k @8, v @16, out @24, debug @32, ws @40",
        "; One workgroup per (batch, kv head); wave w handles q head 4*hkv+w.",
        "; Softmax shift: row max of the first keys; a final check on the row sums reruns the",
        "; workgroup with the true row max (L_rerun / L_maxpass) whenever that shift is unsafe.",
        f"; @launch grid=(256,1,1) block=(256,1,1) lds={LDS_BYTES}",
        '.amdgcn_target "amdgcn-amd-amdhsa--gfx950"', ".text", f".globl {KNAME}", ".p2align 8",
        f".type {KNAME},@function", f"{KNAME}:"]
    body = [(o.text if o.cls == "label" else "    " + o.text) for o in ops]
    tail = ['.section .rodata,"a"', ".p2align 6", f".amdhsa_kernel {KNAME}",
            "  .amdhsa_next_free_vgpr 512", "  .amdhsa_next_free_sgpr 102", "  .amdhsa_accum_offset 256",
            "  .amdhsa_group_segment_fixed_size 0", "  .amdhsa_kernarg_size 48", "  .amdhsa_user_sgpr_count 2",
            "  .amdhsa_user_sgpr_kernarg_segment_ptr 1", "  .amdhsa_system_sgpr_workgroup_id_x 1",
            ".end_amdhsa_kernel"]
    return "\n".join(head + body + tail) + "\n", info


def parser():
    ap = argparse.ArgumentParser()
    ap.add_argument("out")
    for k, d in dict(groups="2,2,4,4,4,4,4,8", final="0a,1a,2a,3a,0b,1b,2b,3b", ones="0123", oacc="2", ld="nt", st="sc1 nt", sync="bar",
                     merge="12,12,40", win="10,10,16", dmaper="29x17,22", stampat="m", dbgnop="", dbgnost="", deven="2,3,4", dodd="5,3,4").items():
        ap.add_argument("--" + k, default=d)
    for k, d in dict(ns=5, lag=3, lat=6, skew=8, nbar=1, dmacost=8, dma0=8, rdbias=8, hoist=64, stdist=12, q0=10,
                     ninit=3, infl=8, halftop=0, prek=2, prev=1, nc0=3, nmax=1, fbudget=14, fstart=16, pk=1,
                     half=1, sparse=0, hswap=0, touch=0, report=-1, reportwg=0, reportglob=0, eprio=8, pa=1, sumearly=2, smooth=2, fhoist=80, rot=1, remap=1, rotmask=15, rotrev=0, qrot=3, kvs=0, qs=0, dbgswap=0, infl0=0, infl1=0, pvend=0, pvgam=100, qrun=1, snake=1, stampper=60, stamps=0, spin=0, pfcode=1, pads=1, verbose=0).items():
        ap.add_argument("--" + k, type=int, default=d)
    return ap


if __name__ == "__main__":
    a = parser().parse_args()
    txt, info = build(a)
    open(a.out, "w").write(txt)
    print(a.out, info)
```

```python
import argparse, math, re, struct, sys

KNAME = "standalone__gqa_softmax__near_ridge_kernel"
TILE = 4352
GRAN = 1088
NSLOT = 36
LDS_BYTES = 163840
FLAG_OFF = NSLOT * TILE
SYNC_OFF = FLAG_OFF + 256


def f32bits(x):
    return struct.unpack("<I", struct.pack("<f", x))[0]


def regs(p, lo, n):
    return [f"{p}{lo + i}" for i in range(n)]


def rr(p, lo, n):
    return f"{p}[{lo}:{lo + n - 1}]" if n > 1 else f"{p}{lo}"


class Op:
    __slots__ = ("text", "cls", "rd", "wr", "deps", "early", "dead", "prio", "needs", "idx", "gap",
                 "ldsn", "pre", "vmn", "tag", "srcc", "st", "cost")

    def __init__(self, text, cls, rd=(), wr=(), deps=(), early=-1, dead=10 ** 9, needs=(), pre=None, tag=None,
                 srcc=()):
        self.text, self.cls = text, cls
        self.rd, self.wr = list(rd), list(wr)
        self.deps = list(deps)
        self.early, self.dead = early, dead
        self.needs = list(needs)
        self.idx = None
        self.gap = None
        self.ldsn = None
        self.vmn = None
        self.pre = pre
        self.tag = tag
        self.prio = 0
        self.srcc = list(srcc)
        self.cost = COST.get(cls, 4)


COST = dict(trans=8, valu=4, ldsr=4, ldsw=12, vmem=20, salu=4)


class Emitter:
    def __init__(self):
        self.out = []
        self.nlds = 0
        self.lds_done = 0
        self.lds_gap = []
        self.nvm = 0
        self.vm_done = 0
        self.gap = -1
        self.nst = 0

    def emit(self, op):
        self.nst += states(op)
        op.st = self.nst
        op.idx = len(self.out)
        op.gap = self.gap
        if op.cls in ("ldsr", "ldsw"):
            op.ldsn = self.nlds
            self.nlds += 1
            self.lds_gap.append(self.gap)
        if op.cls == "vmem":
            op.vmn = self.nvm
            self.nvm += 1
        self.out.append(op)
        return op

    def raw(self, text, cls="salu", **kw):
        return self.emit(Op(text, cls, **kw))

    def label(self, name):
        self.out.append(Op(name + ":", "label"))

    def lds_wait(self, needs, lat=None):
        need = max((n.ldsn for n in needs), default=-1) + 1
        if need <= self.lds_done:
            return False
        if lat is not None:
            k = need
            while k < self.nlds and self.lds_gap[k] <= self.gap - lat:
                k += 1
            need = k
        n = min(self.nlds - need, 15)
        self.raw(f"s_waitcnt lgkmcnt({n})", "wait")
        self.lds_done = self.nlds - n
        return True

    def lds_drain(self):
        self.raw("s_waitcnt lgkmcnt(0)", "wait")
        self.lds_done = self.nlds

    def vm_wait(self, ops):
        need = max((o.vmn for o in ops), default=-1) + 1
        if need <= self.vm_done:
            return False
        n = min(self.nvm - need, 63)
        self.raw(f"s_waitcnt vmcnt({n})", "wait")
        self.vm_done = self.nvm - n
        return True


def states(op):
    if op.cls == "label":
        return 0
    m = re.match(r"s_nop (\d+)", op.text)
    return int(m.group(1)) + 1 if m else 1


def fix_hazards(ops):
    out = []
    added = 0
    for op in ops:
        if op.cls == "label":
            out.append(op)
            continue
        need = 0
        dist = 0
        rd, wr = set(op.rd), set(op.wr)
        isv = op.cls in ("valu", "trans")
        for p in reversed(out):
            if dist >= 12:
                break
            pw = set(p.wr)
            req = 0
            if p.cls == "mfma":
                if "smfmac" in p.text and op.cls != "mfma" and pw & (rd | wr):
                    req = 12
                elif op.cls == "mfma":
                    ab = rd - set(op.srcc)
                    if pw & ab:
                        req = 8
                    if pw & set(op.srcc) and set(op.srcc) != pw:
                        req = max(req, 6)
                    if pw & wr and set(op.srcc) != pw:
                        req = max(req, 6)
                else:
                    if pw & (rd | wr):
                        req = 8
                    if isv and set(p.srcc) & wr:
                        req = max(req, 3)
            elif p.cls in ("valu", "trans"):
                if op.cls == "mfma" and pw & rd:
                    req = 2
                if p.cls == "trans" and op.cls != "trans" and pw & rd:
                    req = max(req, 1)
                if "permlane" in op.text and pw & rd:
                    req = max(req, 2)
                if ("readfirstlane" in op.text or "readlane" in op.text) and pw & rd:
                    req = max(req, 1)
                sw = {r for r in pw if r[0] == "s" or r == "vcc"}
                if sw & rd:
                    req = max(req, 5 if op.cls == "vmem" else 2)
            elif p.cls == "salu":
                if "m0" in pw and op.cls == "vmem" and "m0" in rd:
                    req = 1
            elif p.cls == "vmem":
                if "store" in p.text and set(p.rd) & wr and op.cls != "salu":
                    req = 2
            need = max(need, req - dist)
            if not (p.tag and p.tag[0] == "arm" and p.tag != op.tag):
                dist += states(p)
        if need > 0:
            out.append(Op(f"s_nop {need - 1}", "nop"))
            added += 1
        out.append(op)
    return out, added


def isize(op):
    t = op.text
    if op.cls == "label":
        return 0
    mn = t.split()[0]
    if op.cls in ("mfma", "xmfma", "ldsr", "ldsw", "vmem", "smem"):
        return 8
    if mn in ("s_getreg_b32", "s_movk_i32", "s_nop", "s_waitcnt", "s_barrier", "s_branch", "s_endpgm") or mn.startswith("s_cbranch"):
        return 4
    if mn.startswith("v_cmp") and " s[" in t:
        return 8
    if mn.startswith(("v_cvt_pk", "v_max3", "v_accvgpr", "v_pk_", "v_lshl_add", "v_add3", "v_bfe", "v_or3", "v_mbcnt",
                      "v_fma")):
        return 8
    for arg in [x.strip() for x in t[len(mn):].split(",")]:
        if re.fullmatch(r"-?(0x[0-9a-f]+|\d+)", arg) and not -16 <= int(arg, 0) <= 64:
            return 8
        if arg.startswith("L_"):
            return 8
    return 4


def insert_pads(ops):
    i0 = next(i for i, o in enumerate(ops) if o.text == "L_main:")
    i1 = next(i for i, o in enumerate(ops) if o.text == "L_end:")
    out, addr, page, pads = ops[:i0], 0, 1, []
    for i in range(i0, len(ops)):
        o = ops[i]
        if i <= i1 and addr >= 4096 * page:
            good = out[-1].cls == "mfma" and o.cls not in ("salu", "wait", "barrier", "nop")
            if good or addr + isize(o) > 4096 * page + 56:
                lab = Op(f"L_pad{len(pads)}:", "label")
                br = Op("", "salu")
                pads.append(br)
                out += [lab, br]
                addr += 4
                page += 1
        out.append(o)
        addr += isize(o)
    assert len(pads) >= 4
    for k, br in enumerate(pads):
        br.text = f"s_cbranch_execz L_pad{k + 4}" if k + 4 < len(pads) else "s_cbranch_execz L_main"
    return out


class Pool:
    def __init__(self, prefix, bases):
        self.prefix = prefix
        self.rel = {b: -1 for b in bases}

    def add(self, base, release):
        self.rel[base] = release

    def take(self, release):
        b = min(self.rel, key=lambda k: (self.rel[k], k))
        prev = self.rel[b]
        self.rel[b] = release
        return b, prev


def build(a):
    groups = [int(x) for x in a.groups.split(",")]
    assert sum(groups) == 32 and all(g % 2 == 0 for g in groups)
    G = len(groups)
    gstart = [sum(groups[:g]) for g in range(G + 1)]
    ones_x = [int(c) for c in a.ones if c.isdigit()]
    oacc_x = [int(c) for c in a.oacc if c.isdigit()]
    addx = [x for x in range(4) if x not in ones_x]
    ld, st = a.ld, a.st
    PK = 2 * a.prek
    flag = a.sync == "flag"
    GV = 1040 if a.pa else GRAN
    assert not a.pa or (a.half and not flag and len(ones_x) == 4)
    E = Emitter()
    e = E.raw

    vK, vV = 1, [2, 3, 4, 5]
    vDK, vDV = (6, 7), (11, 0)
    vOW, vOR, vOG = 8, 9, 10
    vRL = [12, 13, 14, 15]
    vFW, vFR, vFE, vFT = 12, 13, 14, 15
    vIX = 15
    NM = [16 + 4 * x for x in range(4)]
    vnext, anext, vtop = 32, 0, 256
    Lreg = {}
    for x in ones_x:
        Lreg[x] = anext
        anext += 4
    if addx:
        for i, x in enumerate(addx):
            Lreg[x] = vnext + i
        vnext += 4
    Sreg = [vnext + 4 * i for i in range(a.ns)]
    vnext += 4 * a.ns
    Oreg = {}
    for x in range(4):
        if x in oacc_x:
            Oreg[x] = ("a", anext)
            anext += 32
        else:
            vtop -= 32
            Oreg[x] = ("v", vtop)
    Pbases = list(range(vnext, vtop, 4))
    Qreg = [[anext + 16 * x + 4 * s for s in range(4)] for x in range(4)]
    anext += 64
    aONE = anext
    anext += 4
    Fbases = list(range(anext, 256, 4))
    QT = Pbases[-8]
    UT = QT + 16
    vLN, vQA, vT1, vT2 = QT + 24, QT + 25, QT + 26, QT + 27
    vDQ = (QT + 28, QT + 29)
    assert len(Pbases) >= 8 + 4 * a.prek
    kvS = [(256, 512, 1024, 2048, 8192), (256, 512, 1024, 32768, 2048), (256, 512, 16384, 32768, 1024),
           (4096, 8192, 16384, 32768, 256), (256, 8192, 16384, 32768, 512)][a.kvs]
    qS = [(256, 512, 1024, 2048, 4096), (256, 512, 4096, 8192, 1024), (256, 512, 1024, 8192, 2048)][a.qs]
    lg = lambda n: n.bit_length() - 1

    sQ, sK, sV, sO = 12, 16, 20, 24
    sW, sWG, sMODE, sC, sTHR, sQW, sTMP, sT2 = 3, 28, 29, 30, 31, 34, 35, 32
    sWS = 36
    sWV = 38
    sOFF = 64
    sX = 40
    sBAD = 88

    NK = 16
    q0 = a.q0
    vwin = [NK, NK + 16]

    qk_units = [(j, x) for x in range(4) for j in range(PK)] + [(j, x) for j in range(PK, 32) for x in range(4)]
    uidx = {u: i for i, u in enumerate(qk_units)}
    assert gstart[a.prev + 1] >= PK >= gstart[a.prev]
    final_parts = [([int(c) for c in part if c.isdigit()],
                    range(4) if "a" in part else range(4, 8) if "b" in part else range(8)) for part in a.final.split(",")]
    pvq = []
    for g in range(G):
        if g < a.prev:
            for x in range(4):
                u = ([("sum", g, None, x)] if x in ones_x else []) + [("pv", g, b, x) for b in range(8)]
                pvq += [(PK * (x + 1) - 0.5, w) for w in u]
            continue
        if g < G - 1:
            u = [("sum", g, None, x) for x in ones_x] + [("pv", g, b, x) for b in range(8) for x in range(4)]
        else:
            u = []
            for xs, bs in final_parts:
                u += [("sum", g, None, x) for x in xs if x in ones_x and ("sum", g, None, x) not in u]
                u += [("pv", g, b, x) for b in bs for x in xs]
            for w in [w for w in u[1:] if w[0] == "sum"]:
                i = u.index(w)
                u.insert(max(1, i - a.sumearly), u.pop(i))
        lo = 4 * gstart[g + 1] + a.lag
        hi = 4 * gstart[min(g + 2, G)] + a.lag
        if a.pvend and g < G - 1:
            u0, span = 4 * gstart[a.prev + 1] + a.lag, gstart[G - 1] - gstart[a.prev]
            at = lambda t: u0 + (a.pvend - u0) * ((t - gstart[a.prev]) / span) ** (a.pvgam / 100)
            lo = max(lo, at(gstart[g]))
            hi = max(hi, at(gstart[g + 1])) if g < G - 2 else a.pvend
        pvq += [(lo + (hi - lo) * i / len(u) if g < G - 1 else 10 ** 6, w) for i, w in enumerate(u)]
    pvq.sort(key=lambda p: p[0])
    seq, pi = [], 0
    for ui, (j, x) in enumerate(qk_units):
        while pi < len(pvq) and pvq[pi][0] < ui and (ui <= 4 * PK or ui % a.qrun == 0):
            seq.append(pvq[pi][1])
            pi += 1
        seq.append(("qk", j, x))
    seq += [u for _, u in pvq[pi:]]

    M = []
    flip = False
    for n, u in enumerate(seq):
        same = n > 0 and seq[n - 1][0] == u[0] and (u[0] == "qk" or seq[n - 1][1] == u[1])
        flip = a.snake and same and not flip
        ks = list(range(4 if u[0] == "qk" else groups[u[1]] // 2))
        if u[0] == "sum" and a.sparse:
            ks = [k for k in ks if (gstart[u[1]] // 2 + k) % 2]
        for i, k in enumerate(ks[::-1] if flip else ks):
            M.append(("qk", u[1], u[2], k, i == 0) if u[0] == "qk" else (u[0], u[1], u[2], u[3], k))
    NMF = len(M)
    first_use, last_use = {}, {}

    def use(key, i):
        first_use.setdefault(key, i)
        last_use[key] = i

    for i, m in enumerate(M):
        if m[0] == "qk":
            _, j, x, s, _ = m
            use(("K", j, s), i)
            use(("S", j, x), i)
            use(("Q", x, s), i)
        else:
            kind, g, b, x, k = m
            kap = gstart[g] // 2 + k
            use(("P", kap, x), i)
            if kind == "pv":
                use(("V", kap, b), i)
                use(("O", x, b), i)
            else:
                use(("L", x), i)
                if a.sparse:
                    use(("P", kap - 1, x), i)
    qgap = {first_use["S", 0, x] - 1: x for x in range(4)}
    G0 = first_use["S", 0, 3] - 1

    pw = 2 if a.sparse else 1
    ppool = Pool("v", Pbases[len(Pbases) % pw::pw])
    for b in ppool.rel:
        if b >= QT:
            ppool.add(b, G0 + 1)
    Preg, Pfree = {}, {}
    for kap, x in sorted([(k, x) for k in range(0, 16, pw) for x in range(4)], key=lambda p: uidx[2 * p[0], p[1]]):
        b, rel = ppool.take(max(last_use["P", kap + i, x] for i in range(pw)))
        for i in range(pw):
            Preg[kap + i, x], Pfree[kap + i, x] = b + 4 * i, rel
    fpool = Pool("a", Fbases)
    for x in range(4):
        for s in range(4):
            fpool.add(Qreg[x][s], last_use["Q", x, s])
    frags = sorted([k for k in first_use if k[0] in "KV"], key=lambda k: first_use[k])
    Freg, Ffree = {}, {}
    for k in frags:
        Freg[k], Ffree[k] = fpool.take(last_use[k])
        assert Ffree[k] < first_use[k] - a.lat or Ffree[k] < 0, ("frag pool too small", k)

    mf = []
    started = set()
    for i, m in enumerate(M):
        if m[0] == "qk":
            _, j, x, s, head = m
            S = Sreg[uidx[j, x] % a.ns]
            A, B = Freg["K", j, s], Qreg[x][s]
            if head:
                C, cr = ("0", []) if j < a.nc0 else (rr("v", NM[x], 4), regs("v", NM[x], 4))
            else:
                C, cr = rr("v", S, 4), regs("v", S, 4)
            mf.append(Op(f"v_mfma_f32_16x16x32_bf16 {rr('v', S, 4)}, {rr('a', A, 4)}, {rr('a', B, 4)}, {C}", "mfma",
                         rd=regs("a", A, 4) + regs("a", B, 4) + cr, wr=regs("v", S, 4), srcc=cr))
        else:
            kind, g, b, x, k = m
            kap = gstart[g] // 2 + k
            if kind == "pv":
                p, o = Oreg[x][0], Oreg[x][1] + 4 * b
                A = Freg["V", kap, b]
                key = ("O", x, b)
            else:
                p, o, A, key = "a", Lreg[x], aONE, ("L", x)
            B = Preg[kap, x]
            if kind == "sum" and a.sparse:
                mf.append(Op(f"v_smfmac_f32_16x16x64_bf16 {rr(p, o, 4)}, {rr('a', A, 4)}, {rr('v', B - 4, 8)}, v{vIX}",
                             "mfma", rd=regs("a", A, 4) + regs("v", B - 4, 8) + [f"v{vIX}"] + regs(p, o, 4),
                             wr=regs(p, o, 4), srcc=regs(p, o, 4)))
                continue
            C, cr = (rr(p, o, 4), regs(p, o, 4)) if key in started else ("0", [])
            started.add(key)
            ab = [rr('a', A, 4), rr('v', B, 4)]
            if (a.dbgswap or a.pa) and kind == "pv":
                ab.reverse()
            mf.append(Op(f"v_mfma_f32_16x16x32_bf16 {rr(p, o, 4)}, {ab[0]}, {ab[1]}, {C}", "mfma",
                         rd=regs("a", A, 4) + regs("v", B, 4) + cr, wr=regs(p, o, 4), srcc=cr))

    tile_first = {}
    for d in range(16):
        tile_first["K", d] = min(first_use["K", 2 * d, s] for s in range(4))
        tile_first["V", d] = min(first_use["V", d, b] for b in range(8))
    dma_order = sorted(tile_first, key=lambda t: (tile_first[t], t[1]))
    pre_tiles = [t for t in dma_order if tile_first[t] <= G0]
    merge = [int(x) for x in a.merge.split(",")]
    wins = [int(x) for x in a.win.split(",")]
    nbar = a.nbar if flag else 99
    epochs, pub = [], {t: -1 for t in pre_tiles}
    for t in dma_order[len(pre_tiles):]:
        k = len(epochs)
        gc = max(tile_first[t] - wins[min(k, len(wins) - 1)], G0 + 1)
        if epochs and gc < epochs[-1]["gc"] + merge[min(k - 1, len(merge) - 1)]:
            epochs[-1]["tiles"].append(t)
        else:
            isbar = k < nbar
            epochs.append(dict(gc=gc, gr=gc - (0 if isbar else a.lat + 1), gs=gc - (0 if isbar else a.lat + 1 + a.skew),
                               tiles=[t], bar=isbar, n=k + 1))
            assert epochs[-1]["gs"] > G0 and (k == 0 or epochs[-1]["gr"] > epochs[-2]["gc"])
            assert k == 0 or epochs[-1]["gs"] > epochs[-2]["gs"]
        pub[t] = epochs[-1]["gc"]
    free_slots = {"K": [s for s in range(0, NK, 2) if not q0 <= s < q0 + 16],
                  "V": [s for s in range(NK, NSLOT, 2) if not q0 <= s < q0 + 16]}
    slot_of, dma_op = {}, {}
    tile_reads = {t: [] for t in tile_first}
    released = set()

    def slot_for(t):
        c = [s for s in free_slots[t[0]] if not (t[0] == "K" and t[1] >= 12 and s < 8)]
        if t[0] == "K" and 8 <= t[1] < 12:
            c.sort(key=lambda s: s >= 8)
        return c[0] if c else None

    def dma_pair(srd, vo, soff):
        gs = GV if srd == sV else GRAN
        ld = (a.ld.split("/") * 3)[[sQ, sK, sV].index(srd)]
        return [Op(f"buffer_load_dwordx4 v{vo[i]}, s[{srd}:{srd + 3}], s{soff} offen{' offset:%d' % gs if i else ''} {ld} lds"
                   .replace("  ", " "), "vmem", rd=["m0", f"v{vo[i]}"]) for i in range(2)]

    def make_dma(t):
        sl = slot_for(t)
        free_slots[t[0]].remove(sl)
        slot_of[t] = sl
        srd, vo = (sK, vDK) if t[0] == "K" else (sV, vDV)
        pre = Op(f"s_add_u32 m0, s{sWV if t[0] == 'V' and a.pa else sWG}, {sl * TILE}", "salu", wr=["m0"])
        ops = dma_pair(srd, vo, sOFF + t[1])
        dma_op[t] = ops[1]
        return pre, ops

    nstamp = [0]
    stampreg = list(range(56, 64, 2)) + list(range(80, 88, 2)) + [4, 6, 8, 10, 0, 96, 98, 32, 100]

    def stamp(kind="m"):
        if a.stamps and (kind in a.stampat or kind == "x") and (nstamp[0] < 14 or kind == "x"):
            for k, ins in enumerate(("s_memrealtime", "s_memtime")):
                if a.stamps >> k & 1:
                    r = stampreg[nstamp[0]]
                    nstamp[0] += 1
                    e(f"{ins} s[{r}:{r + 1}]", "smem")

    def v(text, wr, rd=(), cls="valu"):
        return e(text, cls, rd=list(rd), wr=list(wr))

    def va(text):
        return v(text, [text.split()[1].rstrip(",")])

    BIAS = GRAN - 1024
    e("s_cmp_ge_u32 s2, 256")
    e("s_cbranch_scc1 L_end")
    if a.spin:
        e("s_memrealtime s[60:61]", "smem")
    if a.report >= 0:
        e("s_memrealtime s[86:87]", "smem")
        e("s_load_dwordx2 s[100:101], s[0:1], 32", "smem")
    e("s_load_dwordx8 s[4:11], s[0:1], 0", "smem")
    if a.stamps:
        e(f"s_load_dwordx2 s[{sWS}:{sWS + 1}], s[0:1], 40", "smem")
    if a.pfcode:
        e("s_getpc_b64 s[96:97]")
        E.label("L_pc")
        e("s_add_u32 s96, s96, L_main-L_pc")
        e("s_addc_u32 s97, s97, 0")
        e("s_mov_b32 s98, L_codeend-L_main")
        e("s_mov_b32 s99, 0x20000")
        e("s_lshr_b32 s95, s2, 3")
        e("s_lshl_b32 s95, s95, 10")
        va("v_lshlrev_b32 v16, 2, v0")
        e(f"buffer_load_dword v{UT}, v16, s[96:99], s95 offen", "vmem", rd=["v16"], wr=[f"v{UT}"])
    if a.remap:
        e(f"s_and_b32 s{sTMP}, s2, 7")
        e(f"s_lshl_b32 s{sTMP}, s{sTMP}, 5")
        e("s_lshr_b32 s2, s2, 3")
        e(f"s_or_b32 s2, s2, s{sTMP}")
    e(f"s_mov_b32 s{sMODE}, 0")
    E.label("L_start")
    va("v_lshrrev_b32 v12, 6, v0")
    va(f"v_and_b32 v{vLN}, 63, v0")
    v(f"v_readfirstlane_b32 s{sW}, v12", [f"s{sW}"], ["v12"])
    va(f"v_lshrrev_b32 v13, 4, v{vLN}")
    va("v_and_b32 v14, 2, v13")
    va(f"v_xor_b32 v14, v14, v{vLN}")
    va(f"v_lshl_add_u32 v{vDQ[0]}, v14, 4, {BIAS}")
    va(f"v_add_u32 v{vDQ[1]}, {(qS[2] - GRAN) & 0xffffffff}, v{vDQ[0]}")
    va(f"v_lshlrev_b32 v12, {lg(kvS[3])}, v12")
    if kvS[:2] != (256, 512):
        va("v_and_b32 v15, 1, v13")
        va(f"v_mul_u32_u24 v15, {kvS[0] - 256}, v15")
        va("v_add_u32 v12, v12, v15")
        va("v_lshrrev_b32 v15, 1, v13")
        va(f"v_mul_u32_u24 v15, {kvS[1] - 512}, v15")
        va("v_add_u32 v12, v12, v15")
    va(f"v_add_u32 v{vDK[0]}, v12, v{vDQ[0]}")
    va(f"v_add_u32 v{vDK[1]}, {(kvS[2] - GRAN) & 0xffffffff}, v{vDK[0]}")
    va("v_and_b32 v14, 1, v13")
    va(f"v_lshlrev_b32 v14, {3 if a.pa else 1}, v14")
    va(f"v_xor_b32 v14, v14, v{vLN}")
    va(f"v_lshl_add_u32 v14, v14, 4, {BIAS}")
    va(f"v_add_u32 v{vDV[0]}, v12, v14")
    va(f"v_add_u32 v{vDV[1]}, {(kvS[2] - GV) & 0xffffffff}, v{vDV[0]}")
    e(f"s_mul_i32 s{sWG}, s{sW}, {2 * GRAN}", rd=[f"s{sW}"])
    if a.pa:
        e(f"s_mul_i32 s{sWV}, s{sW}, {2 * GV}")
    e(f"s_mul_i32 s{sQW}, s{sW}, {4 * TILE}")
    e(f"s_add_u32 s{sQW}, s{sQW}, {q0 * TILE}")
    e(f"s_lshl_b32 s{sTMP}, s2, 2")
    e(f"s_add_u32 s{sTMP}, s{sTMP}, s{sW}")
    if a.qrot:
        e(f"s_lshr_b32 s{sX}, s{sTMP}, {a.qrot - 1}")
        e(f"s_and_b32 s{sX}, s{sX}, 3")
        e(f"s_lshl_b32 s{sX}, s{sX}, {lg(qS[4])}")
    else:
        e(f"s_mov_b32 s{sX}, 0")
    e(f"s_lshl_b32 s{sTMP}, s{sTMP}, 14")
    e(f"s_lshl_b32 s{sC}, s2, 17")
    e(f"s_sub_u32 s{sC}, s{sC}, {BIAS}")
    e(f"s_subb_u32 s{sTHR}, 0, 0")
    e(f"s_sub_u32 s{sT2}, s{sTMP}, {BIAS}")
    e(f"s_subb_u32 s{sT2 + 1}, 0, 0")
    for d, size in ((sK, 131072 + BIAS), (sV, 131072 + BIAS), (sQ, 16384 + BIAS), (sO, 16384)):
        e(f"s_mov_b32 s{d + 2}, {size}")
        e(f"s_mov_b32 s{d + 3}, 0x20000")

    def set_off(j):
        if a.rot and j:
            e(f"s_xor_b32 s{sOFF + j}, s{sOFF}, {j * kvS[4]}")
        elif a.rot:
            e(f"s_lshr_b32 s{sOFF}, s2, {a.rot - 1}")
            e(f"s_and_b32 s{sOFF}, s{sOFF}, {a.rotmask}")
            if a.rotrev:
                e(f"s_brev_b32 s{sOFF}, s{sOFF}")
                e(f"s_lshr_b32 s{sOFF}, s{sOFF}, {32 - a.rotrev}")
            e(f"s_lshl_b32 s{sOFF}, s{sOFF}, {lg(kvS[4])}")
        else:
            e(f"s_mov_b32 s{sOFF + j}, {j * kvS[4]}")

    def set_x(x, g):
        if x or g:
            e(f"s_xor_b32 s{sX + 4 * x + g}, s{sX}, {x * qS[4] + (g >> 1) * qS[3] + (g & 1) * qS[2]}")

    for j in range(a.prek):
        set_off(j)
    e("s_waitcnt lgkmcnt(0)", "wait")
    srd_todo = {sK: (6, sC, f"s{sTHR}"), sQ: (4, sT2, f"s{sT2 + 1}"), sV: (8, sC, f"s{sTHR}"), sO: (10, sTMP, "0")}

    def need_srd(d):
        if d in srd_todo:
            p, lo, hi = srd_todo.pop(d)
            e(f"s_add_u32 s{d}, s{p}, s{lo}")
            e(f"s_addc_u32 s{d + 1}, s{p + 1}, {hi}")

    stamp("x")
    npre = len(pre_tiles)
    di = npre + a.ninit
    items = [make_dma(t) for t in dma_order[:di]]
    items[npre:npre] = [(Op(f"s_add_u32 m0, s{sQW}, {x * TILE + 2 * g * GRAN}", "salu", wr=["m0"]),
                         dma_pair(sQ, vDQ, sX + 4 * x + 2 * g)) for x in range(4) for g in range(2)]
    vm0 = E.nvm
    depth = [[int(z) for z in d.split(",")] for d in (a.deven, a.dodd or a.deven)]
    issued, landed, npoint = [0, 0], [0, 0], [0]

    def clone(o):
        return Op(o.text, o.cls, rd=o.rd, wr=o.wr)

    def point(*steps):
        code = [[], []]
        for vv in range(2):
            def issue():
                pre, ops = items[issued[vv]]
                code[vv] += [clone(pre), Op("s_nop 0", "nop")] + [clone(o) for o in ops]
                ops[1].idx, ops[1].gap, ops[1].vmn = len(E.out), E.gap, vm0 + 2 * issued[vv] + 1
                issued[vv] += 1
            for kind, k in steps:
                if kind == "wait" and landed[vv] <= k:
                    while issued[vv] <= k:
                        issue()
                    code[vv].append(Op(f"s_waitcnt vmcnt({2 * (issued[vv] - k - 1)})", "wait"))
                    landed[vv] = k + 1
                while kind == "top" and issued[vv] < len(items) and issued[vv] - landed[vv] < (depth[vv] + [99])[k]:
                    issue()
        n = npoint[0]
        npoint[0] += 1
        same = [o.text for o in code[0]] == [o.text for o in code[1]]
        for vv in range(2):
            for o in code[vv]:
                o.tag = None if same else ("arm", n, vv)
        if same:
            seq = code[0]
        elif not code[0] or not code[1]:
            seq = ([Op(f"s_cbranch_{'vccnz' if code[0] else 'vccz'} L_j{n}", "salu")] + code[0] + code[1] +
                   [Op(f"L_j{n}:", "label")])
        else:
            seq = ([Op(f"s_cbranch_vccnz L_o{n}", "salu")] + code[0] + [Op(f"s_branch L_j{n}", "salu", tag=("arm", n, 0)),
                   Op(f"L_o{n}:", "label")] + code[1] + [Op(f"L_j{n}:", "label")])
        for o in seq:
            E.emit(o) if o.cls != "label" else E.out.append(o)
        E.nvm, E.vm_done = vm0 + 2 * max(issued), vm0 + 2 * min(landed)

    n0 = min(depth[0][0], depth[1][0])
    for k in range(n0):
        pre, ops = items[k]
        E.emit(pre)
        need_srd(int(re.search(r"s\[(\d+):", ops[0].text).group(1)))
        if npre <= k < npre + 8:
            set_x((k - npre) // 2, 2 * ((k - npre) % 2))
        for o in ops:
            E.emit(o)
    issued[:] = [n0, n0]
    for d in (sK, sQ, sV, sO):
        need_srd(d)
    for x in range(4):
        for g in range(0, 4, 2):
            if npre + 2 * x + g // 2 >= n0:
                set_x(x, g)
    if depth[0] != depth[1]:
        e(f"s_getreg_b32 s{sTMP}, hwreg(HW_REG_XCC_ID, 0, 1)")
        e(f"s_cmp_lg_u32 s{sTMP}, 0")
        e("s_cselect_b64 vcc, -1, 0")
    point(("top", 0))
    for j in range(a.prek, 16):
        set_off(j)
    for x in range(4):
        for g in (1, 3):
            if not a.half:
                set_x(x, g)
    e(f"s_mov_b32 s{sC}, {f32bits(math.log2(math.e) / math.sqrt(128.0)):#x}")
    e(f"s_mov_b32 s{sTHR}, {f32bits(2.0 ** 32):#x}")
    va(f"v_and_b32 v12, 3, v{vLN}")
    va(f"v_bfe_u32 v13, v{vLN}, 2, 2")
    va(f"v_lshrrev_b32 v14, 4, v{vLN}")
    va(f"v_mul_u32_u24 v{vK}, {GRAN}, v12")
    va(f"v_lshl_add_u32 v{vK}, v13, 8, v{vK}")
    va("v_and_b32 v15, 2, v13")
    va("v_xor_b32 v15, v15, v14")
    va(f"v_lshl_add_u32 v{vK}, v15, 4, v{vK}")
    va(f"v_add_u32 v{vQA}, s{sQW}, v{vK}")
    va(f"v_mul_u32_u24 v{vV[0]}, {GV}, v13")
    va(f"v_lshl_add_u32 v{vV[0]}, v14, 8, v{vV[0]}")
    if a.pa:
        va("v_and_b32 v15, 1, v12")
        va(f"v_lshl_add_u32 v{vV[0]}, v15, 3, v{vV[0]}")
        va("v_lshrrev_b32 v15, 1, v12")
        va(f"v_lshl_add_u32 v{vV[0]}, v15, 6, v{vV[0]}")
    else:
        va(f"v_lshl_add_u32 v{vV[0]}, v12, 3, v{vV[0]}")
    va("v_and_b32 v15, 1, v14")
    va(f"v_lshl_add_u32 v{vV[0]}, v15, {7 if a.pa else 5}, v{vV[0]}")
    if a.hswap:
        e(f"s_lshl_b32 s{sT2}, s2, 2")
        e(f"s_add_u32 s{sT2}, s{sT2}, s{sW}")
        e(f"s_bfe_u32 s{sT2}, s{sT2}, {(a.hswap - 1) | 1 << 16:#x}")
        e(f"s_lshl_b32 s{sT2}, s{sT2}, 7")
        va(f"v_xor_b32 v{vV[0]}, s{sT2}, v{vV[0]}")
    va(f"v_xor_b32 v{vV[1]}, {128 if a.pa else 32}, v{vV[0]}")
    va(f"v_add_u32 v{vV[2]}, {vwin[1] * TILE}, v{vV[0]}")
    va(f"v_add_u32 v{vV[3]}, {vwin[1] * TILE}, v{vV[1]}")
    va(f"v_add_u32 v{vV[0]}, {vwin[0] * TILE}, v{vV[0]}")
    va(f"v_add_u32 v{vV[1]}, {vwin[0] * TILE}, v{vV[1]}")
    e(f"s_mul_i32 s{sTMP}, s{sW}, {2 * TILE}")
    vLW, vLR, vOR1 = 12, 13, 14
    if a.pa:
        va(f"v_lshlrev_b32 v{vOR}, 8, v14")
        va(f"v_lshl_add_u32 v{vOR}, v12, 6, v{vOR}")
        va(f"v_lshl_add_u32 v{vOR}, v13, 3, v{vOR}")
        va(f"v_lshl_add_u32 v{vOR}, v15, 5, v{vOR}")
        va(f"v_add_u32 v{vOR}, s{sTMP}, v{vOR}")
        va(f"v_lshrrev_b32 v12, 5, v{vLN}")
        va("v_lshlrev_b32 v13, 2, v12")
        va(f"v_xor_b32 v13, v13, v{vLN}")
        va(f"v_lshl_add_u32 v{vOW}, v13, 3, s{sTMP}")
        va(f"v_and_b32 v13, 7, v{vLN}")
        va("v_lshlrev_b32 v13, 4, v13")
        va(f"v_lshl_add_u32 v{vOG}, v12, {lg(qS[2])}, v13")
        va(f"v_bfe_u32 v13, v{vLN}, 3, 2")
        va(f"v_lshl_add_u32 v{vOG}, v13, 8, v{vOG}")
        e(f"s_lshl_b32 s{sTMP}, s{sW}, 8")
        e(f"s_add_u32 s{sTMP}, s{sTMP}, {SYNC_OFF}")
        va(f"v_lshl_add_u32 v{vLW}, v{vLN}, 2, s{sTMP}")
        va(f"v_lshl_add_u32 v{vLR}, v14, 4, s{sTMP}")
        va(f"v_xor_b32 v{vOR1}, 32, v{vOR}")
    else:
        va(f"v_and_b32 v15, 15, v{vLN}")
        va(f"v_mul_u32_u24 v{vOW}, 272, v15")
        va(f"v_lshl_add_u32 v{vOW}, v14, 3, v{vOW}")
        va(f"v_add_u32 v{vOW}, s{sTMP}, v{vOW}")
    if a.pa:
        pass
    elif a.half:
        va(f"v_bfe_u32 v13, v{vLN}, 3, 2")
        va("v_lshrrev_b32 v15, 1, v13")
        va("v_xor_b32 v15, v15, v13")
        va("v_and_b32 v15, 1, v15")
        va("v_lshlrev_b32 v15, 2, v15")
        va(f"v_xor_b32 v15, v15, v{vLN}")
        va("v_and_b32 v15, 7, v15")
        va("v_lshlrev_b32 v15, 4, v15")
        va(f"v_lshl_add_u32 v{vOG}, v13, 8, v15")
        va(f"v_mul_u32_u24 v{vOR}, {GRAN}, v13")
        va(f"v_add3_u32 v{vOR}, v{vOR}, v15, s{sTMP}")
        va(f"v_lshrrev_b32 v13, 5, v{vLN}")
        va(f"v_lshl_add_u32 v{vOG}, v13, {lg(qS[2])}, v{vOG}")
        va("v_mul_u32_u24 v13, 272, v13")
        va(f"v_add_u32 v{vOR}, v{vOR}, v13")
    else:
        va("v_lshlrev_b32 v13, 2, v14")
        va("v_sub_u32 v15, v15, v13")
        va("v_and_b32 v15, 15, v15")
        va("v_lshlrev_b32 v15, 4, v15")
        va(f"v_lshl_add_u32 v{vOG}, v14, 8, v15")
        va(f"v_mul_u32_u24 v{vOR}, {GRAN}, v14")
        va(f"v_add3_u32 v{vOR}, v{vOR}, v15, s{sTMP}")
    va("v_mov_b32 v15, 0x3f803f80")
    for i in range(4):
        v(f"v_accvgpr_write_b32 a{aONE + i}, v15", [f"a{aONE + i}"], ["v15"])
    if a.sparse:
        assert a.pa and not a.hswap
        va(f"v_and_b32 v{vIX}, 1, v{vLN}")
        va(f"v_sub_u32 v{vIX}, 0, v{vIX}")
        va(f"v_and_b32 v{vIX}, 0xaaaaaaaa, v{vIX}")
        va(f"v_or_b32 v{vIX}, 0x44444444, v{vIX}")
        for x in range(4):
            for i in range(4):
                v(f"v_accvgpr_write_b32 a{Lreg[x] + i}, 0", [f"a{Lreg[x] + i}"])
    if a.hswap:
        va(f"v_add_u32 v{vOG}, s{sT2}, v{vOG}")
        va(f"v_xor_b32 v15, 128, v{vOG}")
    for x in range(4):
        va(f"v_mov_b32 v{NM[x]}, 0xff800000")
    for x in addx:
        va(f"v_mov_b32 v{Lreg[x]}, 0")
    if flag:
        e(f"s_lshl_b32 s{sTMP}, s{sW}, 8")
        e(f"s_add_u32 s{sTMP}, s{sTMP}, {SYNC_OFF}")
        va(f"v_lshlrev_b32 v{vFE}, 2, v{vLN}")
        va(f"v_lshl_add_u32 v{vFR}, v12, 8, v{vFE}")
        va(f"v_add_u32 v{vFR}, {SYNC_OFF}, v{vFR}")
        va(f"v_add_u32 v{vFW}, s{sTMP}, v{vFE}")
        va(f"v_mov_b32 v{vFE}, 0")
        e(f"ds_write_b32 v{vFW}, v{vFE}", "ldsw", rd=[f"v{vFW}", f"v{vFE}"])
        E.lds_drain()
    if a.pads:
        e("s_mov_b64 exec, 0")
        for w in range(3):
            e(f"s_cmp_eq_u32 s{sW}, {w}")
            e(f"s_cbranch_scc1 L_pad{w}")
        e("s_branch L_pad3")
        E.out.append(Op(".p2align 12", "label"))
    E.label("L_main")
    if a.pads:
        e("s_mov_b64 exec, -1")

    def finalize_read(op):
        if op.text is not None:
            return
        if op.tag[0] == "K":
            _, j, s = op.tag
            off = (slot_of["K", j // 2] + j % 2) * TILE + 64 * s
            assert off < 65536
            op.text = f"ds_read_b128 {rr('a', Freg['K', j, s], 4)}, v{vK} offset:{off}"
        else:
            _, kap, b, tau = op.tag
            sl = slot_of["V", kap]
            w = 0 if sl < vwin[1] else 1
            off = (sl - vwin[w]) * TILE + tau * 4 * GV + (16 * (b & 3) if a.pa else 64 * (b >> 1))
            assert off < 65536
            av = vV[2 * w + (b >> 2 if a.pa else b & 1)]
            op.rd = [f"v{av}"]
            op.text = f"ds_read_b64_tr_b16 {rr('a', Freg['V', kap, b] + 2 * tau, 2)}, v{av} offset:{off}"

    kr = {(j, s): Op(None, "ldsr", rd=[f"v{vK}"], wr=regs("a", Freg["K", j, s], 4), tag=("K", j, s))
          for j in range(32) for s in range(4)}
    vr = {(kap, b, t): Op(None, "ldsr", wr=regs("a", Freg["V", kap, b] + 2 * t, 2), tag=("V", kap, b, t))
          for kap in range(16) for b in range(8) for t in range(2)}
    for (j, s), op in kr.items():
        tile_reads["K", j // 2].append(op)
    for (kap, b, t), op in vr.items():
        tile_reads["V", kap].append(op)

    point(*[st_ for k in range(npre) for st_ in (("wait", k), ("top", 1))])
    e("s_barrier", "barrier")
    for t in pre_tiles:
        for op in tile_reads[t]:
            finalize_read(op)
            E.emit(op)
    e(f"s_cmp_lg_u32 s{sMODE}, 0")
    e("s_cbranch_scc1 L_maxpass")
    E.label("L_maxdone")

    def q_scale(x, s):
        for i in range(4):
            src, t = QT + 4 * s + i, UT + 2 * i
            v(f"v_lshlrev_b32 v{t}, 16, v{src}", [f"v{t}"], [f"v{src}"])
            v(f"v_and_b32 v{t + 1}, 0xffff0000, v{src}", [f"v{t + 1}"], [f"v{src}"])
        for i in range(4):
            t = UT + 2 * i
            v(f"v_pk_mul_f32 {rr('v', t, 2)}, {rr('v', t, 2)}, s[{sC}:{sC + 1}] op_sel_hi:[1,0]", regs("v", t, 2),
              regs("v", t, 2))
        for i in range(4):
            v(f"v_cvt_pk_bf16_f32 v{UT + 2 * i}, v{UT + 2 * i}, v{UT + 2 * i + 1}", [f"v{UT + 2 * i}"],
              [f"v{UT + 2 * i}", f"v{UT + 2 * i + 1}"])
        for i in range(4):
            v(f"v_accvgpr_write_b32 a{Qreg[x][s] + i}, v{UT + 2 * i}", [f"a{Qreg[x][s] + i}"], [f"v{UT + 2 * i}"])

    def q_prepare(x):
        k = npre + 2 * x
        point(*([("wait", k), ("top", 1)] if x == 0 or a.halftop else []), ("wait", k + 1))
        stamp("q")
        rds = [e(f"ds_read_b128 {rr('v', QT + 4 * s, 4)}, v{vQA} offset:{x * TILE + 64 * s}", "ldsr",
                 rd=[f"v{vQA}"], wr=regs("v", QT + 4 * s, 4)) for s in range(4)]
        point(("top", 1))
        for s in range(4):
            E.lds_wait([rds[s]])
            q_scale(x, s)
        point(("top", 2 if x < 3 else 3))

    def first_max_ops(x):
        n = NM[x]
        ops = []

        def add(text, wr, rd, dist=0, deps=()):
            ops.append(Op(text, "valu", rd=rd, wr=wr, deps=([(ops[-1], dist)] if ops else []) + list(deps)))

        for j in range(a.nmax):
            S = Sreg[uidx[j, x] % a.ns]
            for r in (S, S + 2):
                add(f"v_max3_f32 v{n}, v{r}, v{r + 1}, v{n}", [f"v{n}"], [f"v{r}", f"v{r + 1}", f"v{n}"],
                    deps=[(mf[last_use["S", j, x]], 8)])
        for sw in ("v_permlane32_swap_b32", "v_permlane16_swap_b32"):
            add(f"v_mov_b32 v{n + 1}, v{n}", [f"v{n + 1}"], [f"v{n}"])
            add(f"{sw} v{n + 1}, v{n}", [f"v{n}", f"v{n + 1}"], [f"v{n}", f"v{n + 1}"], 2)
            add(f"v_max_f32 v{n}, v{n}, v{n + 1}", [f"v{n}"], [f"v{n}", f"v{n + 1}"])
        for i in (1, 2, 3, 0):
            add(f"v_mul_f32 v{n + i}, -1.0, v{n}", [f"v{n + i}"], [f"v{n}"])
        return ops

    F = []
    ladds = {x: [] for x in range(4)}
    nmdone = {}
    for u, (j, x) in enumerate(qk_units):
        S = Sreg[u % a.ns]
        prod = mf[last_use["S", j, x]]
        sdead = first_use[("S",) + qk_units[u + a.ns]] - 1 if u + a.ns < 128 else 10 ** 9
        kap = j // 2
        pdead = max(min(sdead, first_use["P", kap, x] - 2), last_use["S", j, x])
        assert pdead < first_use["P", kap, x]
        if j == 0:
            mops = first_max_ops(x)
            for k, o in enumerate(mops):
                o.dead = max(min(pdead, first_use["S", a.nc0, x] - 2), last_use["S", a.nmax - 1, x])
                assert o.dead < first_use["S", a.nc0, x]
                o.prio = (-1, u, k)
            nmdone[x] = mops[-4]
            F += mops
        ex = []
        for i in range(4):
            op = Op(f"v_exp_f32 v{S + i}, v{S + i}", "trans", rd=[f"v{S + i}"], wr=[f"v{S + i}"],
                    deps=[(prod, 8)], dead=pdead)
            op.prio = (pdead - 4 + i, u, 3 * i)
            if j < a.nc0:
                n = NM[x] + 1
                sub = Op(f"v_add_f32 v{S + i}, v{S + i}, v{n}", "valu", rd=[f"v{S + i}", f"v{n}"], wr=[f"v{S + i}"],
                         deps=[(nmdone[x], 0), (prod, 8)], dead=pdead)
                sub.prio = (pdead - 5 + i, u, 3 * i)
                F.append(sub)
                op.deps.append((sub, 0))
            ex.append(op)
            F.append(op)
            if x in addx:
                ad = Op(f"v_add_f32 v{Lreg[x]}, v{Lreg[x]}, v{S + i}", "valu", rd=[f"v{S + i}", f"v{Lreg[x]}"],
                        wr=[f"v{Lreg[x]}"], deps=[(op, 1)], dead=min(sdead, pdead + 8))
                ad.prio = (pdead - 4 + i, u, 3 * i + 2)
                F.append(ad)
                ladds[x].append(ad)
            if i % 2:
                P = Preg[kap, x] + 2 * (j % 2) + i // 2
                cv = Op(f"v_cvt_pk_bf16_f32 v{P}, v{S + i - 1}, v{S + i}", "valu",
                        rd=[f"v{S + i - 1}", f"v{S + i}"], wr=[f"v{P}"], deps=[(ex[i - 1], 1), (op, 1)],
                        early=Pfree[kap, x], dead=pdead)
                assert Pfree[kap, x] <= pdead, ("P pool too small", kap, x)
                cv.prio = (pdead - 4 + i, u, 3 * i + 1)
                F.append(cv)
    lastsm = F[-12 * a.ns:]
    for key, op in [(("K",) + k, o) for k, o in kr.items()] + [(("V",) + k[:2], o) for k, o in vr.items()]:
        fu = first_use[key]
        mf[fu].needs.append(op)
        if op.idx is None:
            op.early = max(Ffree[key], pub[key[0], key[1] // 2 if key[0] == "K" else key[1]],
                           fu - (a.fhoist if a.fhoist and key[0] == "V" and key[1] >= gstart[G - 1] // 2 else a.hoist))
            op.dead = max(fu - a.lat, op.early)
            assert op.dead < fu
            op.prio = (op.dead - a.rdbias, -1, fu)
            F.append(op)

    tq = Sreg + NM
    tfree = {b: None for b in tq}
    tdead = max(last_use["S", 31, x] for x in range(4))
    lastsync = epochs[-1]["gc"] + 1
    epi_order = list(dict.fromkeys(int(c) for c in a.final if c.isdigit()))
    seqn = [0]
    mfpos = {o: i for i, o in enumerate(mf)}
    stage_w, stage_r, mulpair = [], {}, {}

    def epi(text, cls, **kw):
        op = Op(text, cls, **kw)
        seqn[0] += 1
        op.prio = (10 ** 8, seqn[0], 0)
        if a.eprio:
            src = [mfpos[d] for d, _ in op.deps if d in mfpos] + [d.prio[0] - a.eprio for d, _ in op.deps if d not in mfpos]
            op.prio = (max(src) + a.eprio, seqn[0], 0)
        F.append(op)
        return op

    rcp, wrs_of = {}, {x: [] for x in range(4)}

    def recip(x):
        rl, L = vRL[x], Lreg[x]
        if x in ones_x:
            prev = epi(f"v_accvgpr_read_b32 v{rl}, a{L}", "valu", rd=[f"a{L}"], wr=[f"v{rl}"],
                       deps=[(mf[last_use["L", x]], 8)], early=lastsync)
            L = rl
        else:
            prev = None
            for sw in ("v_permlane32_swap_b32", "v_permlane16_swap_b32"):
                m1 = epi(f"v_mov_b32 v{rl}, v{L}", "valu", rd=[f"v{L}"], wr=[f"v{rl}"], early=lastsync,
                         deps=[(prev, 0)] if prev else [(o, 0) for o in ladds[x][-16:]])
                m2 = epi(f"{sw} v{rl}, v{L}", "valu", rd=[f"v{L}", f"v{rl}"], wr=[f"v{L}", f"v{rl}"], deps=[(m1, 2)])
                prev = epi(f"v_add_f32 v{L}, v{L}, v{rl}", "valu", rd=[f"v{L}", f"v{rl}"], wr=[f"v{L}"], deps=[(m2, 0)])
        cm = epi(f"v_cmp_nge_f32 s[{sBAD + 2 * x}:{sBAD + 2 * x + 1}], s{sTHR}, v{L}", "valu", rd=[f"v{L}"],
                 wr=[f"s{sBAD + 2 * x}"], deps=[(prev, 0)])
        rcp[x] = epi(f"v_rcp_f32 v{rl}, v{L}", "trans", rd=[f"v{L}"], wr=[f"v{rl}"], deps=[(cm, 0)])

    def epi_rows(x, h):
        n, (p, ob) = NM[x], Oreg[x]
        if x not in rcp:
            r0 = epi(f"v_accvgpr_read_b32 v{n}, a{Lreg[x]}", "valu", rd=[f"a{Lreg[x]}"], wr=[f"v{n}"],
                     deps=[(mf[last_use["L", x]], 12)])
            if a.sparse:
                r1 = epi(f"v_accvgpr_read_b32 v{n + 1}, a{Lreg[x] + 1}", "valu", rd=[f"a{Lreg[x] + 1}"],
                         wr=[f"v{n + 1}"], deps=[(mf[last_use["L", x]], 12)])
                r0 = epi(f"v_add_f32 v{n}, v{n}, v{n + 1}", "valu", rd=[f"v{n}", f"v{n + 1}"], wr=[f"v{n}"],
                         deps=[(r0, 0), (r1, 0)])
            cm = epi(f"v_cmp_nge_f32 s[{sBAD + 2 * x}:{sBAD + 2 * x + 1}], s{sTHR}, v{n}", "valu", rd=[f"v{n}"],
                     wr=[f"s{sBAD + 2 * x}"], deps=[(r0, 0)])
            rc = epi(f"v_rcp_f32 v{n}, v{n}", "trans", rd=[f"v{n}"], wr=[f"v{n}"], deps=[(cm, 0)])
            lw = epi(f"ds_write_b32 v{vLW}, v{n}", "ldsw", rd=[f"v{vLW}", f"v{n}"],
                     deps=[(rc, 1)] + [(o, 0) for o in rcp.values()])
            lw.cost = 8
            rcp[x] = epi(f"ds_read_b128 {rr('v', n, 4)}, v{vLR}", "ldsr", rd=[f"v{vLR}"], wr=regs("v", n, 4),
                         deps=[(lw, 0)])
        xi = epi_order.index(x)
        so, region = (xi % 2) * TILE + 2048 * h, (xi % 2, h)
        X, mu = [], []
        for b in range(4 * h, 4 * h + 4):
            prod, o = mf[last_use["O", x, b]], ob + 4 * b
            if p == "a":
                t, rel = spare.pop(0)
                src = [[(epi(f"v_accvgpr_read_b32 v{t + i}, a{o + i}", "valu", rd=[f"a{o + i}"], wr=[f"v{t + i}"],
                             deps=[(prod, 8)], early=rel), 0)] for i in range(4)]
            else:
                t, src = o, [[(prod, 8)]] * 4
            X.append(t)
            mu.append([epi(f"v_mul_f32 v{t + i}, v{n + i}, v{t + i}", "valu", rd=[f"v{n + i}", f"v{t + i}"],
                           wr=[f"v{t + i}"], deps=src[i] + [(rcp[x], a.stdist)], needs=[rcp[x]]) for i in range(4)])
            for i in (0, 2):
                mulpair[mu[-1][i]] = (mu[-1][i + 1],
                                      f"v_pk_mul_f32 {rr('v', t + i, 2)}, {rr('v', t + i, 2)}, {rr('v', n + i, 2)}")
            if b % 2 == 0:
                continue
            k = b % 4 - 1
            if k == 0:
                cv = {}
            for i in range(4):
                d = X[i % 2] + (i & 2) + k // 2
                after = [cv[0, i - 1]] if k == 0 and i % 2 else [cv[0, i | 1]] if k else []
                cv[k, i] = epi(f"v_cvt_pk_bf16_f32 v{d}, v{X[k] + i}, v{X[k + 1] + i}", "valu",
                               rd=[f"v{X[k] + i}", f"v{X[k + 1] + i}"], wr=[f"v{d}"],
                               deps=[(mu[k][i], 0), (mu[k + 1][i], 0)] + [(o, 0) for o in after])
        wrs = []
        for i in range(4):
            d = X[i % 2] + (i & 2)
            wrs.append(epi(f"ds_write_b64 v{vOW}, {rr('v', d, 2)} offset:{so + 512 * i}", "ldsw",
                           rd=[f"v{vOW}"] + regs("v", d, 2), early=10 ** 9,
                           deps=[(cv[0, i], 0), (cv[2, i], 0)] + [(r, 0) for r in stage_r.get(region, [])]))
        stage_w.extend(wrs)
        stage_r[region] = []
        for m in range(2):
            d = X[2 + m]
            rds = [epi(f"ds_read_b64_tr_b16 {rr('v', d + 2 * t, 2)}, v{(vOR, vOR1)[t]} offset:{so + 1024 * m}", "ldsr",
                       rd=[f"v{(vOR, vOR1)[t]}"], wr=regs("v", d + 2 * t, 2),
                       deps=[(w, 0) for w in wrs[2 * m:2 * m + 2]] + [(cv[2, i], 0) for i in range(4)])
                   for t in range(2)]
            stage_r[region] += rds
        for m in range(2):
            rds = stage_r[region][2 * m:2 * m + 2]
            off = f" offset:{128 * h}" if h and not a.hswap else ""
            vo = 15 if h and a.hswap else vOG
            st = (a.st.split("/") * 8)[len(stage_w) // 4 - 1]
            epi(f"buffer_store_dwordx4 {rr('v', X[2 + m], 4)}, v{vo}, s[{sO}:{sO + 3}], s{sX + 4 * x + 2 * m} offen{off} {st}"
                .rstrip(), "vmem", rd=regs("v", X[2 + m], 4) + [f"v{vo}"], deps=[(r, a.stdist) for r in rds], needs=rds)

    spare = sorted([(b + 4 * i, rel) for b, rel in ppool.rel.items() for i in range(pw)], key=lambda kv: kv[1])
    for x, bs in [(x, bs) for xs, bs in final_parts for x in xs]:
        if a.pa:
            for h in sorted({b // 4 for b in bs}):
                epi_rows(x, h)
            continue
        assert a.half or len(bs) == 8
        if x not in rcp:
            recip(x)
        xi = epi_order.index(x)
        rl, rc, wrs = vRL[x], rcp[x], wrs_of[x]
        p, ob = Oreg[x]
        so = (xi % 2) * TILE
        for b in bs:
            region = (xi % 2, b // 4 if a.half else 0)
            prod = mf[last_use["O", x, b]]
            o = ob + 4 * b
            if p == "a":
                t = tq.pop(0)
                tq.append(t)
                dep0 = [(d, 0) for d in (tfree[t] or lastsm)]
                src4 = [[(epi(f"v_accvgpr_read_b32 v{t + i}, a{o + i}", "valu", rd=[f"a{o + i}"], wr=[f"v{t + i}"],
                              deps=[(prod, 8)] + dep0, early=tdead + 1), 0)] for i in range(4)]
            else:
                t = o
                src4 = [[(prod, 8)] for i in range(4)]
            mu = [epi(f"v_mul_f32 v{t + i}, v{rl}, v{t + i}", "valu", rd=[f"v{rl}", f"v{t + i}"], wr=[f"v{t + i}"],
                      deps=src4[i] + [(rc, 1)]) for i in range(4)]
            for i in (0, 2):
                sel = "op_sel:[0,1] op_sel_hi:[1,1]" if rl % 2 else "op_sel_hi:[1,0]"
                mulpair[mu[i]] = (mu[i + 1], f"v_pk_mul_f32 {rr('v', t + i, 2)}, {rr('v', t + i, 2)}, "
                                             f"{rr('v', rl & ~1, 2)} {sel}")
            c0 = epi(f"v_cvt_pk_bf16_f32 v{t}, v{t}, v{t + 1}", "valu", rd=[f"v{t}", f"v{t + 1}"], wr=[f"v{t}"],
                     deps=[(mu[0], 0), (mu[1], 0)])
            c1 = epi(f"v_cvt_pk_bf16_f32 v{t + 1}, v{t + 2}, v{t + 3}", "valu", rd=[f"v{t + 2}", f"v{t + 3}"],
                     wr=[f"v{t + 1}"], deps=[(mu[2], 0), (mu[3], 0), (c0, 0)])
            w = epi(f"ds_write_b64 v{vOW}, {rr('v', t, 2)} offset:{so + 32 * b}", "ldsw",
                    rd=[f"v{vOW}", f"v{t}", f"v{t + 1}"], early=10 ** 9,
                    deps=[(c0, 0), (c1, 0)] + [(r, 0) for r in stage_r.get(region, [])])
            wrs.append(w)
            stage_w.append(w)
            if p == "a":
                tfree[t] = [w]
            if b % (4 if a.half else 8) != (3 if a.half else 7):
                continue
            if a.half:
                h = b // 4
                pieces = [(ob + 16 * h + 4 * n, so + 544 * n + 128 * h, 2 * n, 128 * h) for n in range(2)]
            else:
                pieces = [(ob + 4 * i, so + 272 * i, i, 0) for i in range(4)]
            rds = [epi(f"ds_read_b128 {rr(p, r, 4)}, v{vOR} offset:{lo}", "ldsr", rd=[f"v{vOR}"], wr=regs(p, r, 4),
                       deps=[(w, 0) for w in wrs]) for r, lo, _, _ in pieces]
            stage_r[region] = rds
            for rd_, (r, _, gi, go) in zip(rds, pieces):
                if str(x) in a.dbgnost:
                    continue
                stx = (st.split("/") * 4)[xi]
                off = f" offset:{go}" if go else ""
                epi(f"buffer_store_dwordx4 {rr(p, r, 4)}, v{vOG}, s[{sO}:{sO + 3}], s{sX + 4 * x + gi} offen{off} {stx}".rstrip(),
                    "vmem", rd=regs(p, r, 4) + [f"v{vOG}"], deps=[(rd_, a.stdist)], needs=[rd_])

    pending = sorted(F, key=lambda o: o.prio)
    overflow = 0
    leads = []

    def ready(op, strict=True):
        if op.early > E.gap:
            return False
        for d, dist in op.deps:
            if d.idx is None or (strict and E.nst - d.st < dist):
                return False
        return True

    def put(op):
        if op.cls == "ldsr":
            finalize_read(op)
        if op.needs:
            E.lds_wait(op.needs)
        E.emit(op)
        pending.remove(op)

    def closure(op, acc):
        assert op.early <= E.gap, ("cannot meet deadline", op.text, op.tag, op.early, E.gap)
        for d, _ in op.deps:
            if d.idx is None and d not in acc:
                assert d.cls != "mfma", ("deadline before producer", op.text, E.gap)
                closure(d, acc)
        if op not in acc:
            acc.append(op)

    def drain(merge_mul=False):
        while True:
            cand = [o for o in pending if ready(o)] or [o for o in pending if ready(o, False)]
            if not cand:
                return
            o = cand[0]
            if merge_mul and o in mulpair and mulpair[o][0].idx is None and ready(mulpair[o][0], False):
                o2, o.text = mulpair[o]
                o.rd += o2.rd
                o.wr += o2.wr
                put(o)
                o2.idx, o2.st = o.idx, o.st
                pending.remove(o2)
            else:
                put(o)

    def signal(ep):
        for t in ep["tiles"]:
            assert t in dma_op and dma_op[t].idx is not None, ("tile not issued before its epoch", t, ep)
            leads.append(E.gap - dma_op[t].gap)
        stamp("b")
        if ep["n"] >= len(epochs) - 2:
            stamp("e")
        E.vm_wait([dma_op[t] for t in ep["tiles"]])
        stamp("w")
        ep["rel"] = [t for t, rs in tile_reads.items() if t not in released and t in slot_of and
                     all(r.idx is not None and (not ep["bar"] or r.ldsn < E.lds_done) for r in rs)]
        released.update(ep["rel"])

    def passed(ep):
        if ep["n"] == 1:
            for s in range(q0, q0 + 16, 2):
                free_slots["K" if s < NK else "V"].append(s)
        for t in ep["rel"]:
            free_slots[t[0]].append(slot_of[t])
        if ("K", 11) in slot_of and all(s in free_slots["K"] for s in range(0, 8, 2)):
            for w in stage_w:
                w.early = min(w.early, E.gap)

    dper = [int(x.split("x")[0]) for x in a.dmaper.split(",") for _ in range(int((x + "x1").split("x")[1]))]
    next_dma_gap = G0 + a.dma0
    staged = None
    for g in range(-1, NMF):
        E.gap = g
        if g >= 0:
            E.emit(mf[g])
        if g in qgap:
            drain()
            q_prepare(qgap[g])
            if g == G0:
                stamp()
            E.lds_wait(mf[g + 1].needs)
            continue
        shadow = True
        budget = 8 if g < tdead + a.fstart else (a.fbudget * (g + 1) // 4 - a.fbudget * g // 4) * 4
        budget0 = budget
        if g >= 0 and "smfmac" in mf[g].text:
            budget -= 4
        fixed_mem, fixed_valu = [], []
        for ep in epochs:
            if ep["bar"]:
                if g == ep["gc"]:
                    signal(ep)
                    e("s_barrier", "barrier")
                    stamp("b")
                    if ep["n"] >= len(epochs) - 2:
                        stamp("e")
                    passed(ep)
                    shadow = False
                continue
            if g == ep["gs"] - 1:
                fixed_valu.append(Op(f"v_mov_b32 v{vFE}, {ep['n']}", "valu", wr=[f"v{vFE}"]))
            if g == ep["gs"]:
                signal(ep)
                shadow = False
                E.emit(Op(f"ds_write_b32 v{vFW}, v{vFE}", "ldsw", rd=[f"v{vFW}", f"v{vFE}"]))
                budget -= 8
            if g == ep["gr"]:
                ep["rd"] = Op(f"ds_read_b32 v{vFT}, v{vFR}", "ldsr", rd=[f"v{vFR}"], wr=[f"v{vFT}"])
                fixed_mem.append(ep["rd"])
            if g == ep["gc"] - 1:
                if E.lds_wait([ep["rd"]], a.lat):
                    shadow = False
                fixed_valu.append(Op(f"v_cmp_gt_u32 vcc, {ep['n']}, v{vFT}", "valu", rd=[f"v{vFT}"], wr=["vcc"]))
            if g == ep["gc"]:
                e(f"s_cbranch_vccnz L_spin{ep['n']}")
                E.label(f"L_ok{ep['n']}")
                passed(ep)
                shadow = False
        if a.stamps and g in [first_use["S", gs, 0] for gs in (4, 8, 12, 16, 20, 24, 28)] + [tdead]:
            stamp()
        if g in (first_use["S", 14, 0], first_use["S", 22, 0]):
            stamp("s")
        if g in (G0 + 1, first_use["S", 14, 0], tdead):
            stamp("g")
        if g >= NMF - 145 and (NMF - 1 - g) % 36 == 0:
            stamp("e")
        if g > G0 and (g - G0) % a.stampper == 1:
            stamp("p")
        if g + 1 < NMF and mf[g + 1].needs and all(n.idx is not None for n in mf[g + 1].needs):
            if E.lds_wait(mf[g + 1].needs, a.lat):
                shadow = False
        quiet = not any(not ep["bar"] and g + 1 in (ep["gs"] - 1, ep["gs"], ep["gr"], ep["gc"] - 1) for ep in epochs)
        if staged is not None:
            for o in staged:
                E.emit(o)
            staged = None
            budget -= a.dmacost
        elif shadow and quiet and di < len(dma_order) and g >= next_dma_gap and slot_for(dma_order[di]) is not None:
            pre, staged = make_dma(dma_order[di])
            di += 1
            E.emit(pre)
            next_dma_gap = max(next_dma_gap, g - 4) + dper[0]
            if len(dper) > 1:
                dper.pop(0)
        budget -= 4 * (len(fixed_mem) + len(fixed_valu))
        full = budget >= 8
        picks = []
        for o in pending:
            if o.dead <= g:
                closure(o, picks)
        budget -= sum(o.cost for o in picks)
        cand = [o for o in pending[:400] if o not in picks and ready(o)]
        if full and not picks and cand:
            first = cand[0]
            small = [o for o in cand if o.cost == 4]
            tr = [o for o in cand if o.cls == "trans"]
            if first.cost == 4 and len(small) < 2 and tr:
                first = tr[0]
            picks.append(first)
            budget -= first.cost
        for o in cand:
            if o not in picks and o.cost <= budget:
                picks.append(o)
                budget -= o.cost
        mem = [o for o in picks if o.cls in ("ldsr", "ldsw", "vmem") and all(d.idx is not None for d, _ in o.deps)]
        rest = [o for o in picks if o not in mem]
        for o in fixed_mem:
            E.emit(o)
        for o in mem:
            put(o)
        for o in fixed_valu:
            E.emit(o)
        while rest:
            o = ([o for o in rest if ready(o)] or [o for o in rest if ready(o, False)])[0]
            put(o)
            rest.remove(o)
        while budget > 0:
            more = [o for o in pending[:400] if o.cls == "valu" and ready(o)]
            if not more:
                break
            put(more[0])
            budget -= 4
        if full and not picks and budget >= 8 and any(ready(o, False) for o in pending[:400]):
            e("s_nop 1", "nop")
        if a.touch and g == a.touch:
            e(f"buffer_load_dword v15, v{vOG}, s[{sO}:{sO + 3}], 0 offen nt", "vmem", rd=[f"v{vOG}"], wr=["v15"])
        if a.dbgnop:
            n0, n1, ev, ln = [int(x) for x in a.dbgnop.split(",")]
            if n0 <= g < n1 and g % ev == 0:
                e(f"s_nop {ln}", "nop")
        if g > G0:
            overflow += max(0, budget0 - budget - 8)
        if g + 1 < NMF and mf[g + 1].needs:
            E.lds_wait(mf[g + 1].needs)
    assert staged is None and di == len(dma_order) and issued == [len(items)] * 2
    stamp()
    ntail = len(pending)
    n0 = len(E.out)
    drain(a.pk)
    overflow += sum(o.cost for o in E.out[n0:])
    assert not pending
    stamp("x")

    e(f"s_or_b64 s[{sBAD}:{sBAD + 1}], s[{sBAD}:{sBAD + 1}], s[{sBAD + 2}:{sBAD + 3}]")
    e(f"s_or_b64 s[{sBAD + 4}:{sBAD + 5}], s[{sBAD + 4}:{sBAD + 5}], s[{sBAD + 6}:{sBAD + 7}]")
    e(f"s_or_b64 s[{sBAD}:{sBAD + 1}], s[{sBAD}:{sBAD + 1}], s[{sBAD + 4}:{sBAD + 5}]")
    e(f"s_cselect_b32 s{sTMP}, 1, 0")
    e(f"s_lshl_b32 s{sC}, s{sW}, 2")
    e(f"s_add_u32 s{sC}, s{sC}, {FLAG_OFF}")
    va(f"v_mov_b32 v12, s{sC}")
    va(f"v_mov_b32 v13, s{sTMP}")
    va(f"v_mov_b32 v14, {FLAG_OFF}")
    e("ds_write_b32 v12, v13", "ldsw", rd=["v12", "v13"])
    E.lds_drain()
    e("s_barrier", "barrier")
    e("ds_read_b128 v[16:19], v14", "ldsr", rd=["v14"], wr=regs("v", 16, 4))
    E.lds_drain()
    v("v_or3_b32 v16, v16, v17, v18", ["v16"], regs("v", 16, 3))
    v("v_or_b32 v16, v16, v19", ["v16"], ["v16", "v19"])
    v(f"v_readfirstlane_b32 s{sTMP}, v16", [f"s{sTMP}"], ["v16"])
    e(f"s_andn2_b32 s{sTMP}, s{sTMP}, s{sMODE}", rd=[f"s{sTMP}"])
    e("s_cbranch_scc1 L_rerun")
    if a.stamps:
        e("s_waitcnt vmcnt(0)", "wait")
        stamp("x")
        E.lds_drain()
        e(f"s_mov_b32 s{sWS + 2}, 1048576")
        e(f"s_mov_b32 s{sWS + 3}, 0x20000")
        e(f"s_lshl_b32 s{sTMP}, s2, 2")
        e(f"s_add_u32 s{sTMP}, s{sTMP}, s{sW}")
        e(f"s_mul_i32 s{sTMP}, s{sTMP}, {8 * nstamp[0]}")
        va("v_mov_b32 v12, 0")
        for i in range(nstamp[0] if a.report < 0 else 0):
            va(f"v_mov_b32 v14, s{stampreg[i]}")
            va(f"v_mov_b32 v15, s{stampreg[i] + 1}")
            e(f"buffer_store_dwordx2 v[14:15], v12, s[{sWS}:{sWS + 3}], s{sTMP} offen offset:{8 * i}", "vmem",
              rd=["v14", "v15", "v12"])
            e("s_nop 1", "nop")
    if a.report >= 0:
        r = stampreg[a.report]
        e("s_mov_b32 s94, s86")
        if a.reportglob:
            e("s_mov_b32 s88, s100")
            e("s_mov_b32 s89, s101")
            e("s_mov_b32 s90, 256")
            e("s_mov_b32 s91, 0x20000")
            E.label("L_diag4")
            e("s_memrealtime s[92:93]", "smem")
            e("s_waitcnt lgkmcnt(0)", "wait")
            e("s_sub_u32 s92, s92, s94")
            e("s_cmp_lt_u32 s92, 2600")
            e("s_cbranch_scc1 L_diag4")
            e("s_not_b32 s92, s86")
            va("v_mov_b32 v14, s92")
            va("v_mov_b32 v12, 0")
            e("s_mov_b64 exec, 1")
            e("buffer_atomic_umax v14, v12, s[88:91], 0 offen sc1", "vmem", rd=["v14", "v12"])
            e("s_mov_b64 exec, -1")
            E.label("L_diag3")
            e("s_memrealtime s[92:93]", "smem")
            e("s_waitcnt lgkmcnt(0)", "wait")
            e("s_sub_u32 s92, s92, s94")
            e("s_cmp_lt_u32 s92, 5000")
            e("s_cbranch_scc1 L_diag3")
            e("buffer_load_dword v14, v12, s[88:91], 0 offen sc0 sc1", "vmem", rd=["v12"], wr=["v14"])
            e("s_waitcnt vmcnt(0)", "wait")
            v("v_readfirstlane_b32 s94, v14", ["s94"], ["v14"])
            e("s_not_b32 s94, s94", rd=["s94"])
        if a.reportwg:
            e(f"s_lshr_b32 s{sTMP}, s2, 5")
            e(f"s_cmp_lg_u32 s{sTMP}, {a.reportwg - 1}")
            e("s_cbranch_scc1 L_end")
        e(f"s_sub_u32 s{sTMP}, s{r}, s94")
        e(f"s_min_u32 s{sTMP}, s{sTMP}, 4000")
        e(f"s_mul_i32 s{sTMP}, s{sTMP}, 5")
        e(f"s_add_u32 s{sTMP}, s{sTMP}, 3000")
        E.label("L_diag2")
        e("s_memrealtime s[92:93]", "smem")
        e("s_waitcnt lgkmcnt(0)", "wait")
        e("s_sub_u32 s92, s92, s94")
        e(f"s_cmp_lt_u32 s92, s{sTMP}")
        e("s_cbranch_scc1 L_diag2")
    if a.spin:
        e("s_waitcnt vmcnt(0)", "wait")
        E.label("L_diag")
        e("s_memrealtime s[62:63]", "smem")
        e("s_waitcnt lgkmcnt(0)", "wait")
        e("s_sub_u32 s62, s62, s60")
        e(f"s_cmp_lt_u32 s62, {a.spin * 100}")
        e("s_cbranch_scc1 L_diag")
    E.label("L_end")
    e("s_endpgm", "end")

    for ep in epochs:
        if not ep["bar"]:
            E.label(f"L_spin{ep['n']}")
            e(f"ds_read_b32 v{vFT}, v{vFR}", "ldsr", rd=[f"v{vFR}"], wr=[f"v{vFT}"])
            e("s_waitcnt lgkmcnt(0)", "wait")
            v(f"v_cmp_gt_u32 vcc, {ep['n']}, v{vFT}", ["vcc"], [f"v{vFT}"])
            e(f"s_cbranch_vccnz L_spin{ep['n']}")
            e(f"s_branch L_ok{ep['n']}")
    E.label("L_codeend")

    E.label("L_rerun")
    e(f"s_mov_b32 s{sMODE}, 1")
    e("s_waitcnt vmcnt(0) lgkmcnt(0)", "wait")
    e("s_barrier", "barrier")
    va("v_mbcnt_lo_u32_b32 v0, -1, 0")
    va("v_mbcnt_hi_u32_b32 v0, -1, v0")
    e(f"s_lshl_b32 s{sTMP}, s{sW}, 6")
    va(f"v_add_u32 v0, s{sTMP}, v0")
    e("s_branch L_start")

    E.label("L_maxpass")
    va(f"v_bfe_u32 v{vT1}, v{vLN}, 2, 2")
    va(f"v_lshrrev_b32 v{vT2}, 4, v{vLN}")
    va(f"v_lshl_add_u32 v{vT2}, v{vT2}, 4, {BIAS}")
    va(f"v_lshl_add_u32 v{vT1}, v{vT1}, 8, v{vT2}")
    va(f"v_and_b32 v{UT}, 1, v{vLN}")
    va(f"v_lshl_add_u32 v{vT2}, v{UT}, {lg(qS[2])}, v{vT1}")
    va(f"v_bfe_u32 v{UT}, v{vLN}, 1, 1")
    va(f"v_lshl_add_u32 v{vT2}, v{UT}, {lg(qS[3])}, v{vT2}")
    va(f"v_and_b32 v{UT}, 3, v{vLN}")
    va(f"v_lshl_add_u32 v{vT1}, v{UT}, 10, v{vT1}")
    for x in range(4):
        for s in range(4):
            e(f"buffer_load_dwordx4 {rr('v', QT + 4 * s, 4)}, v{vT2}, s[{sQ}:{sQ + 3}], s{sX + 4 * x} offen offset:{64 * s}",
              "vmem", rd=[f"v{vT2}"], wr=regs("v", QT + 4 * s, 4))
        e("s_waitcnt vmcnt(0)", "wait")
        for s in range(4):
            q_scale(x, s)
    e(f"s_mov_b32 s{sTMP}, 0")
    E.label("L_maxloop")
    for s in range(4):
        e(f"buffer_load_dwordx4 {rr('v', QT + 4 * s, 4)}, v{vT1}, s[{sK}:{sK + 3}], s{sTMP} offen offset:{64 * s}",
          "vmem", rd=[f"v{vT1}"], wr=regs("v", QT + 4 * s, 4))
    e("s_waitcnt vmcnt(0)", "wait")
    for x in range(4):
        S = Sreg[x]
        for s in range(4):
            C, cr = ("0", []) if s == 0 else (rr("v", S, 4), regs("v", S, 4))
            E.emit(Op(f"v_mfma_f32_16x16x32_bf16 {rr('v', S, 4)}, {rr('v', QT + 4 * s, 4)}, {rr('a', Qreg[x][s], 4)}, {C}",
                      "mfma", rd=regs("v", QT + 4 * s, 4) + regs("a", Qreg[x][s], 4) + cr, wr=regs("v", S, 4), srcc=cr))
    e("s_nop 7", "nop")
    for x in range(4):
        S, n = Sreg[x], NM[x]
        v(f"v_max3_f32 v{n}, v{S}, v{S + 1}, v{n}", [f"v{n}"], [f"v{S}", f"v{S + 1}", f"v{n}"])
        v(f"v_max3_f32 v{n}, v{S + 2}, v{S + 3}, v{n}", [f"v{n}"], [f"v{S + 2}", f"v{S + 3}", f"v{n}"])
    e(f"s_add_u32 s{sTMP}, s{sTMP}, 4096")
    e(f"s_cmp_lt_u32 s{sTMP}, 131072")
    e("s_cbranch_scc1 L_maxloop")
    e("s_nop 3", "nop")
    e("s_branch L_maxdone")

    ops, nnop = fix_hazards(E.out)
    if a.pads:
        ops = insert_pads(ops)
    if a.verbose:
        print("G0", G0, "tdead", tdead)
        print([(ep["gs"], ep["gc"], [t[0] + str(t[1]) for t in ep["tiles"]]) for ep in epochs])
        print("leads", leads)
        print("stores", [o.gap for o in E.out if "buffer_store" in o.text])
    info = dict(mfma=NMF, instrs=len(ops), nops=nnop, overflow=overflow, tail=ntail, epochs=len(epochs),
                minlead=min(leads[a.ninit:]), pslots=len(Pbases), fslots=len(Fbases), stamps=nstamp[0])
    head = [
        "; GQA attention forward, B=32 Hq=32 Hkv=8 Sq=64 Sk=512 D=128, bf16 in / bf16 out (generated schedule).",
        "; kernarg: q @0, k @8, v @16, out @24, debug @32, ws @40",
        "; One workgroup per (batch, kv head); wave w handles q head 4*hkv+w.",
        "; Softmax shift: row max of the first keys; a final check on the row sums reruns the",
        "; workgroup with the true row max (L_rerun / L_maxpass) whenever that shift is unsafe.",
        f"; @launch grid=(256,1,1) block=(256,1,1) lds={LDS_BYTES}",
        '.amdgcn_target "amdgcn-amd-amdhsa--gfx950"', ".text", f".globl {KNAME}", ".p2align 8",
        f".type {KNAME},@function", f"{KNAME}:"]
    body = [(o.text if o.cls == "label" else "    " + o.text) for o in ops]
    tail = ['.section .rodata,"a"', ".p2align 6", f".amdhsa_kernel {KNAME}",
            "  .amdhsa_next_free_vgpr 512", "  .amdhsa_next_free_sgpr 102", "  .amdhsa_accum_offset 256",
            "  .amdhsa_group_segment_fixed_size 0", "  .amdhsa_kernarg_size 48", "  .amdhsa_user_sgpr_count 2",
            "  .amdhsa_user_sgpr_kernarg_segment_ptr 1", "  .amdhsa_system_sgpr_workgroup_id_x 1",
            ".end_amdhsa_kernel"]
    return "\n".join(head + body + tail) + "\n", info


def parser():
    ap = argparse.ArgumentParser()
    ap.add_argument("out")
    for k, d in dict(groups="2,2,4,4,4,4,4,8", final="0a,1a,2a,3a,0b,1b,2b,3b", ones="0123", oacc="2", ld="nt", st="sc1 nt", sync="bar",
                     merge="12,12,40", win="10,10,16", dmaper="29x17,22", stampat="m", dbgnop="", dbgnost="", deven="3,3,4", dodd="5,3,4").items():
        ap.add_argument("--" + k, default=d)
    for k, d in dict(ns=5, lag=3, lat=6, skew=8, nbar=1, dmacost=8, dma0=8, rdbias=8, hoist=64, stdist=12, q0=10,
                     ninit=3, infl=8, halftop=0, prek=2, prev=1, nc0=3, nmax=1, fbudget=14, fstart=16, pk=1,
                     half=1, sparse=0, hswap=0, touch=0, report=-1, reportwg=0, reportglob=0, eprio=8, pa=1, sumearly=2, smooth=2, fhoist=80, rot=1, remap=1, rotmask=15, rotrev=0, qrot=3, kvs=0, qs=0, dbgswap=0, infl0=0, infl1=0, pvend=0, pvgam=100, qrun=1, snake=1, stampper=60, stamps=0, spin=0, pfcode=1, pads=1, verbose=0).items():
        ap.add_argument("--" + k, type=int, default=d)
    return ap


if __name__ == "__main__":
    a = parser().parse_args()
    txt, info = build(a)
    open(a.out, "w").write(txt)
    print(a.out, info)
```

```python
import argparse, math, re, struct, sys

KNAME = "standalone__gqa_softmax__near_ridge_kernel"
TILE = 4352
GRAN = 1088
NSLOT = 36
LDS_BYTES = 163840
FLAG_OFF = NSLOT * TILE
SYNC_OFF = FLAG_OFF + 256


def f32bits(x):
    return struct.unpack("<I", struct.pack("<f", x))[0]


def regs(p, lo, n):
    return [f"{p}{lo + i}" for i in range(n)]


def rr(p, lo, n):
    return f"{p}[{lo}:{lo + n - 1}]" if n > 1 else f"{p}{lo}"


class Op:
    __slots__ = ("text", "cls", "rd", "wr", "deps", "early", "dead", "prio", "needs", "idx", "gap",
                 "ldsn", "pre", "vmn", "tag", "srcc", "st", "cost")

    def __init__(self, text, cls, rd=(), wr=(), deps=(), early=-1, dead=10 ** 9, needs=(), pre=None, tag=None,
                 srcc=()):
        self.text, self.cls = text, cls
        self.rd, self.wr = list(rd), list(wr)
        self.deps = list(deps)
        self.early, self.dead = early, dead
        self.needs = list(needs)
        self.idx = None
        self.gap = None
        self.ldsn = None
        self.vmn = None
        self.pre = pre
        self.tag = tag
        self.prio = 0
        self.srcc = list(srcc)
        self.cost = COST.get(cls, 4)


COST = dict(trans=8, valu=4, ldsr=4, ldsw=12, vmem=20, salu=4)


class Emitter:
    def __init__(self):
        self.out = []
        self.nlds = 0
        self.lds_done = 0
        self.lds_gap = []
        self.nvm = 0
        self.vm_done = 0
        self.gap = -1
        self.nst = 0

    def emit(self, op):
        self.nst += states(op)
        op.st = self.nst
        op.idx = len(self.out)
        op.gap = self.gap
        if op.cls in ("ldsr", "ldsw"):
            op.ldsn = self.nlds
            self.nlds += 1
            self.lds_gap.append(self.gap)
        if op.cls == "vmem":
            op.vmn = self.nvm
            self.nvm += 1
        self.out.append(op)
        return op

    def raw(self, text, cls="salu", **kw):
        return self.emit(Op(text, cls, **kw))

    def label(self, name):
        self.out.append(Op(name + ":", "label"))

    def lds_wait(self, needs, lat=None):
        need = max((n.ldsn for n in needs), default=-1) + 1
        if need <= self.lds_done:
            return False
        if lat is not None:
            k = need
            while k < self.nlds and self.lds_gap[k] <= self.gap - lat:
                k += 1
            need = k
        n = min(self.nlds - need, 15)
        self.raw(f"s_waitcnt lgkmcnt({n})", "wait")
        self.lds_done = self.nlds - n
        return True

    def lds_drain(self):
        self.raw("s_waitcnt lgkmcnt(0)", "wait")
        self.lds_done = self.nlds

    def vm_wait(self, ops):
        need = max((o.vmn for o in ops), default=-1) + 1
        if need <= self.vm_done:
            return False
        n = min(self.nvm - need, 63)
        self.raw(f"s_waitcnt vmcnt({n})", "wait")
        self.vm_done = self.nvm - n
        return True


def states(op):
    if op.cls == "label":
        return 0
    m = re.match(r"s_nop (\d+)", op.text)
    return int(m.group(1)) + 1 if m else 1


def fix_hazards(ops):
    out = []
    added = 0
    for op in ops:
        if op.cls == "label":
            out.append(op)
            continue
        need = 0
        dist = 0
        rd, wr = set(op.rd), set(op.wr)
        isv = op.cls in ("valu", "trans")
        for p in reversed(out):
            if dist >= 12:
                break
            pw = set(p.wr)
            req = 0
            if p.cls == "mfma":
                if "smfmac" in p.text and op.cls != "mfma" and pw & (rd | wr):
                    req = 12
                elif op.cls == "mfma":
                    ab = rd - set(op.srcc)
                    if pw & ab:
                        req = 8
                    if pw & set(op.srcc) and set(op.srcc) != pw:
                        req = max(req, 6)
                    if pw & wr and set(op.srcc) != pw:
                        req = max(req, 6)
                else:
                    if pw & (rd | wr):
                        req = 8
                    if isv and set(p.srcc) & wr:
                        req = max(req, 3)
            elif p.cls in ("valu", "trans"):
                if op.cls == "mfma" and pw & rd:
                    req = 2
                if p.cls == "trans" and op.cls != "trans" and pw & rd:
                    req = max(req, 1)
                if "permlane" in op.text and pw & rd:
                    req = max(req, 2)
                if ("readfirstlane" in op.text or "readlane" in op.text) and pw & rd:
                    req = max(req, 1)
                sw = {r for r in pw if r[0] == "s" or r == "vcc"}
                if sw & rd:
                    req = max(req, 5 if op.cls == "vmem" else 2)
            elif p.cls == "salu":
                if "m0" in pw and op.cls == "vmem" and "m0" in rd:
                    req = 1
            elif p.cls == "vmem":
                if "store" in p.text and set(p.rd) & wr and op.cls != "salu":
                    req = 2
            need = max(need, req - dist)
            if not (p.tag and p.tag[0] == "arm" and p.tag != op.tag):
                dist += states(p)
        if need > 0:
            out.append(Op(f"s_nop {need - 1}", "nop"))
            added += 1
        out.append(op)
    return out, added


def isize(op):
    t = op.text
    if op.cls == "label":
        return 0
    mn = t.split()[0]
    if op.cls in ("mfma", "xmfma", "ldsr", "ldsw", "vmem", "smem"):
        return 8
    if mn in ("s_getreg_b32", "s_movk_i32", "s_nop", "s_waitcnt", "s_barrier", "s_branch", "s_endpgm") or mn.startswith("s_cbranch"):
        return 4
    if mn.startswith("v_cmp") and " s[" in t:
        return 8
    if mn.startswith(("v_cvt_pk", "v_max3", "v_accvgpr", "v_pk_", "v_lshl_add", "v_add3", "v_bfe", "v_or3", "v_mbcnt",
                      "v_fma")):
        return 8
    for arg in [x.strip() for x in t[len(mn):].split(",")]:
        if re.fullmatch(r"-?(0x[0-9a-f]+|\d+)", arg) and not -16 <= int(arg, 0) <= 64:
            return 8
        if arg.startswith("L_"):
            return 8
    return 4


def insert_pads(ops):
    i0 = next(i for i, o in enumerate(ops) if o.text == "L_main:")
    i1 = next(i for i, o in enumerate(ops) if o.text == "L_end:")
    out, addr, page, pads = ops[:i0], 0, 1, []
    for i in range(i0, len(ops)):
        o = ops[i]
        if i <= i1 and addr >= 4096 * page:
            good = out[-1].cls == "mfma" and o.cls not in ("salu", "wait", "barrier", "nop")
            if good or addr + isize(o) > 4096 * page + 56:
                lab = Op(f"L_pad{len(pads)}:", "label")
                br = Op("", "salu")
                pads.append(br)
                out += [lab, br]
                addr += 4
                page += 1
        out.append(o)
        addr += isize(o)
    assert len(pads) >= 4
    for k, br in enumerate(pads):
        br.text = f"s_cbranch_execz L_pad{k + 4}" if k + 4 < len(pads) else "s_cbranch_execz L_main"
    return out


class Pool:
    def __init__(self, prefix, bases):
        self.prefix = prefix
        self.rel = {b: -1 for b in bases}

    def add(self, base, release):
        self.rel[base] = release

    def take(self, release):
        b = min(self.rel, key=lambda k: (self.rel[k], k))
        prev = self.rel[b]
        self.rel[b] = release
        return b, prev


def build(a):
    groups = [int(x) for x in a.groups.split(",")]
    assert sum(groups) == 32 and all(g % 2 == 0 for g in groups)
    G = len(groups)
    gstart = [sum(groups[:g]) for g in range(G + 1)]
    ones_x = [int(c) for c in a.ones if c.isdigit()]
    oacc_x = [int(c) for c in a.oacc if c.isdigit()]
    addx = [x for x in range(4) if x not in ones_x]
    ld, st = a.ld, a.st
    PK = 2 * a.prek
    flag = a.sync == "flag"
    GV = 1040 if a.pa else GRAN
    assert not a.pa or (a.half and not flag and len(ones_x) == 4)
    E = Emitter()
    e = E.raw

    vK, vV = 1, [2, 3, 4, 5]
    vDK, vDV = (6, 7), (11, 0)
    vOW, vOR, vOG = 8, 9, 10
    vRL = [12, 13, 14, 15]
    vFW, vFR, vFE, vFT = 12, 13, 14, 15
    vIX = 15
    NM = [16 + 4 * x for x in range(4)]
    vnext, anext, vtop = 32, 0, 256
    Lreg = {}
    for x in ones_x:
        Lreg[x] = anext
        anext += 4
    if addx:
        for i, x in enumerate(addx):
            Lreg[x] = vnext + i
        vnext += 4
    Sreg = [vnext + 4 * i for i in range(a.ns)]
    vnext += 4 * a.ns
    Oreg = {}
    for x in range(4):
        if x in oacc_x:
            Oreg[x] = ("a", anext)
            anext += 32
        else:
            vtop -= 32
            Oreg[x] = ("v", vtop)
    Pbases = list(range(vnext, vtop, 4))
    Qreg = [[anext + 16 * x + 4 * s for s in range(4)] for x in range(4)]
    anext += 64
    aONE = anext
    anext += 4
    Fbases = list(range(anext, 256, 4))
    QT = Pbases[-8]
    UT = QT + 16
    vLN, vQA, vT1, vT2 = QT + 24, QT + 25, QT + 26, QT + 27
    vDQ = (QT + 28, QT + 29)
    assert len(Pbases) >= 8 + 4 * a.prek
    kvS = [(256, 512, 1024, 2048, 8192), (256, 512, 1024, 32768, 2048), (256, 512, 16384, 32768, 1024),
           (4096, 8192, 16384, 32768, 256), (256, 8192, 16384, 32768, 512)][a.kvs]
    qS = [(256, 512, 1024, 2048, 4096), (256, 512, 4096, 8192, 1024), (256, 512, 1024, 8192, 2048)][a.qs]
    lg = lambda n: n.bit_length() - 1

    sQ, sK, sV, sO = 12, 16, 20, 24
    sW, sWG, sMODE, sC, sTHR, sQW, sTMP, sT2 = 3, 28, 29, 30, 31, 34, 35, 32
    sWS = 36
    sWV = 38
    sOFF = 64
    sX = 40
    sBAD = 88

    NK = 16
    q0 = a.q0
    vwin = [NK, NK + 16]

    qk_units = [(j, x) for x in range(4) for j in range(PK)] + [(j, x) for j in range(PK, 32) for x in range(4)]
    uidx = {u: i for i, u in enumerate(qk_units)}
    assert gstart[a.prev + 1] >= PK >= gstart[a.prev]
    final_parts = [([int(c) for c in part if c.isdigit()],
                    range(4) if "a" in part else range(4, 8) if "b" in part else range(8)) for part in a.final.split(",")]
    pvq = []
    for g in range(G):
        if g < a.prev:
            for x in range(4):
                u = ([("sum", g, None, x)] if x in ones_x else []) + [("pv", g, b, x) for b in range(8)]
                pvq += [(PK * (x + 1) - 0.5, w) for w in u]
            continue
        if g < G - 1:
            u = [("sum", g, None, x) for x in ones_x] + [("pv", g, b, x) for b in range(8) for x in range(4)]
        else:
            u = []
            for xs, bs in final_parts:
                u += [("sum", g, None, x) for x in xs if x in ones_x and ("sum", g, None, x) not in u]
                u += [("pv", g, b, x) for b in bs for x in xs]
            for w in [w for w in u[1:] if w[0] == "sum"]:
                i = u.index(w)
                u.insert(max(1, i - a.sumearly), u.pop(i))
        lo = 4 * gstart[g + 1] + a.lag
        hi = 4 * gstart[min(g + 2, G)] + a.lag
        if a.pvend and g < G - 1:
            u0, span = 4 * gstart[a.prev + 1] + a.lag, gstart[G - 1] - gstart[a.prev]
            at = lambda t: u0 + (a.pvend - u0) * ((t - gstart[a.prev]) / span) ** (a.pvgam / 100)
            lo = max(lo, at(gstart[g]))
            hi = max(hi, at(gstart[g + 1])) if g < G - 2 else a.pvend
        pvq += [(lo + (hi - lo) * i / len(u) if g < G - 1 else 10 ** 6, w) for i, w in enumerate(u)]
    pvq.sort(key=lambda p: p[0])
    seq, pi = [], 0
    for ui, (j, x) in enumerate(qk_units):
        while pi < len(pvq) and pvq[pi][0] < ui and (ui <= 4 * PK or ui % a.qrun == 0):
            seq.append(pvq[pi][1])
            pi += 1
        seq.append(("qk", j, x))
    seq += [u for _, u in pvq[pi:]]

    M = []
    flip = False
    for n, u in enumerate(seq):
        same = n > 0 and seq[n - 1][0] == u[0] and (u[0] == "qk" or seq[n - 1][1] == u[1])
        flip = a.snake and same and not flip
        ks = list(range(4 if u[0] == "qk" else groups[u[1]] // 2))
        if u[0] == "sum" and a.sparse:
            ks = [k for k in ks if (gstart[u[1]] // 2 + k) % 2]
        for i, k in enumerate(ks[::-1] if flip else ks):
            M.append(("qk", u[1], u[2], k, i == 0) if u[0] == "qk" else (u[0], u[1], u[2], u[3], k))
    NMF = len(M)
    first_use, last_use = {}, {}

    def use(key, i):
        first_use.setdefault(key, i)
        last_use[key] = i

    for i, m in enumerate(M):
        if m[0] == "qk":
            _, j, x, s, _ = m
            use(("K", j, s), i)
            use(("S", j, x), i)
            use(("Q", x, s), i)
        else:
            kind, g, b, x, k = m
            kap = gstart[g] // 2 + k
            use(("P", kap, x), i)
            if kind == "pv":
                use(("V", kap, b), i)
                use(("O", x, b), i)
            else:
                use(("L", x), i)
                if a.sparse:
                    use(("P", kap - 1, x), i)
    qgap = {first_use["S", 0, x] - 1: x for x in range(4)}
    G0 = first_use["S", 0, 3] - 1

    pw = 2 if a.sparse else 1
    ppool = Pool("v", Pbases[len(Pbases) % pw::pw])
    for b in ppool.rel:
        if b >= QT:
            ppool.add(b, G0 + 1)
    Preg, Pfree = {}, {}
    for kap, x in sorted([(k, x) for k in range(0, 16, pw) for x in range(4)], key=lambda p: uidx[2 * p[0], p[1]]):
        b, rel = ppool.take(max(last_use["P", kap + i, x] for i in range(pw)))
        for i in range(pw):
            Preg[kap + i, x], Pfree[kap + i, x] = b + 4 * i, rel
    fpool = Pool("a", Fbases)
    for x in range(4):
        for s in range(4):
            fpool.add(Qreg[x][s], last_use["Q", x, s])
    frags = sorted([k for k in first_use if k[0] in "KV"], key=lambda k: first_use[k])
    Freg, Ffree = {}, {}
    for k in frags:
        Freg[k], Ffree[k] = fpool.take(last_use[k])
        assert Ffree[k] < first_use[k] - a.lat or Ffree[k] < 0, ("frag pool too small", k)

    mf = []
    started = set()
    for i, m in enumerate(M):
        if m[0] == "qk":
            _, j, x, s, head = m
            S = Sreg[uidx[j, x] % a.ns]
            A, B = Freg["K", j, s], Qreg[x][s]
            if head:
                C, cr = ("0", []) if j < a.nc0 else (rr("v", NM[x], 4), regs("v", NM[x], 4))
            else:
                C, cr = rr("v", S, 4), regs("v", S, 4)
            mf.append(Op(f"v_mfma_f32_16x16x32_bf16 {rr('v', S, 4)}, {rr('a', A, 4)}, {rr('a', B, 4)}, {C}", "mfma",
                         rd=regs("a", A, 4) + regs("a", B, 4) + cr, wr=regs("v", S, 4), srcc=cr))
        else:
            kind, g, b, x, k = m
            kap = gstart[g] // 2 + k
            if kind == "pv":
                p, o = Oreg[x][0], Oreg[x][1] + 4 * b
                A = Freg["V", kap, b]
                key = ("O", x, b)
            else:
                p, o, A, key = "a", Lreg[x], aONE, ("L", x)
            B = Preg[kap, x]
            if kind == "sum" and a.sparse:
                mf.append(Op(f"v_smfmac_f32_16x16x64_bf16 {rr(p, o, 4)}, {rr('a', A, 4)}, {rr('v', B - 4, 8)}, v{vIX}",
                             "mfma", rd=regs("a", A, 4) + regs("v", B - 4, 8) + [f"v{vIX}"] + regs(p, o, 4),
                             wr=regs(p, o, 4), srcc=regs(p, o, 4)))
                continue
            C, cr = (rr(p, o, 4), regs(p, o, 4)) if key in started else ("0", [])
            started.add(key)
            ab = [rr('a', A, 4), rr('v', B, 4)]
            if (a.dbgswap or a.pa) and kind == "pv":
                ab.reverse()
            mf.append(Op(f"v_mfma_f32_16x16x32_bf16 {rr(p, o, 4)}, {ab[0]}, {ab[1]}, {C}", "mfma",
                         rd=regs("a", A, 4) + regs("v", B, 4) + cr, wr=regs(p, o, 4), srcc=cr))

    tile_first = {}
    for d in range(16):
        tile_first["K", d] = min(first_use["K", 2 * d, s] for s in range(4))
        tile_first["V", d] = min(first_use["V", d, b] for b in range(8))
    dma_order = sorted(tile_first, key=lambda t: (tile_first[t], t[1]))
    pre_tiles = [t for t in dma_order if tile_first[t] <= G0]
    merge = [int(x) for x in a.merge.split(",")]
    wins = [int(x) for x in a.win.split(",")]
    nbar = a.nbar if flag else 99
    epochs, pub = [], {t: -1 for t in pre_tiles}
    for t in dma_order[len(pre_tiles):]:
        k = len(epochs)
        gc = max(tile_first[t] - wins[min(k, len(wins) - 1)], G0 + 1)
        if epochs and gc < epochs[-1]["gc"] + merge[min(k - 1, len(merge) - 1)]:
            epochs[-1]["tiles"].append(t)
        else:
            isbar = k < nbar
            epochs.append(dict(gc=gc, gr=gc - (0 if isbar else a.lat + 1), gs=gc - (0 if isbar else a.lat + 1 + a.skew),
                               tiles=[t], bar=isbar, n=k + 1))
            assert epochs[-1]["gs"] > G0 and (k == 0 or epochs[-1]["gr"] > epochs[-2]["gc"])
            assert k == 0 or epochs[-1]["gs"] > epochs[-2]["gs"]
        pub[t] = epochs[-1]["gc"]
    free_slots = {"K": [s for s in range(0, NK, 2) if not q0 <= s < q0 + 16],
                  "V": [s for s in range(NK, NSLOT, 2) if not q0 <= s < q0 + 16]}
    slot_of, dma_op = {}, {}
    tile_reads = {t: [] for t in tile_first}
    released = set()

    def slot_for(t):
        c = [s for s in free_slots[t[0]] if not (t[0] == "K" and t[1] >= 12 and s < 8)]
        if t[0] == "K" and 8 <= t[1] < 12:
            c.sort(key=lambda s: s >= 8)
        return c[0] if c else None

    def dma_pair(srd, vo, soff):
        gs = GV if srd == sV else GRAN
        ld = (a.ld.split("/") * 3)[[sQ, sK, sV].index(srd)]
        return [Op(f"buffer_load_dwordx4 v{vo[i]}, s[{srd}:{srd + 3}], s{soff} offen{' offset:%d' % gs if i else ''} {ld} lds"
                   .replace("  ", " "), "vmem", rd=["m0", f"v{vo[i]}"]) for i in range(2)]

    def make_dma(t):
        sl = slot_for(t)
        free_slots[t[0]].remove(sl)
        slot_of[t] = sl
        srd, vo = (sK, vDK) if t[0] == "K" else (sV, vDV)
        pre = Op(f"s_add_u32 m0, s{sWV if t[0] == 'V' and a.pa else sWG}, {sl * TILE}", "salu", wr=["m0"])
        ops = dma_pair(srd, vo, sOFF + t[1])
        dma_op[t] = ops[1]
        return pre, ops

    nstamp = [0]
    stampreg = list(range(56, 64, 2)) + list(range(80, 88, 2)) + [4, 6, 8, 10, 0, 96, 98, 32, 100]

    def stamp(kind="m"):
        if a.stamps and (kind in a.stampat or kind == "x") and (nstamp[0] < 14 or kind == "x"):
            for k, ins in enumerate(("s_memrealtime", "s_memtime")):
                if a.stamps >> k & 1:
                    r = stampreg[nstamp[0]]
                    nstamp[0] += 1
                    e(f"{ins} s[{r}:{r + 1}]", "smem")

    def v(text, wr, rd=(), cls="valu"):
        return e(text, cls, rd=list(rd), wr=list(wr))

    def va(text):
        return v(text, [text.split()[1].rstrip(",")])

    BIAS = GRAN - 1024
    e("s_cmp_ge_u32 s2, 256")
    e("s_cbranch_scc1 L_end")
    if a.spin:
        e("s_memrealtime s[60:61]", "smem")
    if a.report >= 0:
        e("s_memrealtime s[86:87]", "smem")
        e("s_load_dwordx2 s[100:101], s[0:1], 32", "smem")
    e("s_load_dwordx8 s[4:11], s[0:1], 0", "smem")
    if a.stamps:
        e(f"s_load_dwordx2 s[{sWS}:{sWS + 1}], s[0:1], 40", "smem")
    if a.pfcode:
        e("s_getpc_b64 s[96:97]")
        E.label("L_pc")
        e("s_add_u32 s96, s96, L_main-L_pc")
        e("s_addc_u32 s97, s97, 0")
        e("s_mov_b32 s98, L_codeend-L_main")
        e("s_mov_b32 s99, 0x20000")
        e("s_lshr_b32 s95, s2, 3")
        e("s_lshl_b32 s95, s95, 10")
        va("v_lshlrev_b32 v16, 2, v0")
        e(f"buffer_load_dword v{UT}, v16, s[96:99], s95 offen", "vmem", rd=["v16"], wr=[f"v{UT}"])
    if a.remap:
        e(f"s_and_b32 s{sTMP}, s2, 7")
        e(f"s_lshl_b32 s{sTMP}, s{sTMP}, 5")
        e("s_lshr_b32 s2, s2, 3")
        e(f"s_or_b32 s2, s2, s{sTMP}")
    e(f"s_mov_b32 s{sMODE}, 0")
    E.label("L_start")
    va("v_lshrrev_b32 v12, 6, v0")
    va(f"v_and_b32 v{vLN}, 63, v0")
    v(f"v_readfirstlane_b32 s{sW}, v12", [f"s{sW}"], ["v12"])
    va(f"v_lshrrev_b32 v13, 4, v{vLN}")
    va("v_and_b32 v14, 2, v13")
    va(f"v_xor_b32 v14, v14, v{vLN}")
    va(f"v_lshl_add_u32 v{vDQ[0]}, v14, 4, {BIAS}")
    va(f"v_add_u32 v{vDQ[1]}, {(qS[2] - GRAN) & 0xffffffff}, v{vDQ[0]}")
    va(f"v_lshlrev_b32 v12, {lg(kvS[3])}, v12")
    if kvS[:2] != (256, 512):
        va("v_and_b32 v15, 1, v13")
        va(f"v_mul_u32_u24 v15, {kvS[0] - 256}, v15")
        va("v_add_u32 v12, v12, v15")
        va("v_lshrrev_b32 v15, 1, v13")
        va(f"v_mul_u32_u24 v15, {kvS[1] - 512}, v15")
        va("v_add_u32 v12, v12, v15")
    va(f"v_add_u32 v{vDK[0]}, v12, v{vDQ[0]}")
    va(f"v_add_u32 v{vDK[1]}, {(kvS[2] - GRAN) & 0xffffffff}, v{vDK[0]}")
    va("v_and_b32 v14, 1, v13")
    va(f"v_lshlrev_b32 v14, {3 if a.pa else 1}, v14")
    va(f"v_xor_b32 v14, v14, v{vLN}")
    va(f"v_lshl_add_u32 v14, v14, 4, {BIAS}")
    va(f"v_add_u32 v{vDV[0]}, v12, v14")
    va(f"v_add_u32 v{vDV[1]}, {(kvS[2] - GV) & 0xffffffff}, v{vDV[0]}")
    e(f"s_mul_i32 s{sWG}, s{sW}, {2 * GRAN}", rd=[f"s{sW}"])
    if a.pa:
        e(f"s_mul_i32 s{sWV}, s{sW}, {2 * GV}")
    e(f"s_mul_i32 s{sQW}, s{sW}, {4 * TILE}")
    e(f"s_add_u32 s{sQW}, s{sQW}, {q0 * TILE}")
    e(f"s_lshl_b32 s{sTMP}, s2, 2")
    e(f"s_add_u32 s{sTMP}, s{sTMP}, s{sW}")
    if a.qrot:
        e(f"s_lshr_b32 s{sX}, s{sTMP}, {a.qrot - 1}")
        e(f"s_and_b32 s{sX}, s{sX}, 3")
        e(f"s_lshl_b32 s{sX}, s{sX}, {lg(qS[4])}")
    else:
        e(f"s_mov_b32 s{sX}, 0")
    e(f"s_lshl_b32 s{sTMP}, s{sTMP}, 14")
    e(f"s_lshl_b32 s{sC}, s2, 17")
    e(f"s_sub_u32 s{sC}, s{sC}, {BIAS}")
    e(f"s_subb_u32 s{sTHR}, 0, 0")
    e(f"s_sub_u32 s{sT2}, s{sTMP}, {BIAS}")
    e(f"s_subb_u32 s{sT2 + 1}, 0, 0")
    for d, size in ((sK, 131072 + BIAS), (sV, 131072 + BIAS), (sQ, 16384 + BIAS), (sO, 16384)):
        e(f"s_mov_b32 s{d + 2}, {size}")
        e(f"s_mov_b32 s{d + 3}, 0x20000")

    def set_off(j):
        if a.rot and j:
            e(f"s_xor_b32 s{sOFF + j}, s{sOFF}, {j * kvS[4]}")
        elif a.rot:
            e(f"s_lshr_b32 s{sOFF}, s2, {a.rot - 1}")
            e(f"s_and_b32 s{sOFF}, s{sOFF}, {a.rotmask}")
            if a.rotrev:
                e(f"s_brev_b32 s{sOFF}, s{sOFF}")
                e(f"s_lshr_b32 s{sOFF}, s{sOFF}, {32 - a.rotrev}")
            e(f"s_lshl_b32 s{sOFF}, s{sOFF}, {lg(kvS[4])}")
        else:
            e(f"s_mov_b32 s{sOFF + j}, {j * kvS[4]}")

    def set_x(x, g):
        if x or g:
            e(f"s_xor_b32 s{sX + 4 * x + g}, s{sX}, {x * qS[4] + (g >> 1) * qS[3] + (g & 1) * qS[2]}")

    for j in range(a.prek):
        set_off(j)
    e("s_waitcnt lgkmcnt(0)", "wait")
    srd_todo = {sK: (6, sC, f"s{sTHR}"), sQ: (4, sT2, f"s{sT2 + 1}"), sV: (8, sC, f"s{sTHR}"), sO: (10, sTMP, "0")}

    def need_srd(d):
        if d in srd_todo:
            p, lo, hi = srd_todo.pop(d)
            e(f"s_add_u32 s{d}, s{p}, s{lo}")
            e(f"s_addc_u32 s{d + 1}, s{p + 1}, {hi}")

    stamp("x")
    npre = len(pre_tiles)
    di = npre + a.ninit
    items = [make_dma(t) for t in dma_order[:di]]
    items[npre:npre] = [(Op(f"s_add_u32 m0, s{sQW}, {x * TILE + 2 * g * GRAN}", "salu", wr=["m0"]),
                         dma_pair(sQ, vDQ, sX + 4 * x + 2 * g)) for x in range(4) for g in range(2)]
    vm0 = E.nvm
    depth = [[int(z) for z in d.split(",")] for d in (a.deven, a.dodd or a.deven)]
    issued, landed, npoint = [0, 0], [0, 0], [0]

    def clone(o):
        return Op(o.text, o.cls, rd=o.rd, wr=o.wr)

    def point(*steps):
        code = [[], []]
        for vv in range(2):
            def issue():
                pre, ops = items[issued[vv]]
                code[vv] += [clone(pre), Op("s_nop 0", "nop")] + [clone(o) for o in ops]
                ops[1].idx, ops[1].gap, ops[1].vmn = len(E.out), E.gap, vm0 + 2 * issued[vv] + 1
                issued[vv] += 1
            for kind, k in steps:
                if kind == "wait" and landed[vv] <= k:
                    while issued[vv] <= k:
                        issue()
                    code[vv].append(Op(f"s_waitcnt vmcnt({2 * (issued[vv] - k - 1)})", "wait"))
                    landed[vv] = k + 1
                while kind == "top" and issued[vv] < len(items) and issued[vv] - landed[vv] < (depth[vv] + [99])[k]:
                    issue()
        n = npoint[0]
        npoint[0] += 1
        same = [o.text for o in code[0]] == [o.text for o in code[1]]
        for vv in range(2):
            for o in code[vv]:
                o.tag = None if same else ("arm", n, vv)
        if same:
            seq = code[0]
        elif not code[0] or not code[1]:
            seq = ([Op(f"s_cbranch_{'vccnz' if code[0] else 'vccz'} L_j{n}", "salu")] + code[0] + code[1] +
                   [Op(f"L_j{n}:", "label")])
        else:
            seq = ([Op(f"s_cbranch_vccnz L_o{n}", "salu")] + code[0] + [Op(f"s_branch L_j{n}", "salu", tag=("arm", n, 0)),
                   Op(f"L_o{n}:", "label")] + code[1] + [Op(f"L_j{n}:", "label")])
        for o in seq:
            E.emit(o) if o.cls != "label" else E.out.append(o)
        E.nvm, E.vm_done = vm0 + 2 * max(issued), vm0 + 2 * min(landed)

    n0 = min(depth[0][0], depth[1][0])
    for k in range(n0):
        pre, ops = items[k]
        E.emit(pre)
        need_srd(int(re.search(r"s\[(\d+):", ops[0].text).group(1)))
        if npre <= k < npre + 8:
            set_x((k - npre) // 2, 2 * ((k - npre) % 2))
        for o in ops:
            E.emit(o)
    issued[:] = [n0, n0]
    for d in (sK, sQ, sV, sO):
        need_srd(d)
    for x in range(4):
        for g in range(0, 4, 2):
            if npre + 2 * x + g // 2 >= n0:
                set_x(x, g)
    if depth[0] != depth[1]:
        e(f"s_getreg_b32 s{sTMP}, hwreg(HW_REG_XCC_ID, 0, 1)")
        e(f"s_cmp_lg_u32 s{sTMP}, 0")
        e("s_cselect_b64 vcc, -1, 0")
    point(("top", 0))
    for j in range(a.prek, 16):
        set_off(j)
    for x in range(4):
        for g in (1, 3):
            if not a.half:
                set_x(x, g)
    e(f"s_mov_b32 s{sC}, {f32bits(math.log2(math.e) / math.sqrt(128.0)):#x}")
    e(f"s_mov_b32 s{sTHR}, {f32bits(2.0 ** 32):#x}")
    va(f"v_and_b32 v12, 3, v{vLN}")
    va(f"v_bfe_u32 v13, v{vLN}, 2, 2")
    va(f"v_lshrrev_b32 v14, 4, v{vLN}")
    va(f"v_mul_u32_u24 v{vK}, {GRAN}, v12")
    va(f"v_lshl_add_u32 v{vK}, v13, 8, v{vK}")
    va("v_and_b32 v15, 2, v13")
    va("v_xor_b32 v15, v15, v14")
    va(f"v_lshl_add_u32 v{vK}, v15, 4, v{vK}")
    va(f"v_add_u32 v{vQA}, s{sQW}, v{vK}")
    va(f"v_mul_u32_u24 v{vV[0]}, {GV}, v13")
    va(f"v_lshl_add_u32 v{vV[0]}, v14, 8, v{vV[0]}")
    if a.pa:
        va("v_and_b32 v15, 1, v12")
        va(f"v_lshl_add_u32 v{vV[0]}, v15, 3, v{vV[0]}")
        va("v_lshrrev_b32 v15, 1, v12")
        va(f"v_lshl_add_u32 v{vV[0]}, v15, 6, v{vV[0]}")
    else:
        va(f"v_lshl_add_u32 v{vV[0]}, v12, 3, v{vV[0]}")
    va("v_and_b32 v15, 1, v14")
    va(f"v_lshl_add_u32 v{vV[0]}, v15, {7 if a.pa else 5}, v{vV[0]}")
    if a.hswap:
        e(f"s_lshl_b32 s{sT2}, s2, 2")
        e(f"s_add_u32 s{sT2}, s{sT2}, s{sW}")
        e(f"s_bfe_u32 s{sT2}, s{sT2}, {(a.hswap - 1) | 1 << 16:#x}")
        e(f"s_lshl_b32 s{sT2}, s{sT2}, 7")
        va(f"v_xor_b32 v{vV[0]}, s{sT2}, v{vV[0]}")
    va(f"v_xor_b32 v{vV[1]}, {128 if a.pa else 32}, v{vV[0]}")
    va(f"v_add_u32 v{vV[2]}, {vwin[1] * TILE}, v{vV[0]}")
    va(f"v_add_u32 v{vV[3]}, {vwin[1] * TILE}, v{vV[1]}")
    va(f"v_add_u32 v{vV[0]}, {vwin[0] * TILE}, v{vV[0]}")
    va(f"v_add_u32 v{vV[1]}, {vwin[0] * TILE}, v{vV[1]}")
    e(f"s_mul_i32 s{sTMP}, s{sW}, {2 * TILE}")
    vLW, vLR, vOR1 = 12, 13, 14
    if a.pa:
        va(f"v_lshlrev_b32 v{vOR}, 8, v14")
        va(f"v_lshl_add_u32 v{vOR}, v12, 6, v{vOR}")
        va(f"v_lshl_add_u32 v{vOR}, v13, 3, v{vOR}")
        va(f"v_lshl_add_u32 v{vOR}, v15, 5, v{vOR}")
        va(f"v_add_u32 v{vOR}, s{sTMP}, v{vOR}")
        va(f"v_lshrrev_b32 v12, 5, v{vLN}")
        va("v_lshlrev_b32 v13, 2, v12")
        va(f"v_xor_b32 v13, v13, v{vLN}")
        va(f"v_lshl_add_u32 v{vOW}, v13, 3, s{sTMP}")
        va(f"v_and_b32 v13, 7, v{vLN}")
        va("v_lshlrev_b32 v13, 4, v13")
        va(f"v_lshl_add_u32 v{vOG}, v12, {lg(qS[2])}, v13")
        va(f"v_bfe_u32 v13, v{vLN}, 3, 2")
        va(f"v_lshl_add_u32 v{vOG}, v13, 8, v{vOG}")
        e(f"s_lshl_b32 s{sTMP}, s{sW}, 8")
        e(f"s_add_u32 s{sTMP}, s{sTMP}, {SYNC_OFF}")
        va(f"v_lshl_add_u32 v{vLW}, v{vLN}, 2, s{sTMP}")
        va(f"v_lshl_add_u32 v{vLR}, v14, 4, s{sTMP}")
        va(f"v_xor_b32 v{vOR1}, 32, v{vOR}")
    else:
        va(f"v_and_b32 v15, 15, v{vLN}")
        va(f"v_mul_u32_u24 v{vOW}, 272, v15")
        va(f"v_lshl_add_u32 v{vOW}, v14, 3, v{vOW}")
        va(f"v_add_u32 v{vOW}, s{sTMP}, v{vOW}")
    if a.pa:
        pass
    elif a.half:
        va(f"v_bfe_u32 v13, v{vLN}, 3, 2")
        va("v_lshrrev_b32 v15, 1, v13")
        va("v_xor_b32 v15, v15, v13")
        va("v_and_b32 v15, 1, v15")
        va("v_lshlrev_b32 v15, 2, v15")
        va(f"v_xor_b32 v15, v15, v{vLN}")
        va("v_and_b32 v15, 7, v15")
        va("v_lshlrev_b32 v15, 4, v15")
        va(f"v_lshl_add_u32 v{vOG}, v13, 8, v15")
        va(f"v_mul_u32_u24 v{vOR}, {GRAN}, v13")
        va(f"v_add3_u32 v{vOR}, v{vOR}, v15, s{sTMP}")
        va(f"v_lshrrev_b32 v13, 5, v{vLN}")
        va(f"v_lshl_add_u32 v{vOG}, v13, {lg(qS[2])}, v{vOG}")
        va("v_mul_u32_u24 v13, 272, v13")
        va(f"v_add_u32 v{vOR}, v{vOR}, v13")
    else:
        va("v_lshlrev_b32 v13, 2, v14")
        va("v_sub_u32 v15, v15, v13")
        va("v_and_b32 v15, 15, v15")
        va("v_lshlrev_b32 v15, 4, v15")
        va(f"v_lshl_add_u32 v{vOG}, v14, 8, v15")
        va(f"v_mul_u32_u24 v{vOR}, {GRAN}, v14")
        va(f"v_add3_u32 v{vOR}, v{vOR}, v15, s{sTMP}")
    va("v_mov_b32 v15, 0x3f803f80")
    for i in range(4):
        v(f"v_accvgpr_write_b32 a{aONE + i}, v15", [f"a{aONE + i}"], ["v15"])
    if a.sparse:
        assert a.pa and not a.hswap
        va(f"v_and_b32 v{vIX}, 1, v{vLN}")
        va(f"v_sub_u32 v{vIX}, 0, v{vIX}")
        va(f"v_and_b32 v{vIX}, 0xaaaaaaaa, v{vIX}")
        va(f"v_or_b32 v{vIX}, 0x44444444, v{vIX}")
        for x in range(4):
            for i in range(4):
                v(f"v_accvgpr_write_b32 a{Lreg[x] + i}, 0", [f"a{Lreg[x] + i}"])
    if a.hswap:
        va(f"v_add_u32 v{vOG}, s{sT2}, v{vOG}")
        va(f"v_xor_b32 v15, 128, v{vOG}")
    for x in range(4):
        va(f"v_mov_b32 v{NM[x]}, 0xff800000")
    for x in addx:
        va(f"v_mov_b32 v{Lreg[x]}, 0")
    if flag:
        e(f"s_lshl_b32 s{sTMP}, s{sW}, 8")
        e(f"s_add_u32 s{sTMP}, s{sTMP}, {SYNC_OFF}")
        va(f"v_lshlrev_b32 v{vFE}, 2, v{vLN}")
        va(f"v_lshl_add_u32 v{vFR}, v12, 8, v{vFE}")
        va(f"v_add_u32 v{vFR}, {SYNC_OFF}, v{vFR}")
        va(f"v_add_u32 v{vFW}, s{sTMP}, v{vFE}")
        va(f"v_mov_b32 v{vFE}, 0")
        e(f"ds_write_b32 v{vFW}, v{vFE}", "ldsw", rd=[f"v{vFW}", f"v{vFE}"])
        E.lds_drain()
    if a.pads:
        e("s_mov_b64 exec, 0")
        for w in range(3):
            e(f"s_cmp_eq_u32 s{sW}, {w}")
            e(f"s_cbranch_scc1 L_pad{w}")
        e("s_branch L_pad3")
        E.out.append(Op(".p2align 12", "label"))
    E.label("L_main")
    if a.pads:
        e("s_mov_b64 exec, -1")

    def finalize_read(op):
        if op.text is not None:
            return
        if op.tag[0] == "K":
            _, j, s = op.tag
            off = (slot_of["K", j // 2] + j % 2) * TILE + 64 * s
            assert off < 65536
            op.text = f"ds_read_b128 {rr('a', Freg['K', j, s], 4)}, v{vK} offset:{off}"
        else:
            _, kap, b, tau = op.tag
            sl = slot_of["V", kap]
            w = 0 if sl < vwin[1] else 1
            off = (sl - vwin[w]) * TILE + tau * 4 * GV + (16 * (b & 3) if a.pa else 64 * (b >> 1))
            assert off < 65536
            av = vV[2 * w + (b >> 2 if a.pa else b & 1)]
            op.rd = [f"v{av}"]
            op.text = f"ds_read_b64_tr_b16 {rr('a', Freg['V', kap, b] + 2 * tau, 2)}, v{av} offset:{off}"

    kr = {(j, s): Op(None, "ldsr", rd=[f"v{vK}"], wr=regs("a", Freg["K", j, s], 4), tag=("K", j, s))
          for j in range(32) for s in range(4)}
    vr = {(kap, b, t): Op(None, "ldsr", wr=regs("a", Freg["V", kap, b] + 2 * t, 2), tag=("V", kap, b, t))
          for kap in range(16) for b in range(8) for t in range(2)}
    for (j, s), op in kr.items():
        tile_reads["K", j // 2].append(op)
    for (kap, b, t), op in vr.items():
        tile_reads["V", kap].append(op)

    point(*[st_ for k in range(npre) for st_ in (("wait", k), ("top", 1))])
    e("s_barrier", "barrier")
    for t in pre_tiles:
        for op in tile_reads[t]:
            finalize_read(op)
            E.emit(op)
    e(f"s_cmp_lg_u32 s{sMODE}, 0")
    e("s_cbranch_scc1 L_maxpass")
    E.label("L_maxdone")

    def q_scale(x, s):
        for i in range(4):
            src, t = QT + 4 * s + i, UT + 2 * i
            v(f"v_lshlrev_b32 v{t}, 16, v{src}", [f"v{t}"], [f"v{src}"])
            v(f"v_and_b32 v{t + 1}, 0xffff0000, v{src}", [f"v{t + 1}"], [f"v{src}"])
        for i in range(4):
            t = UT + 2 * i
            v(f"v_pk_mul_f32 {rr('v', t, 2)}, {rr('v', t, 2)}, s[{sC}:{sC + 1}] op_sel_hi:[1,0]", regs("v", t, 2),
              regs("v", t, 2))
        for i in range(4):
            v(f"v_cvt_pk_bf16_f32 v{UT + 2 * i}, v{UT + 2 * i}, v{UT + 2 * i + 1}", [f"v{UT + 2 * i}"],
              [f"v{UT + 2 * i}", f"v{UT + 2 * i + 1}"])
        for i in range(4):
            v(f"v_accvgpr_write_b32 a{Qreg[x][s] + i}, v{UT + 2 * i}", [f"a{Qreg[x][s] + i}"], [f"v{UT + 2 * i}"])

    def q_prepare(x):
        k = npre + 2 * x
        point(*([("wait", k), ("top", 1)] if x == 0 or a.halftop else []), ("wait", k + 1))
        stamp("q")
        rds = [e(f"ds_read_b128 {rr('v', QT + 4 * s, 4)}, v{vQA} offset:{x * TILE + 64 * s}", "ldsr",
                 rd=[f"v{vQA}"], wr=regs("v", QT + 4 * s, 4)) for s in range(4)]
        point(("top", 1))
        for s in range(4):
            E.lds_wait([rds[s]])
            q_scale(x, s)
        point(("top", 2 if x < 3 else 3))

    def first_max_ops(x):
        n = NM[x]
        ops = []

        def add(text, wr, rd, dist=0, deps=()):
            ops.append(Op(text, "valu", rd=rd, wr=wr, deps=([(ops[-1], dist)] if ops else []) + list(deps)))

        for j in range(a.nmax):
            S = Sreg[uidx[j, x] % a.ns]
            for r in (S, S + 2):
                add(f"v_max3_f32 v{n}, v{r}, v{r + 1}, v{n}", [f"v{n}"], [f"v{r}", f"v{r + 1}", f"v{n}"],
                    deps=[(mf[last_use["S", j, x]], 8)])
        for sw in ("v_permlane32_swap_b32", "v_permlane16_swap_b32"):
            add(f"v_mov_b32 v{n + 1}, v{n}", [f"v{n + 1}"], [f"v{n}"])
            add(f"{sw} v{n + 1}, v{n}", [f"v{n}", f"v{n + 1}"], [f"v{n}", f"v{n + 1}"], 2)
            add(f"v_max_f32 v{n}, v{n}, v{n + 1}", [f"v{n}"], [f"v{n}", f"v{n + 1}"])
        for i in (1, 2, 3, 0):
            add(f"v_mul_f32 v{n + i}, -1.0, v{n}", [f"v{n + i}"], [f"v{n}"])
        return ops

    F = []
    ladds = {x: [] for x in range(4)}
    nmdone = {}
    for u, (j, x) in enumerate(qk_units):
        S = Sreg[u % a.ns]
        prod = mf[last_use["S", j, x]]
        sdead = first_use[("S",) + qk_units[u + a.ns]] - 1 if u + a.ns < 128 else 10 ** 9
        kap = j // 2
        pdead = max(min(sdead, first_use["P", kap, x] - 2), last_use["S", j, x])
        assert pdead < first_use["P", kap, x]
        if j == 0:
            mops = first_max_ops(x)
            for k, o in enumerate(mops):
                o.dead = max(min(pdead, first_use["S", a.nc0, x] - 2), last_use["S", a.nmax - 1, x])
                assert o.dead < first_use["S", a.nc0, x]
                o.prio = (-1, u, k)
            nmdone[x] = mops[-4]
            F += mops
        ex = []
        for i in range(4):
            op = Op(f"v_exp_f32 v{S + i}, v{S + i}", "trans", rd=[f"v{S + i}"], wr=[f"v{S + i}"],
                    deps=[(prod, 8)], dead=pdead)
            op.prio = (pdead - 4 + i, u, 3 * i)
            if j < a.nc0:
                n = NM[x] + 1
                sub = Op(f"v_add_f32 v{S + i}, v{S + i}, v{n}", "valu", rd=[f"v{S + i}", f"v{n}"], wr=[f"v{S + i}"],
                         deps=[(nmdone[x], 0), (prod, 8)], dead=pdead)
                sub.prio = (pdead - 5 + i, u, 3 * i)
                F.append(sub)
                op.deps.append((sub, 0))
            ex.append(op)
            F.append(op)
            if x in addx:
                ad = Op(f"v_add_f32 v{Lreg[x]}, v{Lreg[x]}, v{S + i}", "valu", rd=[f"v{S + i}", f"v{Lreg[x]}"],
                        wr=[f"v{Lreg[x]}"], deps=[(op, 1)], dead=min(sdead, pdead + 8))
                ad.prio = (pdead - 4 + i, u, 3 * i + 2)
                F.append(ad)
                ladds[x].append(ad)
            if i % 2:
                P = Preg[kap, x] + 2 * (j % 2) + i // 2
                cv = Op(f"v_cvt_pk_bf16_f32 v{P}, v{S + i - 1}, v{S + i}", "valu",
                        rd=[f"v{S + i - 1}", f"v{S + i}"], wr=[f"v{P}"], deps=[(ex[i - 1], 1), (op, 1)],
                        early=Pfree[kap, x], dead=pdead)
                assert Pfree[kap, x] <= pdead, ("P pool too small", kap, x)
                cv.prio = (pdead - 4 + i, u, 3 * i + 1)
                F.append(cv)
    lastsm = F[-12 * a.ns:]
    for key, op in [(("K",) + k, o) for k, o in kr.items()] + [(("V",) + k[:2], o) for k, o in vr.items()]:
        fu = first_use[key]
        mf[fu].needs.append(op)
        if op.idx is None:
            op.early = max(Ffree[key], pub[key[0], key[1] // 2 if key[0] == "K" else key[1]],
                           fu - (a.fhoist if a.fhoist and key[0] == "V" and key[1] >= gstart[G - 1] // 2 else a.hoist))
            op.dead = max(fu - a.lat, op.early)
            assert op.dead < fu
            op.prio = (op.dead - a.rdbias, -1, fu)
            F.append(op)

    tq = Sreg + NM
    tfree = {b: None for b in tq}
    tdead = max(last_use["S", 31, x] for x in range(4))
    lastsync = epochs[-1]["gc"] + 1
    epi_order = list(dict.fromkeys(int(c) for c in a.final if c.isdigit()))
    seqn = [0]
    mfpos = {o: i for i, o in enumerate(mf)}
    stage_w, stage_r, mulpair = [], {}, {}

    def epi(text, cls, **kw):
        op = Op(text, cls, **kw)
        seqn[0] += 1
        op.prio = (10 ** 8, seqn[0], 0)
        if a.eprio:
            src = [mfpos[d] for d, _ in op.deps if d in mfpos] + [d.prio[0] - a.eprio for d, _ in op.deps if d not in mfpos]
            op.prio = (max(src) + a.eprio, seqn[0], 0)
        F.append(op)
        return op

    rcp, wrs_of = {}, {x: [] for x in range(4)}

    def recip(x):
        rl, L = vRL[x], Lreg[x]
        if x in ones_x:
            prev = epi(f"v_accvgpr_read_b32 v{rl}, a{L}", "valu", rd=[f"a{L}"], wr=[f"v{rl}"],
                       deps=[(mf[last_use["L", x]], 8)], early=lastsync)
            L = rl
        else:
            prev = None
            for sw in ("v_permlane32_swap_b32", "v_permlane16_swap_b32"):
                m1 = epi(f"v_mov_b32 v{rl}, v{L}", "valu", rd=[f"v{L}"], wr=[f"v{rl}"], early=lastsync,
                         deps=[(prev, 0)] if prev else [(o, 0) for o in ladds[x][-16:]])
                m2 = epi(f"{sw} v{rl}, v{L}", "valu", rd=[f"v{L}", f"v{rl}"], wr=[f"v{L}", f"v{rl}"], deps=[(m1, 2)])
                prev = epi(f"v_add_f32 v{L}, v{L}, v{rl}", "valu", rd=[f"v{L}", f"v{rl}"], wr=[f"v{L}"], deps=[(m2, 0)])
        cm = epi(f"v_cmp_nge_f32 s[{sBAD + 2 * x}:{sBAD + 2 * x + 1}], s{sTHR}, v{L}", "valu", rd=[f"v{L}"],
                 wr=[f"s{sBAD + 2 * x}"], deps=[(prev, 0)])
        rcp[x] = epi(f"v_rcp_f32 v{rl}, v{L}", "trans", rd=[f"v{L}"], wr=[f"v{rl}"], deps=[(cm, 0)])

    def epi_rows(x, h):
        n, (p, ob) = NM[x], Oreg[x]
        if x not in rcp:
            r0 = epi(f"v_accvgpr_read_b32 v{n}, a{Lreg[x]}", "valu", rd=[f"a{Lreg[x]}"], wr=[f"v{n}"],
                     deps=[(mf[last_use["L", x]], 12)])
            if a.sparse:
                r1 = epi(f"v_accvgpr_read_b32 v{n + 1}, a{Lreg[x] + 1}", "valu", rd=[f"a{Lreg[x] + 1}"],
                         wr=[f"v{n + 1}"], deps=[(mf[last_use["L", x]], 12)])
                r0 = epi(f"v_add_f32 v{n}, v{n}, v{n + 1}", "valu", rd=[f"v{n}", f"v{n + 1}"], wr=[f"v{n}"],
                         deps=[(r0, 0), (r1, 0)])
            cm = epi(f"v_cmp_nge_f32 s[{sBAD + 2 * x}:{sBAD + 2 * x + 1}], s{sTHR}, v{n}", "valu", rd=[f"v{n}"],
                     wr=[f"s{sBAD + 2 * x}"], deps=[(r0, 0)])
            rc = epi(f"v_rcp_f32 v{n}, v{n}", "trans", rd=[f"v{n}"], wr=[f"v{n}"], deps=[(cm, 0)])
            lw = epi(f"ds_write_b32 v{vLW}, v{n}", "ldsw", rd=[f"v{vLW}", f"v{n}"],
                     deps=[(rc, 1)] + [(o, 0) for o in rcp.values()])
            lw.cost = 8
            rcp[x] = epi(f"ds_read_b128 {rr('v', n, 4)}, v{vLR}", "ldsr", rd=[f"v{vLR}"], wr=regs("v", n, 4),
                         deps=[(lw, 0)])
        xi = epi_order.index(x)
        so, region = (xi % 2) * TILE + 2048 * h, (xi % 2, h)
        X, mu = [], []
        for b in range(4 * h, 4 * h + 4):
            prod, o = mf[last_use["O", x, b]], ob + 4 * b
            if p == "a":
                t, rel = spare.pop(0)
                src = [[(epi(f"v_accvgpr_read_b32 v{t + i}, a{o + i}", "valu", rd=[f"a{o + i}"], wr=[f"v{t + i}"],
                             deps=[(prod, 8)], early=rel), 0)] for i in range(4)]
            else:
                t, src = o, [[(prod, 8)]] * 4
            X.append(t)
            mu.append([epi(f"v_mul_f32 v{t + i}, v{n + i}, v{t + i}", "valu", rd=[f"v{n + i}", f"v{t + i}"],
                           wr=[f"v{t + i}"], deps=src[i] + [(rcp[x], a.stdist)], needs=[rcp[x]]) for i in range(4)])
            for i in (0, 2):
                mulpair[mu[-1][i]] = (mu[-1][i + 1],
                                      f"v_pk_mul_f32 {rr('v', t + i, 2)}, {rr('v', t + i, 2)}, {rr('v', n + i, 2)}")
            if b % 2 == 0:
                continue
            k = b % 4 - 1
            if k == 0:
                cv = {}
            for i in range(4):
                d = X[i % 2] + (i & 2) + k // 2
                after = [cv[0, i - 1]] if k == 0 and i % 2 else [cv[0, i | 1]] if k else []
                cv[k, i] = epi(f"v_cvt_pk_bf16_f32 v{d}, v{X[k] + i}, v{X[k + 1] + i}", "valu",
                               rd=[f"v{X[k] + i}", f"v{X[k + 1] + i}"], wr=[f"v{d}"],
                               deps=[(mu[k][i], 0), (mu[k + 1][i], 0)] + [(o, 0) for o in after])
        wrs = []
        for i in range(4):
            d = X[i % 2] + (i & 2)
            wrs.append(epi(f"ds_write_b64 v{vOW}, {rr('v', d, 2)} offset:{so + 512 * i}", "ldsw",
                           rd=[f"v{vOW}"] + regs("v", d, 2), early=10 ** 9,
                           deps=[(cv[0, i], 0), (cv[2, i], 0)] + [(r, 0) for r in stage_r.get(region, [])]))
        stage_w.extend(wrs)
        stage_r[region] = []
        for m in range(2):
            d = X[2 + m]
            rds = [epi(f"ds_read_b64_tr_b16 {rr('v', d + 2 * t, 2)}, v{(vOR, vOR1)[t]} offset:{so + 1024 * m}", "ldsr",
                       rd=[f"v{(vOR, vOR1)[t]}"], wr=regs("v", d + 2 * t, 2),
                       deps=[(w, 0) for w in wrs[2 * m:2 * m + 2]] + [(cv[2, i], 0) for i in range(4)])
                   for t in range(2)]
            stage_r[region] += rds
        for m in range(2):
            rds = stage_r[region][2 * m:2 * m + 2]
            off = f" offset:{128 * h}" if h and not a.hswap else ""
            vo = 15 if h and a.hswap else vOG
            st = (a.st.split("/") * 8)[len(stage_w) // 4 - 1]
            epi(f"buffer_store_dwordx4 {rr('v', X[2 + m], 4)}, v{vo}, s[{sO}:{sO + 3}], s{sX + 4 * x + 2 * m} offen{off} {st}"
                .rstrip(), "vmem", rd=regs("v", X[2 + m], 4) + [f"v{vo}"], deps=[(r, a.stdist) for r in rds], needs=rds)

    spare = sorted([(b + 4 * i, rel) for b, rel in ppool.rel.items() for i in range(pw)], key=lambda kv: kv[1])
    for x, bs in [(x, bs) for xs, bs in final_parts for x in xs]:
        if a.pa:
            for h in sorted({b // 4 for b in bs}):
                epi_rows(x, h)
            continue
        assert a.half or len(bs) == 8
        if x not in rcp:
            recip(x)
        xi = epi_order.index(x)
        rl, rc, wrs = vRL[x], rcp[x], wrs_of[x]
        p, ob = Oreg[x]
        so = (xi % 2) * TILE
        for b in bs:
            region = (xi % 2, b // 4 if a.half else 0)
            prod = mf[last_use["O", x, b]]
            o = ob + 4 * b
            if p == "a":
                t = tq.pop(0)
                tq.append(t)
                dep0 = [(d, 0) for d in (tfree[t] or lastsm)]
                src4 = [[(epi(f"v_accvgpr_read_b32 v{t + i}, a{o + i}", "valu", rd=[f"a{o + i}"], wr=[f"v{t + i}"],
                              deps=[(prod, 8)] + dep0, early=tdead + 1), 0)] for i in range(4)]
            else:
                t = o
                src4 = [[(prod, 8)] for i in range(4)]
            mu = [epi(f"v_mul_f32 v{t + i}, v{rl}, v{t + i}", "valu", rd=[f"v{rl}", f"v{t + i}"], wr=[f"v{t + i}"],
                      deps=src4[i] + [(rc, 1)]) for i in range(4)]
            for i in (0, 2):
                sel = "op_sel:[0,1] op_sel_hi:[1,1]" if rl % 2 else "op_sel_hi:[1,0]"
                mulpair[mu[i]] = (mu[i + 1], f"v_pk_mul_f32 {rr('v', t + i, 2)}, {rr('v', t + i, 2)}, "
                                             f"{rr('v', rl & ~1, 2)} {sel}")
            c0 = epi(f"v_cvt_pk_bf16_f32 v{t}, v{t}, v{t + 1}", "valu", rd=[f"v{t}", f"v{t + 1}"], wr=[f"v{t}"],
                     deps=[(mu[0], 0), (mu[1], 0)])
            c1 = epi(f"v_cvt_pk_bf16_f32 v{t + 1}, v{t + 2}, v{t + 3}", "valu", rd=[f"v{t + 2}", f"v{t + 3}"],
                     wr=[f"v{t + 1}"], deps=[(mu[2], 0), (mu[3], 0), (c0, 0)])
            w = epi(f"ds_write_b64 v{vOW}, {rr('v', t, 2)} offset:{so + 32 * b}", "ldsw",
                    rd=[f"v{vOW}", f"v{t}", f"v{t + 1}"], early=10 ** 9,
                    deps=[(c0, 0), (c1, 0)] + [(r, 0) for r in stage_r.get(region, [])])
            wrs.append(w)
            stage_w.append(w)
            if p == "a":
                tfree[t] = [w]
            if b % (4 if a.half else 8) != (3 if a.half else 7):
                continue
            if a.half:
                h = b // 4
                pieces = [(ob + 16 * h + 4 * n, so + 544 * n + 128 * h, 2 * n, 128 * h) for n in range(2)]
            else:
                pieces = [(ob + 4 * i, so + 272 * i, i, 0) for i in range(4)]
            rds = [epi(f"ds_read_b128 {rr(p, r, 4)}, v{vOR} offset:{lo}", "ldsr", rd=[f"v{vOR}"], wr=regs(p, r, 4),
                       deps=[(w, 0) for w in wrs]) for r, lo, _, _ in pieces]
            stage_r[region] = rds
            for rd_, (r, _, gi, go) in zip(rds, pieces):
                if str(x) in a.dbgnost:
                    continue
                stx = (st.split("/") * 4)[xi]
                off = f" offset:{go}" if go else ""
                epi(f"buffer_store_dwordx4 {rr(p, r, 4)}, v{vOG}, s[{sO}:{sO + 3}], s{sX + 4 * x + gi} offen{off} {stx}".rstrip(),
                    "vmem", rd=regs(p, r, 4) + [f"v{vOG}"], deps=[(rd_, a.stdist)], needs=[rd_])

    pending = sorted(F, key=lambda o: o.prio)
    overflow = 0
    leads = []

    def ready(op, strict=True):
        if op.early > E.gap:
            return False
        for d, dist in op.deps:
            if d.idx is None or (strict and E.nst - d.st < dist):
                return False
        return True

    def put(op):
        if op.cls == "ldsr":
            finalize_read(op)
        if op.needs:
            E.lds_wait(op.needs)
        E.emit(op)
        pending.remove(op)

    def closure(op, acc):
        assert op.early <= E.gap, ("cannot meet deadline", op.text, op.tag, op.early, E.gap)
        for d, _ in op.deps:
            if d.idx is None and d not in acc:
                assert d.cls != "mfma", ("deadline before producer", op.text, E.gap)
                closure(d, acc)
        if op not in acc:
            acc.append(op)

    def drain(merge_mul=False):
        while True:
            cand = [o for o in pending if ready(o)] or [o for o in pending if ready(o, False)]
            if not cand:
                return
            o = cand[0]
            if merge_mul and o in mulpair and mulpair[o][0].idx is None and ready(mulpair[o][0], False):
                o2, o.text = mulpair[o]
                o.rd += o2.rd
                o.wr += o2.wr
                put(o)
                o2.idx, o2.st = o.idx, o.st
                pending.remove(o2)
            else:
                put(o)

    def signal(ep):
        for t in ep["tiles"]:
            assert t in dma_op and dma_op[t].idx is not None, ("tile not issued before its epoch", t, ep)
            leads.append(E.gap - dma_op[t].gap)
        stamp("b")
        if ep["n"] >= len(epochs) - 2:
            stamp("e")
        E.vm_wait([dma_op[t] for t in ep["tiles"]])
        stamp("w")
        ep["rel"] = [t for t, rs in tile_reads.items() if t not in released and t in slot_of and
                     all(r.idx is not None and (not ep["bar"] or r.ldsn < E.lds_done) for r in rs)]
        released.update(ep["rel"])

    def passed(ep):
        if ep["n"] == 1:
            for s in range(q0, q0 + 16, 2):
                free_slots["K" if s < NK else "V"].append(s)
        for t in ep["rel"]:
            free_slots[t[0]].append(slot_of[t])
        if ("K", 11) in slot_of and all(s in free_slots["K"] for s in range(0, 8, 2)):
            for w in stage_w:
                w.early = min(w.early, E.gap)

    dper = [int(x.split("x")[0]) for x in a.dmaper.split(",") for _ in range(int((x + "x1").split("x")[1]))]
    next_dma_gap = G0 + a.dma0
    staged = None
    for g in range(-1, NMF):
        E.gap = g
        if g >= 0:
            E.emit(mf[g])
        if g in qgap:
            drain()
            q_prepare(qgap[g])
            if g == G0:
                stamp()
            E.lds_wait(mf[g + 1].needs)
            continue
        shadow = True
        budget = 8 if g < tdead + a.fstart else (a.fbudget * (g + 1) // 4 - a.fbudget * g // 4) * 4
        budget0 = budget
        if g >= 0 and "smfmac" in mf[g].text:
            budget -= 4
        fixed_mem, fixed_valu = [], []
        for ep in epochs:
            if ep["bar"]:
                if g == ep["gc"]:
                    signal(ep)
                    e("s_barrier", "barrier")
                    stamp("b")
                    if ep["n"] >= len(epochs) - 2:
                        stamp("e")
                    passed(ep)
                    shadow = False
                continue
            if g == ep["gs"] - 1:
                fixed_valu.append(Op(f"v_mov_b32 v{vFE}, {ep['n']}", "valu", wr=[f"v{vFE}"]))
            if g == ep["gs"]:
                signal(ep)
                shadow = False
                E.emit(Op(f"ds_write_b32 v{vFW}, v{vFE}", "ldsw", rd=[f"v{vFW}", f"v{vFE}"]))
                budget -= 8
            if g == ep["gr"]:
                ep["rd"] = Op(f"ds_read_b32 v{vFT}, v{vFR}", "ldsr", rd=[f"v{vFR}"], wr=[f"v{vFT}"])
                fixed_mem.append(ep["rd"])
            if g == ep["gc"] - 1:
                if E.lds_wait([ep["rd"]], a.lat):
                    shadow = False
                fixed_valu.append(Op(f"v_cmp_gt_u32 vcc, {ep['n']}, v{vFT}", "valu", rd=[f"v{vFT}"], wr=["vcc"]))
            if g == ep["gc"]:
                e(f"s_cbranch_vccnz L_spin{ep['n']}")
                E.label(f"L_ok{ep['n']}")
                passed(ep)
                shadow = False
        if a.stamps and g in [first_use["S", gs, 0] for gs in (4, 8, 12, 16, 20, 24, 28)] + [tdead]:
            stamp()
        if g in (first_use["S", 14, 0], first_use["S", 22, 0]):
            stamp("s")
        if g in (G0 + 1, first_use["S", 14, 0], tdead):
            stamp("g")
        if g >= NMF - 145 and (NMF - 1 - g) % 36 == 0:
            stamp("e")
        if g > G0 and (g - G0) % a.stampper == 1:
            stamp("p")
        if g + 1 < NMF and mf[g + 1].needs and all(n.idx is not None for n in mf[g + 1].needs):
            if E.lds_wait(mf[g + 1].needs, a.lat):
                shadow = False
        quiet = not any(not ep["bar"] and g + 1 in (ep["gs"] - 1, ep["gs"], ep["gr"], ep["gc"] - 1) for ep in epochs)
        if staged is not None:
            for o in staged:
                E.emit(o)
            staged = None
            budget -= a.dmacost
        elif shadow and quiet and di < len(dma_order) and g >= next_dma_gap and slot_for(dma_order[di]) is not None:
            pre, staged = make_dma(dma_order[di])
            di += 1
            E.emit(pre)
            next_dma_gap = max(next_dma_gap, g - 4) + dper[0]
            if len(dper) > 1:
                dper.pop(0)
        budget -= 4 * (len(fixed_mem) + len(fixed_valu))
        full = budget >= 8
        picks = []
        for o in pending:
            if o.dead <= g:
                closure(o, picks)
        budget -= sum(o.cost for o in picks)
        cand = [o for o in pending[:400] if o not in picks and ready(o)]
        if full and not picks and cand:
            first = cand[0]
            small = [o for o in cand if o.cost == 4]
            tr = [o for o in cand if o.cls == "trans"]
            if first.cost == 4 and len(small) < 2 and tr:
                first = tr[0]
            picks.append(first)
            budget -= first.cost
        for o in cand:
            if o not in picks and o.cost <= budget:
                picks.append(o)
                budget -= o.cost
        mem = [o for o in picks if o.cls in ("ldsr", "ldsw", "vmem") and all(d.idx is not None for d, _ in o.deps)]
        rest = [o for o in picks if o not in mem]
        for o in fixed_mem:
            E.emit(o)
        for o in mem:
            put(o)
        for o in fixed_valu:
            E.emit(o)
        while rest:
            o = ([o for o in rest if ready(o)] or [o for o in rest if ready(o, False)])[0]
            put(o)
            rest.remove(o)
        while budget > 0:
            more = [o for o in pending[:400] if o.cls == "valu" and ready(o)]
            if not more:
                break
            put(more[0])
            budget -= 4
        if a.stress and G0 < g < tdead and budget >= 4:
            for z in range(budget // 4):
                r = Pbases[(3 * g + z) % 16] + g % 4
                v(f"v_fma_f32 v15, v{r}, v{r + 4}, v{r + 8}", ["v15"])
        elif full and not picks and budget >= 8 and any(ready(o, False) for o in pending[:400]):
            e("s_nop 1", "nop")
        if a.touch and g == a.touch:
            e(f"buffer_load_dword v15, v{vOG}, s[{sO}:{sO + 3}], 0 offen nt", "vmem", rd=[f"v{vOG}"], wr=["v15"])
        if a.dbgnop:
            n0, n1, ev, ln = [int(x) for x in a.dbgnop.split(",")]
            if n0 <= g < n1 and g % ev == 0:
                e(f"s_nop {ln}", "nop")
        if g > G0:
            overflow += max(0, budget0 - budget - 8)
        if g + 1 < NMF and mf[g + 1].needs:
            E.lds_wait(mf[g + 1].needs)
    assert staged is None and di == len(dma_order) and issued == [len(items)] * 2
    stamp()
    ntail = len(pending)
    n0 = len(E.out)
    drain(a.pk)
    overflow += sum(o.cost for o in E.out[n0:])
    assert not pending
    stamp("x")

    e(f"s_or_b64 s[{sBAD}:{sBAD + 1}], s[{sBAD}:{sBAD + 1}], s[{sBAD + 2}:{sBAD + 3}]")
    e(f"s_or_b64 s[{sBAD + 4}:{sBAD + 5}], s[{sBAD + 4}:{sBAD + 5}], s[{sBAD + 6}:{sBAD + 7}]")
    e(f"s_or_b64 s[{sBAD}:{sBAD + 1}], s[{sBAD}:{sBAD + 1}], s[{sBAD + 4}:{sBAD + 5}]")
    e(f"s_cselect_b32 s{sTMP}, 1, 0")
    e(f"s_lshl_b32 s{sC}, s{sW}, 2")
    e(f"s_add_u32 s{sC}, s{sC}, {FLAG_OFF}")
    va(f"v_mov_b32 v12, s{sC}")
    va(f"v_mov_b32 v13, s{sTMP}")
    va(f"v_mov_b32 v14, {FLAG_OFF}")
    e("ds_write_b32 v12, v13", "ldsw", rd=["v12", "v13"])
    E.lds_drain()
    e("s_barrier", "barrier")
    e("ds_read_b128 v[16:19], v14", "ldsr", rd=["v14"], wr=regs("v", 16, 4))
    E.lds_drain()
    v("v_or3_b32 v16, v16, v17, v18", ["v16"], regs("v", 16, 3))
    v("v_or_b32 v16, v16, v19", ["v16"], ["v16", "v19"])
    v(f"v_readfirstlane_b32 s{sTMP}, v16", [f"s{sTMP}"], ["v16"])
    e(f"s_andn2_b32 s{sTMP}, s{sTMP}, s{sMODE}", rd=[f"s{sTMP}"])
    e("s_cbranch_scc1 L_rerun")
    if a.stamps:
        e("s_waitcnt vmcnt(0)", "wait")
        stamp("x")
        E.lds_drain()
        e(f"s_mov_b32 s{sWS + 2}, 1048576")
        e(f"s_mov_b32 s{sWS + 3}, 0x20000")
        e(f"s_lshl_b32 s{sTMP}, s2, 2")
        e(f"s_add_u32 s{sTMP}, s{sTMP}, s{sW}")
        e(f"s_mul_i32 s{sTMP}, s{sTMP}, {8 * nstamp[0]}")
        va("v_mov_b32 v12, 0")
        for i in range(nstamp[0] if a.report < 0 else 0):
            va(f"v_mov_b32 v14, s{stampreg[i]}")
            va(f"v_mov_b32 v15, s{stampreg[i] + 1}")
            e(f"buffer_store_dwordx2 v[14:15], v12, s[{sWS}:{sWS + 3}], s{sTMP} offen offset:{8 * i}", "vmem",
              rd=["v14", "v15", "v12"])
            e("s_nop 1", "nop")
    if a.report >= 0:
        r = stampreg[a.report]
        e("s_mov_b32 s94, s86")
        if a.reportglob:
            e("s_mov_b32 s88, s100")
            e("s_mov_b32 s89, s101")
            e("s_mov_b32 s90, 256")
            e("s_mov_b32 s91, 0x20000")
            E.label("L_diag4")
            e("s_memrealtime s[92:93]", "smem")
            e("s_waitcnt lgkmcnt(0)", "wait")
            e("s_sub_u32 s92, s92, s94")
            e("s_cmp_lt_u32 s92, 2600")
            e("s_cbranch_scc1 L_diag4")
            e("s_not_b32 s92, s86")
            va("v_mov_b32 v14, s92")
            va("v_mov_b32 v12, 0")
            e("s_mov_b64 exec, 1")
            e("buffer_atomic_umax v14, v12, s[88:91], 0 offen sc1", "vmem", rd=["v14", "v12"])
            e("s_mov_b64 exec, -1")
            E.label("L_diag3")
            e("s_memrealtime s[92:93]", "smem")
            e("s_waitcnt lgkmcnt(0)", "wait")
            e("s_sub_u32 s92, s92, s94")
            e("s_cmp_lt_u32 s92, 5000")
            e("s_cbranch_scc1 L_diag3")
            e("buffer_load_dword v14, v12, s[88:91], 0 offen sc0 sc1", "vmem", rd=["v12"], wr=["v14"])
            e("s_waitcnt vmcnt(0)", "wait")
            v("v_readfirstlane_b32 s94, v14", ["s94"], ["v14"])
            e("s_not_b32 s94, s94", rd=["s94"])
        if a.reportwg:
            e(f"s_lshr_b32 s{sTMP}, s2, 5")
            e(f"s_cmp_lg_u32 s{sTMP}, {a.reportwg - 1}")
            e("s_cbranch_scc1 L_end")
        e(f"s_sub_u32 s{sTMP}, s{r}, s94")
        e(f"s_min_u32 s{sTMP}, s{sTMP}, 4000")
        e(f"s_mul_i32 s{sTMP}, s{sTMP}, 5")
        e(f"s_add_u32 s{sTMP}, s{sTMP}, 3000")
        E.label("L_diag2")
        e("s_memrealtime s[92:93]", "smem")
        e("s_waitcnt lgkmcnt(0)", "wait")
        e("s_sub_u32 s92, s92, s94")
        e(f"s_cmp_lt_u32 s92, s{sTMP}")
        e("s_cbranch_scc1 L_diag2")
    if a.spin:
        e("s_waitcnt vmcnt(0)", "wait")
        E.label("L_diag")
        e("s_memrealtime s[62:63]", "smem")
        e("s_waitcnt lgkmcnt(0)", "wait")
        e("s_sub_u32 s62, s62, s60")
        e(f"s_cmp_lt_u32 s62, {a.spin * 100}")
        e("s_cbranch_scc1 L_diag")
    E.label("L_end")
    e("s_endpgm", "end")

    for ep in epochs:
        if not ep["bar"]:
            E.label(f"L_spin{ep['n']}")
            e(f"ds_read_b32 v{vFT}, v{vFR}", "ldsr", rd=[f"v{vFR}"], wr=[f"v{vFT}"])
            e("s_waitcnt lgkmcnt(0)", "wait")
            v(f"v_cmp_gt_u32 vcc, {ep['n']}, v{vFT}", ["vcc"], [f"v{vFT}"])
            e(f"s_cbranch_vccnz L_spin{ep['n']}")
            e(f"s_branch L_ok{ep['n']}")
    E.label("L_codeend")

    E.label("L_rerun")
    e(f"s_mov_b32 s{sMODE}, 1")
    e("s_waitcnt vmcnt(0) lgkmcnt(0)", "wait")
    e("s_barrier", "barrier")
    va("v_mbcnt_lo_u32_b32 v0, -1, 0")
    va("v_mbcnt_hi_u32_b32 v0, -1, v0")
    e(f"s_lshl_b32 s{sTMP}, s{sW}, 6")
    va(f"v_add_u32 v0, s{sTMP}, v0")
    e("s_branch L_start")

    E.label("L_maxpass")
    va(f"v_bfe_u32 v{vT1}, v{vLN}, 2, 2")
    va(f"v_lshrrev_b32 v{vT2}, 4, v{vLN}")
    va(f"v_lshl_add_u32 v{vT2}, v{vT2}, 4, {BIAS}")
    va(f"v_lshl_add_u32 v{vT1}, v{vT1}, 8, v{vT2}")
    va(f"v_and_b32 v{UT}, 1, v{vLN}")
    va(f"v_lshl_add_u32 v{vT2}, v{UT}, {lg(qS[2])}, v{vT1}")
    va(f"v_bfe_u32 v{UT}, v{vLN}, 1, 1")
    va(f"v_lshl_add_u32 v{vT2}, v{UT}, {lg(qS[3])}, v{vT2}")
    va(f"v_and_b32 v{UT}, 3, v{vLN}")
    va(f"v_lshl_add_u32 v{vT1}, v{UT}, 10, v{vT1}")
    for x in range(4):
        for s in range(4):
            e(f"buffer_load_dwordx4 {rr('v', QT + 4 * s, 4)}, v{vT2}, s[{sQ}:{sQ + 3}], s{sX + 4 * x} offen offset:{64 * s}",
              "vmem", rd=[f"v{vT2}"], wr=regs("v", QT + 4 * s, 4))
        e("s_waitcnt vmcnt(0)", "wait")
        for s in range(4):
            q_scale(x, s)
    e(f"s_mov_b32 s{sTMP}, 0")
    E.label("L_maxloop")
    for s in range(4):
        e(f"buffer_load_dwordx4 {rr('v', QT + 4 * s, 4)}, v{vT1}, s[{sK}:{sK + 3}], s{sTMP} offen offset:{64 * s}",
          "vmem", rd=[f"v{vT1}"], wr=regs("v", QT + 4 * s, 4))
    e("s_waitcnt vmcnt(0)", "wait")
    for x in range(4):
        S = Sreg[x]
        for s in range(4):
            C, cr = ("0", []) if s == 0 else (rr("v", S, 4), regs("v", S, 4))
            E.emit(Op(f"v_mfma_f32_16x16x32_bf16 {rr('v', S, 4)}, {rr('v', QT + 4 * s, 4)}, {rr('a', Qreg[x][s], 4)}, {C}",
                      "mfma", rd=regs("v", QT + 4 * s, 4) + regs("a", Qreg[x][s], 4) + cr, wr=regs("v", S, 4), srcc=cr))
    e("s_nop 7", "nop")
    for x in range(4):
        S, n = Sreg[x], NM[x]
        v(f"v_max3_f32 v{n}, v{S}, v{S + 1}, v{n}", [f"v{n}"], [f"v{S}", f"v{S + 1}", f"v{n}"])
        v(f"v_max3_f32 v{n}, v{S + 2}, v{S + 3}, v{n}", [f"v{n}"], [f"v{S + 2}", f"v{S + 3}", f"v{n}"])
    e(f"s_add_u32 s{sTMP}, s{sTMP}, 4096")
    e(f"s_cmp_lt_u32 s{sTMP}, 131072")
    e("s_cbranch_scc1 L_maxloop")
    e("s_nop 3", "nop")
    e("s_branch L_maxdone")

    ops, nnop = fix_hazards(E.out)
    if a.pads:
        ops = insert_pads(ops)
    if a.verbose:
        print("G0", G0, "tdead", tdead)
        print([(ep["gs"], ep["gc"], [t[0] + str(t[1]) for t in ep["tiles"]]) for ep in epochs])
        print("leads", leads)
        print("stores", [o.gap for o in E.out if "buffer_store" in o.text])
    info = dict(mfma=NMF, instrs=len(ops), nops=nnop, overflow=overflow, tail=ntail, epochs=len(epochs),
                minlead=min(leads[a.ninit:]), pslots=len(Pbases), fslots=len(Fbases), stamps=nstamp[0])
    head = [
        "; GQA attention forward, B=32 Hq=32 Hkv=8 Sq=64 Sk=512 D=128, bf16 in / bf16 out (generated schedule).",
        "; kernarg: q @0, k @8, v @16, out @24, debug @32, ws @40",
        "; One workgroup per (batch, kv head); wave w handles q head 4*hkv+w.",
        "; Softmax shift: row max of the first keys; a final check on the row sums reruns the",
        "; workgroup with the true row max (L_rerun / L_maxpass) whenever that shift is unsafe.",
        f"; @launch grid=(256,1,1) block=(256,1,1) lds={LDS_BYTES}",
        '.amdgcn_target "amdgcn-amd-amdhsa--gfx950"', ".text", f".globl {KNAME}", ".p2align 8",
        f".type {KNAME},@function", f"{KNAME}:"]
    body = [(o.text if o.cls == "label" else "    " + o.text) for o in ops]
    tail = ['.section .rodata,"a"', ".p2align 6", f".amdhsa_kernel {KNAME}",
            "  .amdhsa_next_free_vgpr 512", "  .amdhsa_next_free_sgpr 102", "  .amdhsa_accum_offset 256",
            "  .amdhsa_group_segment_fixed_size 0", "  .amdhsa_kernarg_size 48", "  .amdhsa_user_sgpr_count 2",
            "  .amdhsa_user_sgpr_kernarg_segment_ptr 1", "  .amdhsa_system_sgpr_workgroup_id_x 1",
            ".end_amdhsa_kernel"]
    return "\n".join(head + body + tail) + "\n", info


def parser():
    ap = argparse.ArgumentParser()
    ap.add_argument("out")
    for k, d in dict(groups="2,2,4,4,4,4,4,8", final="0a,1a,2a,3a,0b,1b,2b,3b", ones="0123", oacc="2", ld="nt", st="sc1 nt", sync="bar",
                     merge="12,12,40", win="10,10,16", dmaper="29x17,22", stampat="m", dbgnop="", dbgnost="", deven="3,3,4", dodd="5,3,4").items():
        ap.add_argument("--" + k, default=d)
    for k, d in dict(ns=5, lag=3, lat=6, skew=8, nbar=1, dmacost=8, dma0=8, rdbias=8, hoist=64, stdist=12, q0=10,
                     ninit=3, infl=8, halftop=0, prek=2, prev=1, nc0=3, nmax=1, fbudget=14, fstart=16, pk=1,
                     half=1, stress=0, sparse=0, hswap=0, touch=0, report=-1, reportwg=0, reportglob=0, eprio=8, pa=1, sumearly=2, smooth=2, fhoist=80, rot=1, remap=1, rotmask=15, rotrev=0, qrot=3, kvs=0, qs=0, dbgswap=0, infl0=0, infl1=0, pvend=0, pvgam=100, qrun=1, snake=1, stampper=60, stamps=0, spin=0, pfcode=1, pads=1, verbose=0).items():
        ap.add_argument("--" + k, type=int, default=d)
    return ap


if __name__ == "__main__":
    a = parser().parse_args()
    txt, info = build(a)
    open(a.out, "w").write(txt)
    print(a.out, info)
```

```python
import argparse, math, re, struct, sys

KNAME = "standalone__gqa_softmax__near_ridge_kernel"
TILE = 4352
GRAN = 1088
NSLOT = 36
LDS_BYTES = 163840
FLAG_OFF = NSLOT * TILE
SYNC_OFF = FLAG_OFF + 256


def f32bits(x):
    return struct.unpack("<I", struct.pack("<f", x))[0]


def regs(p, lo, n):
    return [f"{p}{lo + i}" for i in range(n)]


def rr(p, lo, n):
    return f"{p}[{lo}:{lo + n - 1}]" if n > 1 else f"{p}{lo}"


class Op:
    __slots__ = ("text", "cls", "rd", "wr", "deps", "early", "dead", "prio", "needs", "idx", "gap",
                 "ldsn", "pre", "vmn", "tag", "srcc", "st", "cost")

    def __init__(self, text, cls, rd=(), wr=(), deps=(), early=-1, dead=10 ** 9, needs=(), pre=None, tag=None,
                 srcc=()):
        self.text, self.cls = text, cls
        self.rd, self.wr = list(rd), list(wr)
        self.deps = list(deps)
        self.early, self.dead = early, dead
        self.needs = list(needs)
        self.idx = None
        self.gap = None
        self.ldsn = None
        self.vmn = None
        self.pre = pre
        self.tag = tag
        self.prio = 0
        self.srcc = list(srcc)
        self.cost = COST.get(cls, 4)


COST = dict(trans=8, valu=4, ldsr=4, ldsw=12, vmem=20, salu=4)


class Emitter:
    def __init__(self):
        self.out = []
        self.nlds = 0
        self.lds_done = 0
        self.lds_gap = []
        self.nvm = 0
        self.vm_done = 0
        self.gap = -1
        self.nst = 0

    def emit(self, op):
        self.nst += states(op)
        op.st = self.nst
        op.idx = len(self.out)
        op.gap = self.gap
        if op.cls in ("ldsr", "ldsw"):
            op.ldsn = self.nlds
            self.nlds += 1
            self.lds_gap.append(self.gap)
        if op.cls == "vmem":
            op.vmn = self.nvm
            self.nvm += 1
        self.out.append(op)
        return op

    def raw(self, text, cls="salu", **kw):
        return self.emit(Op(text, cls, **kw))

    def label(self, name):
        self.out.append(Op(name + ":", "label"))

    def lds_wait(self, needs, lat=None):
        need = max((n.ldsn for n in needs), default=-1) + 1
        if need <= self.lds_done:
            return False
        if lat is not None:
            k = need
            while k < self.nlds and self.lds_gap[k] <= self.gap - lat:
                k += 1
            need = k
        n = min(self.nlds - need, 15)
        self.raw(f"s_waitcnt lgkmcnt({n})", "wait")
        self.lds_done = self.nlds - n
        return True

    def lds_drain(self):
        self.raw("s_waitcnt lgkmcnt(0)", "wait")
        self.lds_done = self.nlds

    def vm_wait(self, ops):
        need = max((o.vmn for o in ops), default=-1) + 1
        if need <= self.vm_done:
            return False
        n = min(self.nvm - need, 63)
        self.raw(f"s_waitcnt vmcnt({n})", "wait")
        self.vm_done = self.nvm - n
        return True


def states(op):
    if op.cls == "label":
        return 0
    m = re.match(r"s_nop (\d+)", op.text)
    return int(m.group(1)) + 1 if m else 1


def fix_hazards(ops):
    out = []
    added = 0
    for op in ops:
        if op.cls == "label":
            out.append(op)
            continue
        need = 0
        dist = 0
        rd, wr = set(op.rd), set(op.wr)
        isv = op.cls in ("valu", "trans")
        for p in reversed(out):
            if dist >= 12:
                break
            pw = set(p.wr)
            req = 0
            if p.cls == "mfma":
                if "smfmac" in p.text and op.cls != "mfma" and pw & (rd | wr):
                    req = 12
                elif op.cls == "mfma":
                    ab = rd - set(op.srcc)
                    if pw & ab:
                        req = 8
                    if pw & set(op.srcc) and set(op.srcc) != pw:
                        req = max(req, 6)
                    if pw & wr and set(op.srcc) != pw:
                        req = max(req, 6)
                else:
                    if pw & (rd | wr):
                        req = 8
                    if isv and set(p.srcc) & wr:
                        req = max(req, 3)
            elif p.cls in ("valu", "trans"):
                if op.cls == "mfma" and pw & rd:
                    req = 2
                if p.cls == "trans" and op.cls != "trans" and pw & rd:
                    req = max(req, 1)
                if "permlane" in op.text and pw & rd:
                    req = max(req, 2)
                if ("readfirstlane" in op.text or "readlane" in op.text) and pw & rd:
                    req = max(req, 1)
                sw = {r for r in pw if r[0] == "s" or r == "vcc"}
                if sw & rd:
                    req = max(req, 5 if op.cls == "vmem" else 2)
            elif p.cls == "salu":
                if "m0" in pw and op.cls == "vmem" and "m0" in rd:
                    req = 1
            elif p.cls == "vmem":
                if "store" in p.text and set(p.rd) & wr and op.cls != "salu":
                    req = 2
            need = max(need, req - dist)
            if not (p.tag and p.tag[0] == "arm" and p.tag != op.tag):
                dist += states(p)
        if need > 0:
            out.append(Op(f"s_nop {need - 1}", "nop"))
            added += 1
        out.append(op)
    return out, added


def isize(op):
    t = op.text
    if op.cls == "label":
        return 0
    mn = t.split()[0]
    if op.cls in ("mfma", "xmfma", "ldsr", "ldsw", "vmem", "smem"):
        return 8
    if mn in ("s_getreg_b32", "s_movk_i32", "s_nop", "s_waitcnt", "s_barrier", "s_branch", "s_endpgm") or mn.startswith("s_cbranch"):
        return 4
    if mn.startswith("v_cmp") and " s[" in t:
        return 8
    if mn.startswith(("v_cvt_pk", "v_max3", "v_accvgpr", "v_pk_", "v_lshl_add", "v_add3", "v_bfe", "v_or3", "v_mbcnt",
                      "v_fma")):
        return 8
    for arg in [x.strip() for x in t[len(mn):].split(",")]:
        if re.fullmatch(r"-?(0x[0-9a-f]+|\d+)", arg) and not -16 <= int(arg, 0) <= 64:
            return 8
        if arg.startswith("L_"):
            return 8
    return 4


def insert_pads(ops):
    i0 = next(i for i, o in enumerate(ops) if o.text == "L_main:")
    i1 = next(i for i, o in enumerate(ops) if o.text == "L_end:")
    out, addr, page, pads = ops[:i0], 0, 1, []
    for i in range(i0, len(ops)):
        o = ops[i]
        if i <= i1 and addr >= 4096 * page:
            good = out[-1].cls == "mfma" and o.cls not in ("salu", "wait", "barrier", "nop")
            if good or addr + isize(o) > 4096 * page + 56:
                lab = Op(f"L_pad{len(pads)}:", "label")
                br = Op("", "salu")
                pads.append(br)
                out += [lab, br]
                addr += 4
                page += 1
        out.append(o)
        addr += isize(o)
    assert len(pads) >= 4
    for k, br in enumerate(pads):
        br.text = f"s_cbranch_execz L_pad{k + 4}" if k + 4 < len(pads) else "s_cbranch_execz L_main"
    return out


class Pool:
    def __init__(self, prefix, bases):
        self.prefix = prefix
        self.rel = {b: -1 for b in bases}

    def add(self, base, release):
        self.rel[base] = release

    def take(self, release):
        b = min(self.rel, key=lambda k: (self.rel[k], k))
        prev = self.rel[b]
        self.rel[b] = release
        return b, prev


def build(a):
    groups = [int(x) for x in a.groups.split(",")]
    assert sum(groups) == 32 and all(g % 2 == 0 for g in groups)
    G = len(groups)
    gstart = [sum(groups[:g]) for g in range(G + 1)]
    ones_x = [int(c) for c in a.ones if c.isdigit()]
    oacc_x = [int(c) for c in a.oacc if c.isdigit()]
    addx = [x for x in range(4) if x not in ones_x]
    ld, st = a.ld, a.st
    PK = 2 * a.prek
    flag = a.sync == "flag"
    GV = 1040 if a.pa else GRAN
    assert not a.pa or (a.half and not flag and len(ones_x) == 4)
    E = Emitter()
    e = E.raw

    vK, vV = 1, [2, 3, 4, 5]
    vDK, vDV = (6, 7), (11, 0)
    vOW, vOR, vOG = 8, 9, 10
    vRL = [12, 13, 14, 15]
    vFW, vFR, vFE, vFT = 12, 13, 14, 15
    vIX = 15
    NM = [16 + 4 * x for x in range(4)]
    vnext, anext, vtop = 32, 0, 256
    Lreg = {}
    for x in ones_x:
        Lreg[x] = anext
        anext += 4
    if addx:
        for i, x in enumerate(addx):
            Lreg[x] = vnext + i
        vnext += 4
    Sreg = [vnext + 4 * i for i in range(a.ns)]
    vnext += 4 * a.ns
    Oreg = {}
    for x in range(4):
        if x in oacc_x:
            Oreg[x] = ("a", anext)
            anext += 32
        else:
            vtop -= 32
            Oreg[x] = ("v", vtop)
    Pbases = list(range(vnext, vtop, 4))
    Qreg = [[anext + 16 * x + 4 * s for s in range(4)] for x in range(4)]
    anext += 64
    aONE = anext
    anext += 4
    Fbases = list(range(anext, 256, 4))
    QT = Pbases[-8]
    UT = QT + 16
    vLN, vQA, vT1, vT2 = QT + 24, QT + 25, QT + 26, QT + 27
    vDQ = (QT + 28, QT + 29)
    assert len(Pbases) >= 8 + 4 * a.prek
    kvS = [(256, 512, 1024, 2048, 8192), (256, 512, 1024, 32768, 2048), (256, 512, 16384, 32768, 1024),
           (4096, 8192, 16384, 32768, 256), (256, 8192, 16384, 32768, 512)][a.kvs]
    qS = [(256, 512, 1024, 2048, 4096), (256, 512, 4096, 8192, 1024), (256, 512, 1024, 8192, 2048)][a.qs]
    lg = lambda n: n.bit_length() - 1

    sQ, sK, sV, sO = 12, 16, 20, 24
    sW, sWG, sMODE, sC, sTHR, sQW, sTMP, sT2 = 3, 28, 29, 30, 31, 34, 35, 32
    sWS = 36
    sWV = 38
    sOFF = 64
    sX = 40
    sBAD = 88

    NK = 16
    q0 = a.q0
    vwin = [NK, NK + 16]

    qk_units = [(j, x) for x in range(4) for j in range(PK)] + [(j, x) for j in range(PK, 32) for x in range(4)]
    uidx = {u: i for i, u in enumerate(qk_units)}
    assert gstart[a.prev + 1] >= PK >= gstart[a.prev]
    final_parts = [([int(c) for c in part if c.isdigit()],
                    range(4) if "a" in part else range(4, 8) if "b" in part else range(8)) for part in a.final.split(",")]
    pvq = []
    for g in range(G):
        if g < a.prev:
            for x in range(4):
                u = ([("sum", g, None, x)] if x in ones_x else []) + [("pv", g, b, x) for b in range(8)]
                pvq += [(PK * (x + 1) - 0.5, w) for w in u]
            continue
        if g < G - 1:
            u = [("sum", g, None, x) for x in ones_x] + [("pv", g, b, x) for b in range(8) for x in range(4)]
        else:
            u = []
            for xs, bs in final_parts:
                u += [("sum", g, None, x) for x in xs if x in ones_x and ("sum", g, None, x) not in u]
                u += [("pv", g, b, x) for b in bs for x in xs]
            for w in [w for w in u[1:] if w[0] == "sum"]:
                i = u.index(w)
                u.insert(max(1, i - a.sumearly), u.pop(i))
        lo = 4 * gstart[g + 1] + a.lag
        hi = 4 * gstart[min(g + 2, G)] + a.lag
        if a.pvend and g < G - 1:
            u0, span = 4 * gstart[a.prev + 1] + a.lag, gstart[G - 1] - gstart[a.prev]
            at = lambda t: u0 + (a.pvend - u0) * ((t - gstart[a.prev]) / span) ** (a.pvgam / 100)
            lo = max(lo, at(gstart[g]))
            hi = max(hi, at(gstart[g + 1])) if g < G - 2 else a.pvend
        pvq += [(lo + (hi - lo) * i / len(u) if g < G - 1 else 10 ** 6, w) for i, w in enumerate(u)]
    pvq.sort(key=lambda p: p[0])
    seq, pi = [], 0
    for ui, (j, x) in enumerate(qk_units):
        while pi < len(pvq) and pvq[pi][0] < ui and (ui <= 4 * PK or ui % a.qrun == 0):
            seq.append(pvq[pi][1])
            pi += 1
        seq.append(("qk", j, x))
    seq += [u for _, u in pvq[pi:]]

    M = []
    flip = False
    for n, u in enumerate(seq):
        same = n > 0 and seq[n - 1][0] == u[0] and (u[0] == "qk" or seq[n - 1][1] == u[1])
        flip = a.snake and same and not flip
        ks = list(range(4 if u[0] == "qk" else groups[u[1]] // 2))
        if u[0] == "sum" and a.sparse:
            ks = [k for k in ks if (gstart[u[1]] // 2 + k) % 2]
        for i, k in enumerate(ks[::-1] if flip else ks):
            M.append(("qk", u[1], u[2], k, i == 0) if u[0] == "qk" else (u[0], u[1], u[2], u[3], k))
    NMF = len(M)
    first_use, last_use = {}, {}

    def use(key, i):
        first_use.setdefault(key, i)
        last_use[key] = i

    for i, m in enumerate(M):
        if m[0] == "qk":
            _, j, x, s, _ = m
            use(("K", j, s), i)
            use(("S", j, x), i)
            use(("Q", x, s), i)
        else:
            kind, g, b, x, k = m
            kap = gstart[g] // 2 + k
            use(("P", kap, x), i)
            if kind == "pv":
                use(("V", kap, b), i)
                use(("O", x, b), i)
            else:
                use(("L", x), i)
                if a.sparse:
                    use(("P", kap - 1, x), i)
    qgap = {first_use["S", 0, x] - 1: x for x in range(4)}
    G0 = first_use["S", 0, 3] - 1

    pw = 2 if a.sparse else 1
    ppool = Pool("v", Pbases[len(Pbases) % pw::pw])
    for b in ppool.rel:
        if b >= QT:
            ppool.add(b, G0 + 1)
    Preg, Pfree = {}, {}
    for kap, x in sorted([(k, x) for k in range(0, 16, pw) for x in range(4)], key=lambda p: uidx[2 * p[0], p[1]]):
        b, rel = ppool.take(max(last_use["P", kap + i, x] for i in range(pw)))
        for i in range(pw):
            Preg[kap + i, x], Pfree[kap + i, x] = b + 4 * i, rel
    fpool = Pool("a", Fbases)
    for x in range(4):
        for s in range(4):
            fpool.add(Qreg[x][s], last_use["Q", x, s])
    frags = sorted([k for k in first_use if k[0] in "KV"], key=lambda k: first_use[k])
    Freg, Ffree = {}, {}
    for k in frags:
        Freg[k], Ffree[k] = fpool.take(last_use[k])
        assert Ffree[k] < first_use[k] - a.lat or Ffree[k] < 0, ("frag pool too small", k)

    mf = []
    started = set()
    for i, m in enumerate(M):
        if m[0] == "qk":
            _, j, x, s, head = m
            S = Sreg[uidx[j, x] % a.ns]
            A, B = Freg["K", j, s], Qreg[x][s]
            if head:
                C, cr = ("0", []) if j < a.nc0 else (rr("v", NM[x], 4), regs("v", NM[x], 4))
            else:
                C, cr = rr("v", S, 4), regs("v", S, 4)
            mf.append(Op(f"v_mfma_f32_16x16x32_bf16 {rr('v', S, 4)}, {rr('a', A, 4)}, {rr('a', B, 4)}, {C}", "mfma",
                         rd=regs("a", A, 4) + regs("a", B, 4) + cr, wr=regs("v", S, 4), srcc=cr))
        else:
            kind, g, b, x, k = m
            kap = gstart[g] // 2 + k
            if kind == "pv":
                p, o = Oreg[x][0], Oreg[x][1] + 4 * b
                A = Freg["V", kap, b]
                key = ("O", x, b)
            else:
                p, o, A, key = "a", Lreg[x], aONE, ("L", x)
            B = Preg[kap, x]
            if kind == "sum" and a.sparse:
                mf.append(Op(f"v_smfmac_f32_16x16x64_bf16 {rr(p, o, 4)}, {rr('a', A, 4)}, {rr('v', B - 4, 8)}, v{vIX}",
                             "mfma", rd=regs("a", A, 4) + regs("v", B - 4, 8) + [f"v{vIX}"] + regs(p, o, 4),
                             wr=regs(p, o, 4), srcc=regs(p, o, 4)))
                continue
            C, cr = (rr(p, o, 4), regs(p, o, 4)) if key in started else ("0", [])
            started.add(key)
            ab = [rr('a', A, 4), rr('v', B, 4)]
            if (a.dbgswap or a.pa) and kind == "pv":
                ab.reverse()
            mf.append(Op(f"v_mfma_f32_16x16x32_bf16 {rr(p, o, 4)}, {ab[0]}, {ab[1]}, {C}", "mfma",
                         rd=regs("a", A, 4) + regs("v", B, 4) + cr, wr=regs(p, o, 4), srcc=cr))

    tile_first = {}
    for d in range(16):
        tile_first["K", d] = min(first_use["K", 2 * d, s] for s in range(4))
        tile_first["V", d] = min(first_use["V", d, b] for b in range(8))
    dma_order = sorted(tile_first, key=lambda t: (tile_first[t], t[1]))
    pre_tiles = [t for t in dma_order if tile_first[t] <= G0]
    merge = [int(x) for x in a.merge.split(",")]
    wins = [int(x) for x in a.win.split(",")]
    nbar = a.nbar if flag else 99
    epochs, pub = [], {t: -1 for t in pre_tiles}
    for t in dma_order[len(pre_tiles):]:
        k = len(epochs)
        gc = max(tile_first[t] - wins[min(k, len(wins) - 1)], G0 + 1)
        if epochs and gc < epochs[-1]["gc"] + merge[min(k - 1, len(merge) - 1)]:
            epochs[-1]["tiles"].append(t)
        else:
            isbar = k < nbar
            epochs.append(dict(gc=gc, gr=gc - (0 if isbar else a.lat + 1), gs=gc - (0 if isbar else a.lat + 1 + a.skew),
                               tiles=[t], bar=isbar, n=k + 1))
            assert epochs[-1]["gs"] > G0 and (k == 0 or epochs[-1]["gr"] > epochs[-2]["gc"])
            assert k == 0 or epochs[-1]["gs"] > epochs[-2]["gs"]
        pub[t] = epochs[-1]["gc"]
    free_slots = {"K": [s for s in range(0, NK, 2) if not q0 <= s < q0 + 16],
                  "V": [s for s in range(NK, NSLOT, 2) if not q0 <= s < q0 + 16]}
    slot_of, dma_op = {}, {}
    tile_reads = {t: [] for t in tile_first}
    released = set()

    def slot_for(t):
        c = [s for s in free_slots[t[0]] if not (t[0] == "K" and t[1] >= 12 and s < 8)]
        if t[0] == "K" and 8 <= t[1] < 12:
            c.sort(key=lambda s: s >= 8)
        return c[0] if c else None

    def dma_pair(srd, vo, soff):
        gs = GV if srd == sV else GRAN
        ld = (a.ld.split("/") * 3)[[sQ, sK, sV].index(srd)]
        return [Op(f"buffer_load_dwordx4 v{vo[i]}, s[{srd}:{srd + 3}], s{soff} offen{' offset:%d' % gs if i else ''} {ld} lds"
                   .replace("  ", " "), "vmem", rd=["m0", f"v{vo[i]}"]) for i in range(2)]

    def make_dma(t):
        sl = slot_for(t)
        free_slots[t[0]].remove(sl)
        slot_of[t] = sl
        srd, vo = (sK, vDK) if t[0] == "K" else (sV, vDV)
        pre = Op(f"s_add_u32 m0, s{sWV if t[0] == 'V' and a.pa else sWG}, {sl * TILE}", "salu", wr=["m0"])
        ops = dma_pair(srd, vo, sOFF + t[1])
        dma_op[t] = ops[1]
        return pre, ops

    nstamp = [0]
    stampreg = list(range(56, 64, 2)) + list(range(80, 88, 2)) + [4, 6, 8, 10, 0, 96, 98, 32, 100]

    def stamp(kind="m"):
        if a.stamps and (kind in a.stampat or kind == "x") and (nstamp[0] < 14 or kind == "x"):
            for k, ins in enumerate(("s_memrealtime", "s_memtime")):
                if a.stamps >> k & 1:
                    r = stampreg[nstamp[0]]
                    nstamp[0] += 1
                    e(f"{ins} s[{r}:{r + 1}]", "smem")

    def v(text, wr, rd=(), cls="valu"):
        return e(text, cls, rd=list(rd), wr=list(wr))

    def va(text):
        return v(text, [text.split()[1].rstrip(",")])

    BIAS = GRAN - 1024
    e("s_cmp_ge_u32 s2, 256")
    e("s_cbranch_scc1 L_end")
    if a.spin:
        e("s_memrealtime s[60:61]", "smem")
    if a.report >= 0:
        e("s_memrealtime s[86:87]", "smem")
        e("s_load_dwordx2 s[100:101], s[0:1], 32", "smem")
    e("s_load_dwordx8 s[4:11], s[0:1], 0", "smem")
    if a.stamps:
        e(f"s_load_dwordx2 s[{sWS}:{sWS + 1}], s[0:1], 40", "smem")
    if a.pfcode:
        e("s_getpc_b64 s[96:97]")
        E.label("L_pc")
        e("s_add_u32 s96, s96, L_main-L_pc")
        e("s_addc_u32 s97, s97, 0")
        e("s_mov_b32 s98, L_codeend-L_main")
        e("s_mov_b32 s99, 0x20000")
        e("s_lshr_b32 s95, s2, 3")
        e("s_lshl_b32 s95, s95, 10")
        va("v_lshlrev_b32 v16, 2, v0")
        e(f"buffer_load_dword v{UT}, v16, s[96:99], s95 offen", "vmem", rd=["v16"], wr=[f"v{UT}"])
    if a.remap:
        e(f"s_and_b32 s{sTMP}, s2, 7")
        e(f"s_lshl_b32 s{sTMP}, s{sTMP}, 5")
        e("s_lshr_b32 s2, s2, 3")
        e(f"s_or_b32 s2, s2, s{sTMP}")
    e(f"s_mov_b32 s{sMODE}, 0")
    E.label("L_start")
    va("v_lshrrev_b32 v12, 6, v0")
    va(f"v_and_b32 v{vLN}, 63, v0")
    v(f"v_readfirstlane_b32 s{sW}, v12", [f"s{sW}"], ["v12"])
    va(f"v_lshrrev_b32 v13, 4, v{vLN}")
    va("v_and_b32 v14, 2, v13")
    va(f"v_xor_b32 v14, v14, v{vLN}")
    va(f"v_lshl_add_u32 v{vDQ[0]}, v14, 4, {BIAS}")
    va(f"v_add_u32 v{vDQ[1]}, {(qS[2] - GRAN) & 0xffffffff}, v{vDQ[0]}")
    va(f"v_lshlrev_b32 v12, {lg(kvS[3])}, v12")
    if kvS[:2] != (256, 512):
        va("v_and_b32 v15, 1, v13")
        va(f"v_mul_u32_u24 v15, {kvS[0] - 256}, v15")
        va("v_add_u32 v12, v12, v15")
        va("v_lshrrev_b32 v15, 1, v13")
        va(f"v_mul_u32_u24 v15, {kvS[1] - 512}, v15")
        va("v_add_u32 v12, v12, v15")
    va(f"v_add_u32 v{vDK[0]}, v12, v{vDQ[0]}")
    va(f"v_add_u32 v{vDK[1]}, {(kvS[2] - GRAN) & 0xffffffff}, v{vDK[0]}")
    va("v_and_b32 v14, 1, v13")
    va(f"v_lshlrev_b32 v14, {3 if a.pa else 1}, v14")
    va(f"v_xor_b32 v14, v14, v{vLN}")
    va(f"v_lshl_add_u32 v14, v14, 4, {BIAS}")
    va(f"v_add_u32 v{vDV[0]}, v12, v14")
    va(f"v_add_u32 v{vDV[1]}, {(kvS[2] - GV) & 0xffffffff}, v{vDV[0]}")
    e(f"s_mul_i32 s{sWG}, s{sW}, {2 * GRAN}", rd=[f"s{sW}"])
    if a.pa:
        e(f"s_mul_i32 s{sWV}, s{sW}, {2 * GV}")
    e(f"s_mul_i32 s{sQW}, s{sW}, {4 * TILE}")
    e(f"s_add_u32 s{sQW}, s{sQW}, {q0 * TILE}")
    e(f"s_lshl_b32 s{sTMP}, s2, 2")
    e(f"s_add_u32 s{sTMP}, s{sTMP}, s{sW}")
    if a.qrot:
        e(f"s_lshr_b32 s{sX}, s{sTMP}, {a.qrot - 1}")
        e(f"s_and_b32 s{sX}, s{sX}, 3")
        e(f"s_lshl_b32 s{sX}, s{sX}, {lg(qS[4])}")
    else:
        e(f"s_mov_b32 s{sX}, 0")
    e(f"s_lshl_b32 s{sTMP}, s{sTMP}, 14")
    e(f"s_lshl_b32 s{sC}, s2, 17")
    e(f"s_sub_u32 s{sC}, s{sC}, {BIAS}")
    e(f"s_subb_u32 s{sTHR}, 0, 0")
    e(f"s_sub_u32 s{sT2}, s{sTMP}, {BIAS}")
    e(f"s_subb_u32 s{sT2 + 1}, 0, 0")
    for d, size in ((sK, 131072 + BIAS), (sV, 131072 + BIAS), (sQ, 16384 + BIAS), (sO, 16384)):
        e(f"s_mov_b32 s{d + 2}, {size}")
        e(f"s_mov_b32 s{d + 3}, 0x20000")

    def set_off(j):
        if a.rot and j:
            e(f"s_xor_b32 s{sOFF + j}, s{sOFF}, {j * kvS[4]}")
        elif a.rot:
            e(f"s_lshr_b32 s{sOFF}, s2, {a.rot - 1}")
            e(f"s_and_b32 s{sOFF}, s{sOFF}, {a.rotmask}")
            if a.rotrev:
                e(f"s_brev_b32 s{sOFF}, s{sOFF}")
                e(f"s_lshr_b32 s{sOFF}, s{sOFF}, {32 - a.rotrev}")
            e(f"s_lshl_b32 s{sOFF}, s{sOFF}, {lg(kvS[4])}")
        else:
            e(f"s_mov_b32 s{sOFF + j}, {j * kvS[4]}")

    def set_x(x, g):
        if x or g:
            e(f"s_xor_b32 s{sX + 4 * x + g}, s{sX}, {x * qS[4] + (g >> 1) * qS[3] + (g & 1) * qS[2]}")

    for j in range(a.prek):
        set_off(j)
    e("s_waitcnt lgkmcnt(0)", "wait")
    srd_todo = {sK: (6, sC, f"s{sTHR}"), sQ: (4, sT2, f"s{sT2 + 1}"), sV: (8, sC, f"s{sTHR}"), sO: (10, sTMP, "0")}

    def need_srd(d):
        if d in srd_todo:
            p, lo, hi = srd_todo.pop(d)
            e(f"s_add_u32 s{d}, s{p}, s{lo}")
            e(f"s_addc_u32 s{d + 1}, s{p + 1}, {hi}")

    stamp("x")
    npre = len(pre_tiles)
    di = npre + a.ninit
    items = [make_dma(t) for t in dma_order[:di]]
    items[npre:npre] = [(Op(f"s_add_u32 m0, s{sQW}, {x * TILE + 2 * g * GRAN}", "salu", wr=["m0"]),
                         dma_pair(sQ, vDQ, sX + 4 * x + 2 * g)) for x in range(4) for g in range(2)]
    vm0 = E.nvm
    depth = [[int(z) for z in d.split(",")] for d in (a.deven, a.dodd or a.deven)]
    issued, landed, npoint = [0, 0], [0, 0], [0]

    def clone(o):
        return Op(o.text, o.cls, rd=o.rd, wr=o.wr)

    def point(*steps):
        code = [[], []]
        for vv in range(2):
            def issue():
                pre, ops = items[issued[vv]]
                code[vv] += [clone(pre), Op("s_nop 0", "nop")] + [clone(o) for o in ops]
                ops[1].idx, ops[1].gap, ops[1].vmn = len(E.out), E.gap, vm0 + 2 * issued[vv] + 1
                issued[vv] += 1
            for kind, k in steps:
                if kind == "wait" and landed[vv] <= k:
                    while issued[vv] <= k:
                        issue()
                    code[vv].append(Op(f"s_waitcnt vmcnt({2 * (issued[vv] - k - 1)})", "wait"))
                    landed[vv] = k + 1
                while kind == "top" and issued[vv] < len(items) and issued[vv] - landed[vv] < (depth[vv] + [99])[k]:
                    issue()
        n = npoint[0]
        npoint[0] += 1
        same = [o.text for o in code[0]] == [o.text for o in code[1]]
        for vv in range(2):
            for o in code[vv]:
                o.tag = None if same else ("arm", n, vv)
        if same:
            seq = code[0]
        elif not code[0] or not code[1]:
            seq = ([Op(f"s_cbranch_{'vccnz' if code[0] else 'vccz'} L_j{n}", "salu")] + code[0] + code[1] +
                   [Op(f"L_j{n}:", "label")])
        else:
            seq = ([Op(f"s_cbranch_vccnz L_o{n}", "salu")] + code[0] + [Op(f"s_branch L_j{n}", "salu", tag=("arm", n, 0)),
                   Op(f"L_o{n}:", "label")] + code[1] + [Op(f"L_j{n}:", "label")])
        for o in seq:
            E.emit(o) if o.cls != "label" else E.out.append(o)
        E.nvm, E.vm_done = vm0 + 2 * max(issued), vm0 + 2 * min(landed)

    n0 = min(depth[0][0], depth[1][0])
    for k in range(n0):
        pre, ops = items[k]
        E.emit(pre)
        need_srd(int(re.search(r"s\[(\d+):", ops[0].text).group(1)))
        if npre <= k < npre + 8:
            set_x((k - npre) // 2, 2 * ((k - npre) % 2))
        for o in ops:
            E.emit(o)
    issued[:] = [n0, n0]
    for d in (sK, sQ, sV, sO):
        need_srd(d)
    for x in range(4):
        for g in range(0, 4, 2):
            if npre + 2 * x + g // 2 >= n0:
                set_x(x, g)
    if depth[0] != depth[1]:
        e(f"s_getreg_b32 s{sTMP}, hwreg(HW_REG_XCC_ID, 0, 1)")
        e(f"s_cmp_lg_u32 s{sTMP}, 0")
        e("s_cselect_b64 vcc, -1, 0")
    point(("top", 0))
    for j in range(a.prek, 16):
        set_off(j)
    for x in range(4):
        for g in (1, 3):
            if not a.half:
                set_x(x, g)
    e(f"s_mov_b32 s{sC}, {f32bits(math.log2(math.e) / math.sqrt(128.0)):#x}")
    e(f"s_mov_b32 s{sTHR}, {f32bits(2.0 ** 32):#x}")
    va(f"v_and_b32 v12, 3, v{vLN}")
    va(f"v_bfe_u32 v13, v{vLN}, 2, 2")
    va(f"v_lshrrev_b32 v14, 4, v{vLN}")
    va(f"v_mul_u32_u24 v{vK}, {GRAN}, v12")
    va(f"v_lshl_add_u32 v{vK}, v13, 8, v{vK}")
    va("v_and_b32 v15, 2, v13")
    va("v_xor_b32 v15, v15, v14")
    va(f"v_lshl_add_u32 v{vK}, v15, 4, v{vK}")
    va(f"v_add_u32 v{vQA}, s{sQW}, v{vK}")
    va(f"v_mul_u32_u24 v{vV[0]}, {GV}, v13")
    va(f"v_lshl_add_u32 v{vV[0]}, v14, 8, v{vV[0]}")
    if a.pa:
        va("v_and_b32 v15, 1, v12")
        va(f"v_lshl_add_u32 v{vV[0]}, v15, 3, v{vV[0]}")
        va("v_lshrrev_b32 v15, 1, v12")
        va(f"v_lshl_add_u32 v{vV[0]}, v15, 6, v{vV[0]}")
    else:
        va(f"v_lshl_add_u32 v{vV[0]}, v12, 3, v{vV[0]}")
    va("v_and_b32 v15, 1, v14")
    va(f"v_lshl_add_u32 v{vV[0]}, v15, {7 if a.pa else 5}, v{vV[0]}")
    if a.hswap:
        e(f"s_lshl_b32 s{sT2}, s2, 2")
        e(f"s_add_u32 s{sT2}, s{sT2}, s{sW}")
        e(f"s_bfe_u32 s{sT2}, s{sT2}, {(a.hswap - 1) | 1 << 16:#x}")
        e(f"s_lshl_b32 s{sT2}, s{sT2}, 7")
        va(f"v_xor_b32 v{vV[0]}, s{sT2}, v{vV[0]}")
    va(f"v_xor_b32 v{vV[1]}, {128 if a.pa else 32}, v{vV[0]}")
    va(f"v_add_u32 v{vV[2]}, {vwin[1] * TILE}, v{vV[0]}")
    va(f"v_add_u32 v{vV[3]}, {vwin[1] * TILE}, v{vV[1]}")
    va(f"v_add_u32 v{vV[0]}, {vwin[0] * TILE}, v{vV[0]}")
    va(f"v_add_u32 v{vV[1]}, {vwin[0] * TILE}, v{vV[1]}")
    e(f"s_mul_i32 s{sTMP}, s{sW}, {2 * TILE}")
    vLW, vLR, vOR1 = 12, 13, 14
    if a.pa:
        va(f"v_lshlrev_b32 v{vOR}, 8, v14")
        va(f"v_lshl_add_u32 v{vOR}, v12, 6, v{vOR}")
        va(f"v_lshl_add_u32 v{vOR}, v13, 3, v{vOR}")
        va(f"v_lshl_add_u32 v{vOR}, v15, 5, v{vOR}")
        va(f"v_add_u32 v{vOR}, s{sTMP}, v{vOR}")
        va(f"v_lshrrev_b32 v12, 5, v{vLN}")
        va("v_lshlrev_b32 v13, 2, v12")
        va(f"v_xor_b32 v13, v13, v{vLN}")
        va(f"v_lshl_add_u32 v{vOW}, v13, 3, s{sTMP}")
        va(f"v_and_b32 v13, 7, v{vLN}")
        va("v_lshlrev_b32 v13, 4, v13")
        va(f"v_lshl_add_u32 v{vOG}, v12, {lg(qS[2])}, v13")
        va(f"v_bfe_u32 v13, v{vLN}, 3, 2")
        va(f"v_lshl_add_u32 v{vOG}, v13, 8, v{vOG}")
        e(f"s_lshl_b32 s{sTMP}, s{sW}, 8")
        e(f"s_add_u32 s{sTMP}, s{sTMP}, {SYNC_OFF}")
        va(f"v_lshl_add_u32 v{vLW}, v{vLN}, 2, s{sTMP}")
        va(f"v_lshl_add_u32 v{vLR}, v14, 4, s{sTMP}")
        va(f"v_xor_b32 v{vOR1}, 32, v{vOR}")
    else:
        va(f"v_and_b32 v15, 15, v{vLN}")
        va(f"v_mul_u32_u24 v{vOW}, 272, v15")
        va(f"v_lshl_add_u32 v{vOW}, v14, 3, v{vOW}")
        va(f"v_add_u32 v{vOW}, s{sTMP}, v{vOW}")
    if a.pa:
        pass
    elif a.half:
        va(f"v_bfe_u32 v13, v{vLN}, 3, 2")
        va("v_lshrrev_b32 v15, 1, v13")
        va("v_xor_b32 v15, v15, v13")
        va("v_and_b32 v15, 1, v15")
        va("v_lshlrev_b32 v15, 2, v15")
        va(f"v_xor_b32 v15, v15, v{vLN}")
        va("v_and_b32 v15, 7, v15")
        va("v_lshlrev_b32 v15, 4, v15")
        va(f"v_lshl_add_u32 v{vOG}, v13, 8, v15")
        va(f"v_mul_u32_u24 v{vOR}, {GRAN}, v13")
        va(f"v_add3_u32 v{vOR}, v{vOR}, v15, s{sTMP}")
        va(f"v_lshrrev_b32 v13, 5, v{vLN}")
        va(f"v_lshl_add_u32 v{vOG}, v13, {lg(qS[2])}, v{vOG}")
        va("v_mul_u32_u24 v13, 272, v13")
        va(f"v_add_u32 v{vOR}, v{vOR}, v13")
    else:
        va("v_lshlrev_b32 v13, 2, v14")
        va("v_sub_u32 v15, v15, v13")
        va("v_and_b32 v15, 15, v15")
        va("v_lshlrev_b32 v15, 4, v15")
        va(f"v_lshl_add_u32 v{vOG}, v14, 8, v15")
        va(f"v_mul_u32_u24 v{vOR}, {GRAN}, v14")
        va(f"v_add3_u32 v{vOR}, v{vOR}, v15, s{sTMP}")
    va("v_mov_b32 v15, 0x3f803f80")
    for i in range(4):
        v(f"v_accvgpr_write_b32 a{aONE + i}, v15", [f"a{aONE + i}"], ["v15"])
    if a.sparse:
        assert a.pa and not a.hswap
        va(f"v_and_b32 v{vIX}, 1, v{vLN}")
        va(f"v_sub_u32 v{vIX}, 0, v{vIX}")
        va(f"v_and_b32 v{vIX}, 0xaaaaaaaa, v{vIX}")
        va(f"v_or_b32 v{vIX}, 0x44444444, v{vIX}")
        for x in range(4):
            for i in range(4):
                v(f"v_accvgpr_write_b32 a{Lreg[x] + i}, 0", [f"a{Lreg[x] + i}"])
    if a.hswap:
        va(f"v_add_u32 v{vOG}, s{sT2}, v{vOG}")
        va(f"v_xor_b32 v15, 128, v{vOG}")
    for x in range(4):
        va(f"v_mov_b32 v{NM[x]}, 0xff800000")
    for x in addx:
        va(f"v_mov_b32 v{Lreg[x]}, 0")
    if flag:
        e(f"s_lshl_b32 s{sTMP}, s{sW}, 8")
        e(f"s_add_u32 s{sTMP}, s{sTMP}, {SYNC_OFF}")
        va(f"v_lshlrev_b32 v{vFE}, 2, v{vLN}")
        va(f"v_lshl_add_u32 v{vFR}, v12, 8, v{vFE}")
        va(f"v_add_u32 v{vFR}, {SYNC_OFF}, v{vFR}")
        va(f"v_add_u32 v{vFW}, s{sTMP}, v{vFE}")
        va(f"v_mov_b32 v{vFE}, 0")
        e(f"ds_write_b32 v{vFW}, v{vFE}", "ldsw", rd=[f"v{vFW}", f"v{vFE}"])
        E.lds_drain()
    if a.pads:
        e("s_mov_b64 exec, 0")
        for w in range(3):
            e(f"s_cmp_eq_u32 s{sW}, {w}")
            e(f"s_cbranch_scc1 L_pad{w}")
        e("s_branch L_pad3")
        E.out.append(Op(".p2align 12", "label"))
    E.label("L_main")
    if a.pads:
        e("s_mov_b64 exec, -1")

    def finalize_read(op):
        if op.text is not None:
            return
        if op.tag[0] == "K":
            _, j, s = op.tag
            off = (slot_of["K", j // 2] + j % 2) * TILE + 64 * s
            assert off < 65536
            op.text = f"ds_read_b128 {rr('a', Freg['K', j, s], 4)}, v{vK} offset:{off}"
        else:
            _, kap, b, tau = op.tag
            sl = slot_of["V", kap]
            w = 0 if sl < vwin[1] else 1
            off = (sl - vwin[w]) * TILE + tau * 4 * GV + (16 * (b & 3) if a.pa else 64 * (b >> 1))
            assert off < 65536
            av = vV[2 * w + (b >> 2 if a.pa else b & 1)]
            op.rd = [f"v{av}"]
            op.text = f"ds_read_b64_tr_b16 {rr('a', Freg['V', kap, b] + 2 * tau, 2)}, v{av} offset:{off}"

    kr = {(j, s): Op(None, "ldsr", rd=[f"v{vK}"], wr=regs("a", Freg["K", j, s], 4), tag=("K", j, s))
          for j in range(32) for s in range(4)}
    vr = {(kap, b, t): Op(None, "ldsr", wr=regs("a", Freg["V", kap, b] + 2 * t, 2), tag=("V", kap, b, t))
          for kap in range(16) for b in range(8) for t in range(2)}
    for (j, s), op in kr.items():
        tile_reads["K", j // 2].append(op)
    for (kap, b, t), op in vr.items():
        tile_reads["V", kap].append(op)

    point(*[st_ for k in range(npre) for st_ in (("wait", k), ("top", 1))])
    e("s_barrier", "barrier")
    for t in pre_tiles:
        for op in tile_reads[t]:
            finalize_read(op)
            E.emit(op)
    e(f"s_cmp_lg_u32 s{sMODE}, 0")
    e("s_cbranch_scc1 L_maxpass")
    E.label("L_maxdone")

    def q_scale(x, s):
        for i in range(4):
            src, t = QT + 4 * s + i, UT + 2 * i
            v(f"v_lshlrev_b32 v{t}, 16, v{src}", [f"v{t}"], [f"v{src}"])
            v(f"v_and_b32 v{t + 1}, 0xffff0000, v{src}", [f"v{t + 1}"], [f"v{src}"])
        for i in range(4):
            t = UT + 2 * i
            v(f"v_pk_mul_f32 {rr('v', t, 2)}, {rr('v', t, 2)}, s[{sC}:{sC + 1}] op_sel_hi:[1,0]", regs("v", t, 2),
              regs("v", t, 2))
        for i in range(4):
            v(f"v_cvt_pk_bf16_f32 v{UT + 2 * i}, v{UT + 2 * i}, v{UT + 2 * i + 1}", [f"v{UT + 2 * i}"],
              [f"v{UT + 2 * i}", f"v{UT + 2 * i + 1}"])
        for i in range(4):
            v(f"v_accvgpr_write_b32 a{Qreg[x][s] + i}, v{UT + 2 * i}", [f"a{Qreg[x][s] + i}"], [f"v{UT + 2 * i}"])

    def q_prepare(x):
        k = npre + 2 * x
        point(*([("wait", k), ("top", 1)] if x == 0 or a.halftop else []), ("wait", k + 1))
        stamp("q")
        rds = [e(f"ds_read_b128 {rr('v', QT + 4 * s, 4)}, v{vQA} offset:{x * TILE + 64 * s}", "ldsr",
                 rd=[f"v{vQA}"], wr=regs("v", QT + 4 * s, 4)) for s in range(4)]
        point(("top", 1))
        for s in range(4):
            E.lds_wait([rds[s]])
            q_scale(x, s)
        point(("top", 2 if x < 3 else 3))

    def first_max_ops(x):
        n = NM[x]
        ops = []

        def add(text, wr, rd, dist=0, deps=()):
            ops.append(Op(text, "valu", rd=rd, wr=wr, deps=([(ops[-1], dist)] if ops else []) + list(deps)))

        for j in range(a.nmax):
            S = Sreg[uidx[j, x] % a.ns]
            for r in (S, S + 2):
                add(f"v_max3_f32 v{n}, v{r}, v{r + 1}, v{n}", [f"v{n}"], [f"v{r}", f"v{r + 1}", f"v{n}"],
                    deps=[(mf[last_use["S", j, x]], 8)])
        for sw in ("v_permlane32_swap_b32", "v_permlane16_swap_b32"):
            add(f"v_mov_b32 v{n + 1}, v{n}", [f"v{n + 1}"], [f"v{n}"])
            add(f"{sw} v{n + 1}, v{n}", [f"v{n}", f"v{n + 1}"], [f"v{n}", f"v{n + 1}"], 2)
            add(f"v_max_f32 v{n}, v{n}, v{n + 1}", [f"v{n}"], [f"v{n}", f"v{n + 1}"])
        for i in (1, 2, 3, 0):
            add(f"v_mul_f32 v{n + i}, -1.0, v{n}", [f"v{n + i}"], [f"v{n}"])
        return ops

    F = []
    ladds = {x: [] for x in range(4)}
    nmdone = {}
    for u, (j, x) in enumerate(qk_units):
        S = Sreg[u % a.ns]
        prod = mf[last_use["S", j, x]]
        sdead = first_use[("S",) + qk_units[u + a.ns]] - 1 if u + a.ns < 128 else 10 ** 9
        kap = j // 2
        pdead = max(min(sdead, first_use["P", kap, x] - 2), last_use["S", j, x])
        assert pdead < first_use["P", kap, x]
        if j == 0:
            mops = first_max_ops(x)
            for k, o in enumerate(mops):
                o.dead = max(min(pdead, first_use["S", a.nc0, x] - 2), last_use["S", a.nmax - 1, x])
                assert o.dead < first_use["S", a.nc0, x]
                o.prio = (-1, u, k)
            nmdone[x] = mops[-4]
            F += mops
        ex = []
        for i in range(4):
            op = Op(f"v_exp_f32 v{S + i}, v{S + i}", "trans", rd=[f"v{S + i}"], wr=[f"v{S + i}"],
                    deps=[(prod, 8)], dead=pdead)
            op.prio = (pdead - 4 + i, u, 3 * i)
            if j < a.nc0:
                n = NM[x] + 1
                sub = Op(f"v_add_f32 v{S + i}, v{S + i}, v{n}", "valu", rd=[f"v{S + i}", f"v{n}"], wr=[f"v{S + i}"],
                         deps=[(nmdone[x], 0), (prod, 8)], dead=pdead)
                sub.prio = (pdead - 5 + i, u, 3 * i)
                F.append(sub)
                op.deps.append((sub, 0))
            ex.append(op)
            F.append(op)
            if x in addx:
                ad = Op(f"v_add_f32 v{Lreg[x]}, v{Lreg[x]}, v{S + i}", "valu", rd=[f"v{S + i}", f"v{Lreg[x]}"],
                        wr=[f"v{Lreg[x]}"], deps=[(op, 1)], dead=min(sdead, pdead + 8))
                ad.prio = (pdead - 4 + i, u, 3 * i + 2)
                F.append(ad)
                ladds[x].append(ad)
            if i % 2:
                P = Preg[kap, x] + 2 * (j % 2) + i // 2
                cv = Op(f"v_cvt_pk_bf16_f32 v{P}, v{S + i - 1}, v{S + i}", "valu",
                        rd=[f"v{S + i - 1}", f"v{S + i}"], wr=[f"v{P}"], deps=[(ex[i - 1], 1), (op, 1)],
                        early=Pfree[kap, x], dead=pdead)
                assert Pfree[kap, x] <= pdead, ("P pool too small", kap, x)
                cv.prio = (pdead - 4 + i, u, 3 * i + 1)
                F.append(cv)
    lastsm = F[-12 * a.ns:]
    for key, op in [(("K",) + k, o) for k, o in kr.items()] + [(("V",) + k[:2], o) for k, o in vr.items()]:
        fu = first_use[key]
        mf[fu].needs.append(op)
        if op.idx is None:
            op.early = max(Ffree[key], pub[key[0], key[1] // 2 if key[0] == "K" else key[1]],
                           fu - (a.fhoist if a.fhoist and key[0] == "V" and key[1] >= gstart[G - 1] // 2 else a.hoist))
            op.dead = max(fu - a.lat, op.early)
            assert op.dead < fu
            op.prio = (op.dead - a.rdbias, -1, fu)
            F.append(op)

    tq = Sreg + NM
    tfree = {b: None for b in tq}
    tdead = max(last_use["S", 31, x] for x in range(4))
    lastsync = epochs[-1]["gc"] + 1
    epi_order = list(dict.fromkeys(int(c) for c in a.final if c.isdigit()))
    seqn = [0]
    mfpos = {o: i for i, o in enumerate(mf)}
    stage_w, stage_r, mulpair = [], {}, {}

    def epi(text, cls, **kw):
        op = Op(text, cls, **kw)
        seqn[0] += 1
        op.prio = (10 ** 8, seqn[0], 0)
        if a.eprio:
            src = [mfpos[d] for d, _ in op.deps if d in mfpos] + [d.prio[0] - a.eprio for d, _ in op.deps if d not in mfpos]
            op.prio = (max(src) + a.eprio, seqn[0], 0)
        F.append(op)
        return op

    rcp, wrs_of = {}, {x: [] for x in range(4)}

    def recip(x):
        rl, L = vRL[x], Lreg[x]
        if x in ones_x:
            prev = epi(f"v_accvgpr_read_b32 v{rl}, a{L}", "valu", rd=[f"a{L}"], wr=[f"v{rl}"],
                       deps=[(mf[last_use["L", x]], 8)], early=lastsync)
            L = rl
        else:
            prev = None
            for sw in ("v_permlane32_swap_b32", "v_permlane16_swap_b32"):
                m1 = epi(f"v_mov_b32 v{rl}, v{L}", "valu", rd=[f"v{L}"], wr=[f"v{rl}"], early=lastsync,
                         deps=[(prev, 0)] if prev else [(o, 0) for o in ladds[x][-16:]])
                m2 = epi(f"{sw} v{rl}, v{L}", "valu", rd=[f"v{L}", f"v{rl}"], wr=[f"v{L}", f"v{rl}"], deps=[(m1, 2)])
                prev = epi(f"v_add_f32 v{L}, v{L}, v{rl}", "valu", rd=[f"v{L}", f"v{rl}"], wr=[f"v{L}"], deps=[(m2, 0)])
        cm = epi(f"v_cmp_nge_f32 s[{sBAD + 2 * x}:{sBAD + 2 * x + 1}], s{sTHR}, v{L}", "valu", rd=[f"v{L}"],
                 wr=[f"s{sBAD + 2 * x}"], deps=[(prev, 0)])
        rcp[x] = epi(f"v_rcp_f32 v{rl}, v{L}", "trans", rd=[f"v{L}"], wr=[f"v{rl}"], deps=[(cm, 0)])

    def epi_rows(x, h):
        n, (p, ob) = NM[x], Oreg[x]
        if x not in rcp:
            r0 = epi(f"v_accvgpr_read_b32 v{n}, a{Lreg[x]}", "valu", rd=[f"a{Lreg[x]}"], wr=[f"v{n}"],
                     deps=[(mf[last_use["L", x]], 12)])
            if a.sparse:
                r1 = epi(f"v_accvgpr_read_b32 v{n + 1}, a{Lreg[x] + 1}", "valu", rd=[f"a{Lreg[x] + 1}"],
                         wr=[f"v{n + 1}"], deps=[(mf[last_use["L", x]], 12)])
                r0 = epi(f"v_add_f32 v{n}, v{n}, v{n + 1}", "valu", rd=[f"v{n}", f"v{n + 1}"], wr=[f"v{n}"],
                         deps=[(r0, 0), (r1, 0)])
            cm = epi(f"v_cmp_nge_f32 s[{sBAD + 2 * x}:{sBAD + 2 * x + 1}], s{sTHR}, v{n}", "valu", rd=[f"v{n}"],
                     wr=[f"s{sBAD + 2 * x}"], deps=[(r0, 0)])
            rc = epi(f"v_rcp_f32 v{n}, v{n}", "trans", rd=[f"v{n}"], wr=[f"v{n}"], deps=[(cm, 0)])
            lw = epi(f"ds_write_b32 v{vLW}, v{n}", "ldsw", rd=[f"v{vLW}", f"v{n}"],
                     deps=[(rc, 1)] + [(o, 0) for o in rcp.values()])
            lw.cost = 8
            rcp[x] = epi(f"ds_read_b128 {rr('v', n, 4)}, v{vLR}", "ldsr", rd=[f"v{vLR}"], wr=regs("v", n, 4),
                         deps=[(lw, 0)])
        xi = epi_order.index(x)
        so, region = (xi % 2) * TILE + 2048 * h, (xi % 2, h)
        X, mu = [], []
        for b in range(4 * h, 4 * h + 4):
            prod, o = mf[last_use["O", x, b]], ob + 4 * b
            if p == "a":
                t, rel = spare.pop(0)
                src = [[(epi(f"v_accvgpr_read_b32 v{t + i}, a{o + i}", "valu", rd=[f"a{o + i}"], wr=[f"v{t + i}"],
                             deps=[(prod, 8)], early=rel), 0)] for i in range(4)]
            else:
                t, src = o, [[(prod, 8)]] * 4
            X.append(t)
            mu.append([epi(f"v_mul_f32 v{t + i}, v{n + i}, v{t + i}", "valu", rd=[f"v{n + i}", f"v{t + i}"],
                           wr=[f"v{t + i}"], deps=src[i] + [(rcp[x], a.stdist)], needs=[rcp[x]]) for i in range(4)])
            for i in (0, 2):
                mulpair[mu[-1][i]] = (mu[-1][i + 1],
                                      f"v_pk_mul_f32 {rr('v', t + i, 2)}, {rr('v', t + i, 2)}, {rr('v', n + i, 2)}")
            if b % 2 == 0:
                continue
            k = b % 4 - 1
            if k == 0:
                cv = {}
            for i in range(4):
                d = X[i % 2] + (i & 2) + k // 2
                after = [cv[0, i - 1]] if k == 0 and i % 2 else [cv[0, i | 1]] if k else []
                cv[k, i] = epi(f"v_cvt_pk_bf16_f32 v{d}, v{X[k] + i}, v{X[k + 1] + i}", "valu",
                               rd=[f"v{X[k] + i}", f"v{X[k + 1] + i}"], wr=[f"v{d}"],
                               deps=[(mu[k][i], 0), (mu[k + 1][i], 0)] + [(o, 0) for o in after])
        wrs = []
        for i in range(4):
            d = X[i % 2] + (i & 2)
            wrs.append(epi(f"ds_write_b64 v{vOW}, {rr('v', d, 2)} offset:{so + 512 * i}", "ldsw",
                           rd=[f"v{vOW}"] + regs("v", d, 2), early=10 ** 9,
                           deps=[(cv[0, i], 0), (cv[2, i], 0)] + [(r, 0) for r in stage_r.get(region, [])]))
        stage_w.extend(wrs)
        stage_r[region] = []
        for m in range(2):
            d = X[2 + m]
            rds = [epi(f"ds_read_b64_tr_b16 {rr('v', d + 2 * t, 2)}, v{(vOR, vOR1)[t]} offset:{so + 1024 * m}", "ldsr",
                       rd=[f"v{(vOR, vOR1)[t]}"], wr=regs("v", d + 2 * t, 2),
                       deps=[(w, 0) for w in wrs[2 * m:2 * m + 2]] + [(cv[2, i], 0) for i in range(4)])
                   for t in range(2)]
            stage_r[region] += rds
        for m in range(2):
            rds = stage_r[region][2 * m:2 * m + 2]
            off = f" offset:{128 * h}" if h and not a.hswap else ""
            vo = 15 if h and a.hswap else vOG
            st = (a.st.split("/") * 8)[len(stage_w) // 4 - 1]
            epi(f"buffer_store_dwordx4 {rr('v', X[2 + m], 4)}, v{vo}, s[{sO}:{sO + 3}], s{sX + 4 * x + 2 * m} offen{off} {st}"
                .rstrip(), "vmem", rd=regs("v", X[2 + m], 4) + [f"v{vo}"], deps=[(r, a.stdist) for r in rds], needs=rds)

    spare = sorted([(b + 4 * i, rel) for b, rel in ppool.rel.items() for i in range(pw)], key=lambda kv: kv[1])
    for x, bs in [(x, bs) for xs, bs in final_parts for x in xs]:
        if a.pa:
            for h in sorted({b // 4 for b in bs}):
                epi_rows(x, h)
            continue
        assert a.half or len(bs) == 8
        if x not in rcp:
            recip(x)
        xi = epi_order.index(x)
        rl, rc, wrs = vRL[x], rcp[x], wrs_of[x]
        p, ob = Oreg[x]
        so = (xi % 2) * TILE
        for b in bs:
            region = (xi % 2, b // 4 if a.half else 0)
            prod = mf[last_use["O", x, b]]
            o = ob + 4 * b
            if p == "a":
                t = tq.pop(0)
                tq.append(t)
                dep0 = [(d, 0) for d in (tfree[t] or lastsm)]
                src4 = [[(epi(f"v_accvgpr_read_b32 v{t + i}, a{o + i}", "valu", rd=[f"a{o + i}"], wr=[f"v{t + i}"],
                              deps=[(prod, 8)] + dep0, early=tdead + 1), 0)] for i in range(4)]
            else:
                t = o
                src4 = [[(prod, 8)] for i in range(4)]
            mu = [epi(f"v_mul_f32 v{t + i}, v{rl}, v{t + i}", "valu", rd=[f"v{rl}", f"v{t + i}"], wr=[f"v{t + i}"],
                      deps=src4[i] + [(rc, 1)]) for i in range(4)]
            for i in (0, 2):
                sel = "op_sel:[0,1] op_sel_hi:[1,1]" if rl % 2 else "op_sel_hi:[1,0]"
                mulpair[mu[i]] = (mu[i + 1], f"v_pk_mul_f32 {rr('v', t + i, 2)}, {rr('v', t + i, 2)}, "
                                             f"{rr('v', rl & ~1, 2)} {sel}")
            c0 = epi(f"v_cvt_pk_bf16_f32 v{t}, v{t}, v{t + 1}", "valu", rd=[f"v{t}", f"v{t + 1}"], wr=[f"v{t}"],
                     deps=[(mu[0], 0), (mu[1], 0)])
            c1 = epi(f"v_cvt_pk_bf16_f32 v{t + 1}, v{t + 2}, v{t + 3}", "valu", rd=[f"v{t + 2}", f"v{t + 3}"],
                     wr=[f"v{t + 1}"], deps=[(mu[2], 0), (mu[3], 0), (c0, 0)])
            w = epi(f"ds_write_b64 v{vOW}, {rr('v', t, 2)} offset:{so + 32 * b}", "ldsw",
                    rd=[f"v{vOW}", f"v{t}", f"v{t + 1}"], early=10 ** 9,
                    deps=[(c0, 0), (c1, 0)] + [(r, 0) for r in stage_r.get(region, [])])
            wrs.append(w)
            stage_w.append(w)
            if p == "a":
                tfree[t] = [w]
            if b % (4 if a.half else 8) != (3 if a.half else 7):
                continue
            if a.half:
                h = b // 4
                pieces = [(ob + 16 * h + 4 * n, so + 544 * n + 128 * h, 2 * n, 128 * h) for n in range(2)]
            else:
                pieces = [(ob + 4 * i, so + 272 * i, i, 0) for i in range(4)]
            rds = [epi(f"ds_read_b128 {rr(p, r, 4)}, v{vOR} offset:{lo}", "ldsr", rd=[f"v{vOR}"], wr=regs(p, r, 4),
                       deps=[(w, 0) for w in wrs]) for r, lo, _, _ in pieces]
            stage_r[region] = rds
            for rd_, (r, _, gi, go) in zip(rds, pieces):
                if str(x) in a.dbgnost:
                    continue
                stx = (st.split("/") * 4)[xi]
                off = f" offset:{go}" if go else ""
                epi(f"buffer_store_dwordx4 {rr(p, r, 4)}, v{vOG}, s[{sO}:{sO + 3}], s{sX + 4 * x + gi} offen{off} {stx}".rstrip(),
                    "vmem", rd=regs(p, r, 4) + [f"v{vOG}"], deps=[(rd_, a.stdist)], needs=[rd_])

    pending = sorted(F, key=lambda o: o.prio)
    overflow = 0
    leads = []

    def ready(op, strict=True):
        if op.early > E.gap:
            return False
        for d, dist in op.deps:
            if d.idx is None or (strict and E.nst - d.st < dist):
                return False
        return True

    def put(op):
        if op.cls == "ldsr":
            finalize_read(op)
        if op.needs:
            E.lds_wait(op.needs)
        E.emit(op)
        pending.remove(op)

    def closure(op, acc):
        assert op.early <= E.gap, ("cannot meet deadline", op.text, op.tag, op.early, E.gap)
        for d, _ in op.deps:
            if d.idx is None and d not in acc:
                assert d.cls != "mfma", ("deadline before producer", op.text, E.gap)
                closure(d, acc)
        if op not in acc:
            acc.append(op)

    def drain(merge_mul=False):
        while True:
            cand = [o for o in pending if ready(o)] or [o for o in pending if ready(o, False)]
            if not cand:
                return
            o = cand[0]
            if merge_mul and o in mulpair and mulpair[o][0].idx is None and ready(mulpair[o][0], False):
                o2, o.text = mulpair[o]
                o.rd += o2.rd
                o.wr += o2.wr
                put(o)
                o2.idx, o2.st = o.idx, o.st
                pending.remove(o2)
            else:
                put(o)

    def signal(ep):
        for t in ep["tiles"]:
            assert t in dma_op and dma_op[t].idx is not None, ("tile not issued before its epoch", t, ep)
            leads.append(E.gap - dma_op[t].gap)
        stamp("b")
        if ep["n"] >= len(epochs) - 2:
            stamp("e")
        E.vm_wait([dma_op[t] for t in ep["tiles"]])
        stamp("w")
        ep["rel"] = [t for t, rs in tile_reads.items() if t not in released and t in slot_of and
                     all(r.idx is not None and (not ep["bar"] or r.ldsn < E.lds_done) for r in rs)]
        released.update(ep["rel"])

    def passed(ep):
        if ep["n"] == 1:
            for s in range(q0, q0 + 16, 2):
                free_slots["K" if s < NK else "V"].append(s)
        for t in ep["rel"]:
            free_slots[t[0]].append(slot_of[t])
        if ("K", 11) in slot_of and all(s in free_slots["K"] for s in range(0, 8, 2)):
            for w in stage_w:
                w.early = min(w.early, E.gap)

    dper = [int(x.split("x")[0]) for x in a.dmaper.split(",") for _ in range(int((x + "x1").split("x")[1]))]
    next_dma_gap = G0 + a.dma0
    staged = None
    for g in range(-1, NMF):
        E.gap = g
        if g >= 0:
            E.emit(mf[g])
        if g in qgap:
            drain()
            q_prepare(qgap[g])
            if g == G0:
                stamp()
            E.lds_wait(mf[g + 1].needs)
            continue
        shadow = True
        budget = 8 if g < tdead + a.fstart else (a.fbudget * (g + 1) // 4 - a.fbudget * g // 4) * 4
        budget0 = budget
        if g >= 0 and "smfmac" in mf[g].text:
            budget -= 4
        fixed_mem, fixed_valu = [], []
        for ep in epochs:
            if ep["bar"]:
                if g == ep["gc"]:
                    signal(ep)
                    e("s_barrier", "barrier")
                    stamp("b")
                    if ep["n"] >= len(epochs) - 2:
                        stamp("e")
                    passed(ep)
                    shadow = False
                continue
            if g == ep["gs"] - 1:
                fixed_valu.append(Op(f"v_mov_b32 v{vFE}, {ep['n']}", "valu", wr=[f"v{vFE}"]))
            if g == ep["gs"]:
                signal(ep)
                shadow = False
                E.emit(Op(f"ds_write_b32 v{vFW}, v{vFE}", "ldsw", rd=[f"v{vFW}", f"v{vFE}"]))
                budget -= 8
            if g == ep["gr"]:
                ep["rd"] = Op(f"ds_read_b32 v{vFT}, v{vFR}", "ldsr", rd=[f"v{vFR}"], wr=[f"v{vFT}"])
                fixed_mem.append(ep["rd"])
            if g == ep["gc"] - 1:
                if E.lds_wait([ep["rd"]], a.lat):
                    shadow = False
                fixed_valu.append(Op(f"v_cmp_gt_u32 vcc, {ep['n']}, v{vFT}", "valu", rd=[f"v{vFT}"], wr=["vcc"]))
            if g == ep["gc"]:
                e(f"s_cbranch_vccnz L_spin{ep['n']}")
                E.label(f"L_ok{ep['n']}")
                passed(ep)
                shadow = False
        if a.stamps and g in [first_use["S", gs, 0] for gs in (4, 8, 12, 16, 20, 24, 28)] + [tdead]:
            stamp()
        if g in (first_use["S", 14, 0], first_use["S", 22, 0]):
            stamp("s")
        if g in (G0 + 1, first_use["S", 14, 0], tdead):
            stamp("g")
        if g >= NMF - 145 and (NMF - 1 - g) % 36 == 0:
            stamp("e")
        if g > G0 and (g - G0) % a.stampper == 1:
            stamp("p")
        if g + 1 < NMF and mf[g + 1].needs and all(n.idx is not None for n in mf[g + 1].needs):
            if E.lds_wait(mf[g + 1].needs, a.lat):
                shadow = False
        quiet = not any(not ep["bar"] and g + 1 in (ep["gs"] - 1, ep["gs"], ep["gr"], ep["gc"] - 1) for ep in epochs)
        if staged is not None:
            for o in staged:
                E.emit(o)
            staged = None
            budget -= a.dmacost
        elif shadow and quiet and di < len(dma_order) and g >= next_dma_gap and slot_for(dma_order[di]) is not None:
            pre, staged = make_dma(dma_order[di])
            di += 1
            E.emit(pre)
            next_dma_gap = max(next_dma_gap, g - 4) + dper[0]
            if len(dper) > 1:
                dper.pop(0)
        budget -= 4 * (len(fixed_mem) + len(fixed_valu))
        full = budget >= 8
        picks = []
        for o in pending:
            if o.dead <= g:
                closure(o, picks)
        budget -= sum(o.cost for o in picks)
        cand = [o for o in pending[:400] if o not in picks and ready(o)]
        if full and not picks and cand:
            first = cand[0]
            small = [o for o in cand if o.cost == 4]
            tr = [o for o in cand if o.cls == "trans"]
            if first.cost == 4 and len(small) < 2 and tr:
                first = tr[0]
            picks.append(first)
            budget -= first.cost
        for o in cand:
            if o not in picks and o.cost <= budget:
                picks.append(o)
                budget -= o.cost
        mem = [o for o in picks if o.cls in ("ldsr", "ldsw", "vmem") and all(d.idx is not None for d, _ in o.deps)]
        rest = [o for o in picks if o not in mem]
        for o in fixed_mem:
            E.emit(o)
        for o in mem:
            put(o)
        for o in fixed_valu:
            E.emit(o)
        while rest:
            o = ([o for o in rest if ready(o)] or [o for o in rest if ready(o, False)])[0]
            put(o)
            rest.remove(o)
        while budget > 0:
            more = [o for o in pending[:400] if o.cls == "valu" and ready(o)]
            if not more:
                break
            put(more[0])
            budget -= 4
        if a.stress and G0 < g < tdead and budget >= 4:
            for z in range(budget // 4):
                r = Pbases[(3 * g + z) % 16] + g % 4
                v(f"v_fma_f32 v15, v{r}, v{r + 4}, v{r + 8}", ["v15"])
        elif full and not picks and budget >= 8 and any(ready(o, False) for o in pending[:400]):
            e("s_nop 1", "nop")
        if a.touch and g == a.touch:
            e(f"buffer_load_dword v15, v{vOG}, s[{sO}:{sO + 3}], 0 offen nt", "vmem", rd=[f"v{vOG}"], wr=["v15"])
        if a.dbgnop:
            n0, n1, ev, ln = [int(x) for x in a.dbgnop.split(",")]
            if n0 <= g < n1 and g % ev == 0:
                e(f"s_nop {ln}", "nop")
        if g > G0:
            overflow += max(0, budget0 - budget - 8)
        if g + 1 < NMF and mf[g + 1].needs:
            E.lds_wait(mf[g + 1].needs)
    assert staged is None and di == len(dma_order) and issued == [len(items)] * 2
    stamp()
    ntail = len(pending)
    n0 = len(E.out)
    drain(a.pk)
    overflow += sum(o.cost for o in E.out[n0:])
    assert not pending
    stamp("x")

    e(f"s_or_b64 s[{sBAD}:{sBAD + 1}], s[{sBAD}:{sBAD + 1}], s[{sBAD + 2}:{sBAD + 3}]")
    e(f"s_or_b64 s[{sBAD + 4}:{sBAD + 5}], s[{sBAD + 4}:{sBAD + 5}], s[{sBAD + 6}:{sBAD + 7}]")
    e(f"s_or_b64 s[{sBAD}:{sBAD + 1}], s[{sBAD}:{sBAD + 1}], s[{sBAD + 4}:{sBAD + 5}]")
    e(f"s_cselect_b32 s{sTMP}, 1, 0")
    e(f"s_lshl_b32 s{sC}, s{sW}, 2")
    e(f"s_add_u32 s{sC}, s{sC}, {FLAG_OFF}")
    va(f"v_mov_b32 v12, s{sC}")
    va(f"v_mov_b32 v13, s{sTMP}")
    va(f"v_mov_b32 v14, {FLAG_OFF}")
    e("ds_write_b32 v12, v13", "ldsw", rd=["v12", "v13"])
    E.lds_drain()
    e("s_barrier", "barrier")
    e("ds_read_b128 v[16:19], v14", "ldsr", rd=["v14"], wr=regs("v", 16, 4))
    E.lds_drain()
    v("v_or3_b32 v16, v16, v17, v18", ["v16"], regs("v", 16, 3))
    v("v_or_b32 v16, v16, v19", ["v16"], ["v16", "v19"])
    v(f"v_readfirstlane_b32 s{sTMP}, v16", [f"s{sTMP}"], ["v16"])
    e(f"s_andn2_b32 s{sTMP}, s{sTMP}, s{sMODE}", rd=[f"s{sTMP}"])
    e("s_cbranch_scc1 L_rerun")
    if a.stamps:
        e("s_waitcnt vmcnt(0)", "wait")
        stamp("x")
        E.lds_drain()
        e(f"s_mov_b32 s{sWS + 2}, 1048576")
        e(f"s_mov_b32 s{sWS + 3}, 0x20000")
        e(f"s_lshl_b32 s{sTMP}, s2, 2")
        e(f"s_add_u32 s{sTMP}, s{sTMP}, s{sW}")
        e(f"s_mul_i32 s{sTMP}, s{sTMP}, {8 * nstamp[0]}")
        va("v_mov_b32 v12, 0")
        for i in range(nstamp[0] if a.report < 0 else 0):
            va(f"v_mov_b32 v14, s{stampreg[i]}")
            va(f"v_mov_b32 v15, s{stampreg[i] + 1}")
            e(f"buffer_store_dwordx2 v[14:15], v12, s[{sWS}:{sWS + 3}], s{sTMP} offen offset:{8 * i}", "vmem",
              rd=["v14", "v15", "v12"])
            e("s_nop 1", "nop")
    if a.report >= 0:
        r = stampreg[a.report]
        e("s_mov_b32 s94, s86")
        if a.reportglob:
            e("s_mov_b32 s88, s100")
            e("s_mov_b32 s89, s101")
            e("s_mov_b32 s90, 256")
            e("s_mov_b32 s91, 0x20000")
            E.label("L_diag4")
            e("s_memrealtime s[92:93]", "smem")
            e("s_waitcnt lgkmcnt(0)", "wait")
            e("s_sub_u32 s92, s92, s94")
            e("s_cmp_lt_u32 s92, 2600")
            e("s_cbranch_scc1 L_diag4")
            e("s_not_b32 s92, s86")
            va("v_mov_b32 v14, s92")
            va("v_mov_b32 v12, 0")
            e("s_mov_b64 exec, 1")
            e("buffer_atomic_umax v14, v12, s[88:91], 0 offen sc1", "vmem", rd=["v14", "v12"])
            e("s_mov_b64 exec, -1")
            E.label("L_diag3")
            e("s_memrealtime s[92:93]", "smem")
            e("s_waitcnt lgkmcnt(0)", "wait")
            e("s_sub_u32 s92, s92, s94")
            e("s_cmp_lt_u32 s92, 5000")
            e("s_cbranch_scc1 L_diag3")
            e("buffer_load_dword v14, v12, s[88:91], 0 offen sc0 sc1", "vmem", rd=["v12"], wr=["v14"])
            e("s_waitcnt vmcnt(0)", "wait")
            v("v_readfirstlane_b32 s94, v14", ["s94"], ["v14"])
            e("s_not_b32 s94, s94", rd=["s94"])
        if a.reportwg:
            e(f"s_lshr_b32 s{sTMP}, s2, 5")
            e(f"s_cmp_lg_u32 s{sTMP}, {a.reportwg - 1}")
            e("s_cbranch_scc1 L_end")
        e(f"s_sub_u32 s{sTMP}, s{r}, s94")
        e(f"s_min_u32 s{sTMP}, s{sTMP}, 4000")
        e(f"s_mul_i32 s{sTMP}, s{sTMP}, 5")
        e(f"s_add_u32 s{sTMP}, s{sTMP}, 3000")
        E.label("L_diag2")
        e("s_memrealtime s[92:93]", "smem")
        e("s_waitcnt lgkmcnt(0)", "wait")
        e("s_sub_u32 s92, s92, s94")
        e(f"s_cmp_lt_u32 s92, s{sTMP}")
        e("s_cbranch_scc1 L_diag2")
    if a.spin:
        e("s_waitcnt vmcnt(0)", "wait")
        E.label("L_diag")
        e("s_memrealtime s[62:63]", "smem")
        e("s_waitcnt lgkmcnt(0)", "wait")
        e("s_sub_u32 s62, s62, s60")
        e(f"s_cmp_lt_u32 s62, {a.spin * 100}")
        e("s_cbranch_scc1 L_diag")
    E.label("L_end")
    e("s_endpgm", "end")

    for ep in epochs:
        if not ep["bar"]:
            E.label(f"L_spin{ep['n']}")
            e(f"ds_read_b32 v{vFT}, v{vFR}", "ldsr", rd=[f"v{vFR}"], wr=[f"v{vFT}"])
            e("s_waitcnt lgkmcnt(0)", "wait")
            v(f"v_cmp_gt_u32 vcc, {ep['n']}, v{vFT}", ["vcc"], [f"v{vFT}"])
            e(f"s_cbranch_vccnz L_spin{ep['n']}")
            e(f"s_branch L_ok{ep['n']}")
    E.label("L_codeend")

    E.label("L_rerun")
    e(f"s_mov_b32 s{sMODE}, 1")
    e("s_waitcnt vmcnt(0) lgkmcnt(0)", "wait")
    e("s_barrier", "barrier")
    va("v_mbcnt_lo_u32_b32 v0, -1, 0")
    va("v_mbcnt_hi_u32_b32 v0, -1, v0")
    e(f"s_lshl_b32 s{sTMP}, s{sW}, 6")
    va(f"v_add_u32 v0, s{sTMP}, v0")
    e("s_branch L_start")

    E.label("L_maxpass")
    va(f"v_bfe_u32 v{vT1}, v{vLN}, 2, 2")
    va(f"v_lshrrev_b32 v{vT2}, 4, v{vLN}")
    va(f"v_lshl_add_u32 v{vT2}, v{vT2}, 4, {BIAS}")
    va(f"v_lshl_add_u32 v{vT1}, v{vT1}, 8, v{vT2}")
    va(f"v_and_b32 v{UT}, 1, v{vLN}")
    va(f"v_lshl_add_u32 v{vT2}, v{UT}, {lg(qS[2])}, v{vT1}")
    va(f"v_bfe_u32 v{UT}, v{vLN}, 1, 1")
    va(f"v_lshl_add_u32 v{vT2}, v{UT}, {lg(qS[3])}, v{vT2}")
    va(f"v_and_b32 v{UT}, 3, v{vLN}")
    va(f"v_lshl_add_u32 v{vT1}, v{UT}, 10, v{vT1}")
    for x in range(4):
        for s in range(4):
            e(f"buffer_load_dwordx4 {rr('v', QT + 4 * s, 4)}, v{vT2}, s[{sQ}:{sQ + 3}], s{sX + 4 * x} offen offset:{64 * s}",
              "vmem", rd=[f"v{vT2}"], wr=regs("v", QT + 4 * s, 4))
        e("s_waitcnt vmcnt(0)", "wait")
        for s in range(4):
            q_scale(x, s)
    e(f"s_mov_b32 s{sTMP}, 0")
    E.label("L_maxloop")
    for s in range(4):
        e(f"buffer_load_dwordx4 {rr('v', QT + 4 * s, 4)}, v{vT1}, s[{sK}:{sK + 3}], s{sTMP} offen offset:{64 * s}",
          "vmem", rd=[f"v{vT1}"], wr=regs("v", QT + 4 * s, 4))
    e("s_waitcnt vmcnt(0)", "wait")
    for x in range(4):
        S = Sreg[x]
        for s in range(4):
            C, cr = ("0", []) if s == 0 else (rr("v", S, 4), regs("v", S, 4))
            E.emit(Op(f"v_mfma_f32_16x16x32_bf16 {rr('v', S, 4)}, {rr('v', QT + 4 * s, 4)}, {rr('a', Qreg[x][s], 4)}, {C}",
                      "mfma", rd=regs("v", QT + 4 * s, 4) + regs("a", Qreg[x][s], 4) + cr, wr=regs("v", S, 4), srcc=cr))
    e("s_nop 7", "nop")
    for x in range(4):
        S, n = Sreg[x], NM[x]
        v(f"v_max3_f32 v{n}, v{S}, v{S + 1}, v{n}", [f"v{n}"], [f"v{S}", f"v{S + 1}", f"v{n}"])
        v(f"v_max3_f32 v{n}, v{S + 2}, v{S + 3}, v{n}", [f"v{n}"], [f"v{S + 2}", f"v{S + 3}", f"v{n}"])
    e(f"s_add_u32 s{sTMP}, s{sTMP}, 4096")
    e(f"s_cmp_lt_u32 s{sTMP}, 131072")
    e("s_cbranch_scc1 L_maxloop")
    e("s_nop 3", "nop")
    e("s_branch L_maxdone")

    ops, nnop = fix_hazards(E.out)
    if a.pads:
        ops = insert_pads(ops)
    if a.verbose:
        print("G0", G0, "tdead", tdead)
        print([(ep["gs"], ep["gc"], [t[0] + str(t[1]) for t in ep["tiles"]]) for ep in epochs])
        print("leads", leads)
        print("stores", [o.gap for o in E.out if "buffer_store" in o.text])
    info = dict(mfma=NMF, instrs=len(ops), nops=nnop, overflow=overflow, tail=ntail, epochs=len(epochs),
                minlead=min(leads[a.ninit:]), pslots=len(Pbases), fslots=len(Fbases), stamps=nstamp[0])
    head = [
        "; GQA attention forward, B=32 Hq=32 Hkv=8 Sq=64 Sk=512 D=128, bf16 in / bf16 out (generated schedule).",
        "; kernarg: q @0, k @8, v @16, out @24, debug @32, ws @40",
        "; One workgroup per (batch, kv head); wave w handles q head 4*hkv+w.",
        "; Softmax shift: row max of the first keys; a final check on the row sums reruns the",
        "; workgroup with the true row max (L_rerun / L_maxpass) whenever that shift is unsafe.",
        f"; @launch grid=(256,1,1) block=(256,1,1) lds={LDS_BYTES}",
        '.amdgcn_target "amdgcn-amd-amdhsa--gfx950"', ".text", f".globl {KNAME}", ".p2align 8",
        f".type {KNAME},@function", f"{KNAME}:"]
    body = [(o.text if o.cls == "label" else "    " + o.text) for o in ops]
    tail = ['.section .rodata,"a"', ".p2align 6", f".amdhsa_kernel {KNAME}",
            "  .amdhsa_next_free_vgpr 512", "  .amdhsa_next_free_sgpr 102", "  .amdhsa_accum_offset 256",
            "  .amdhsa_group_segment_fixed_size 0", "  .amdhsa_kernarg_size 48", "  .amdhsa_user_sgpr_count 2",
            "  .amdhsa_user_sgpr_kernarg_segment_ptr 1", "  .amdhsa_system_sgpr_workgroup_id_x 1",
            ".end_amdhsa_kernel"]
    return "\n".join(head + body + tail) + "\n", info


def parser():
    ap = argparse.ArgumentParser()
    ap.add_argument("out")
    for k, d in dict(groups="2,2,4,4,4,2,2,12", final="0,1,2,3", ones="0123", oacc="2", ld="nt", st="sc1 nt", sync="bar",
                     merge="12,12,40", win="10,10,16", dmaper="29x5,33,33,29x6,21", stampat="m", dbgnop="", dbgnost="", deven="3,3,4", dodd="5,3,4").items():
        ap.add_argument("--" + k, default=d)
    for k, d in dict(ns=5, lag=3, lat=6, skew=8, nbar=1, dmacost=8, dma0=4, rdbias=8, hoist=64, stdist=12, q0=10,
                     ninit=3, infl=8, halftop=0, prek=2, prev=1, nc0=3, nmax=1, fbudget=10, fstart=4, pk=1,
                     half=1, stress=0, sparse=0, hswap=0, touch=0, report=-1, reportwg=0, reportglob=0, eprio=8, pa=1, sumearly=3, smooth=2, fhoist=120, rot=1, remap=1, rotmask=15, rotrev=0, qrot=3, kvs=0, qs=0, dbgswap=0, infl0=0, infl1=0, pvend=122, pvgam=140, qrun=1, snake=1, stampper=60, stamps=0, spin=0, pfcode=1, pads=1, verbose=0).items():
        ap.add_argument("--" + k, type=int, default=d)
    return ap


if __name__ == "__main__":
    a = parser().parse_args()
    txt, info = build(a)
    open(a.out, "w").write(txt)
    print(a.out, info)
```
